```python
import torch

def _softmax(x, axis=-1):
    return torch.softmax(x, dim=axis)
def _gelu(x):
    return torch.nn.functional.gelu(x, approximate="tanh")
def _silu(x):
    return torch.nn.functional.silu(x)
def _sigmoid(x):
    return torch.sigmoid(x)
def _layernorm(x, axis=-1, eps=1e-5):
    m = x.mean(dim=axis, keepdim=True)
    v = x.var(dim=axis, keepdim=True, unbiased=False)
    return (x - m) / torch.sqrt(v + eps)
def _scatter_add(tgt, idx, src, axis=0):
    return tgt.clone().index_add_(axis, idx, src)
def _segment_sum(src, seg, n):
    out = torch.zeros((n,) + src.shape[1:], dtype=src.dtype)
    return out.index_add_(0, seg, src)
def _pad(x, pw):
    flat = tuple(v for pair in reversed(pw) for v in pair)
    return torch.nn.functional.pad(x, flat)

kernel_name = 'sequential_preLN__mha_block__dense_activation_squared_relu__prompt'

def setup_inputs():

    _w = (lambda a: (lambda t: t.to(torch.bfloat16) if t.is_floating_point() else t)(torch.as_tensor(a)))
    def _A_setup():
        B, S, D, H = 1, 2048, 512, 32
        return {
            "x": _w((lambda *s: torch.randn(*s, dtype=torch.bfloat16) * 0.05)(B, S, D)),
            "wqkv": _w((lambda *s: torch.randn(*s, dtype=torch.bfloat16) * 0.05)(D, 3 * D)),
            "wo": _w((lambda *s: torch.randn(*s, dtype=torch.bfloat16) * 0.05)(D, D)),
        }
    _A_in = _A_setup()

    def _B_setup():
        B, S, D, F = 1, 2048, 512, 1376
        return {
            "x": _w((lambda *s: torch.randn(*s, dtype=torch.bfloat16) * 0.05)(B, S, D)),
            "w1": _w((lambda *s: torch.randn(*s, dtype=torch.bfloat16) * 0.05)(D, F)),
            "b1": _w((lambda *s: torch.randn(*s, dtype=torch.bfloat16) * 0.4)(F)),
            "w2": _w((lambda *s: torch.randn(*s, dtype=torch.bfloat16) * 0.05)(F, D)),
            "b2": _w((lambda *s: torch.randn(*s, dtype=torch.bfloat16) * 1.6)(D)),
        }
    _B_in = _B_setup()

    return {
        "A_x": _A_in["x"],
        "A_wqkv": _A_in["wqkv"],
        "A_wo": _A_in["wo"],
        "B_x": _B_in["x"],
        "B_w1": _B_in["w1"],
        "B_b1": _B_in["b1"],
        "B_w2": _B_in["w2"],
        "B_b2": _B_in["b2"],
    }

def reference(A_x, A_wqkv, A_wo, B_x, B_w1, B_b1, B_w2, B_b2):
    def _A_ref(x, wqkv, wo):
        B, S, D = x.shape
        H = 32
        Dh = D // H
        qkv = (lambda x, *d: x.permute(*d))((x @ wqkv).reshape(B, S, 3, H, Dh), 2, 0, 3, 1, 4)
        q, k, v = qkv[0], qkv[1], qkv[2]
        scores = torch.einsum("bhqd,bhkd->bhqk", q, k) * (Dh ** -0.5)
        p = _softmax(scores, axis=-1)
        o = torch.einsum("bhqk,bhkd->bhqd", p, v)
        return (lambda x, *d: x.permute(*d))(o, 0, 2, 1, 3).reshape(B, S, D) @ wo

    def _B_ref(x, w1, b1, w2, b2):
        h = torch.einsum("bsd,df->bsf", x, w1) + b1
        zero = torch.zeros_like(h)
        r = torch.where(h > zero, h, zero)
        h = r * r
        out = torch.einsum("bsf,fd->bsd", h, w2) + b2
        return out

    x = A_x
    h = x + _A_ref(_layernorm(x, axis=-1), A_wqkv, A_wo)
    h2 = h + _B_ref(_layernorm(h, axis=-1), B_w1, B_b1, B_w2, B_b2)
    return h2
```

```python
import re

class Asm:
    def __init__(self):
        self.lines = []
    def __call__(self, s):
        for l in s.split("\n"):
            l = l.strip()
            if l:
                self.lines.append(l)
    def label(self, n):
        self.lines.append(n + ":")
    def c(self, s):
        self.lines.append("; " + s)
    def text(self):
        out = []
        for l in self.lines:
            if l.endswith(":") or l.startswith(";") or l.startswith("."):
                out.append(l)
            else:
                out.append("    " + l)
        return "\n".join(out) + "\n"

def vr(a, n=1):
    return f"v{a}" if n == 1 else f"v[{a}:{a+n-1}]"
def sr(a, n=1):
    return f"s{a}" if n == 1 else f"s[{a}:{a+n-1}]"

REG_RE = re.compile(r"^(v|s|a)(\d+)$|^(v|s|a)\[(\d+):(\d+)\]$")
def regs(tok):
    tok = tok.strip()
    if tok.startswith("-"): tok = tok[1:]
    if tok.startswith("abs(") or tok.startswith("|"):
        tok = tok.strip("|").replace("abs(", "").rstrip(")")
    m = REG_RE.match(tok)
    if m:
        if m.group(1):
            return {(m.group(1), int(m.group(2)))}
        return {(m.group(3), i) for i in range(int(m.group(4)), int(m.group(5)) + 1)}
    if tok == "vcc": return {("s", "vcc")}
    if tok == "exec": return {("s", "exec")}
    if tok == "m0": return {("s", "m0")}
    if tok in ("vcc_lo", "vcc_hi"): return {("s", "vcc")}
    if tok in ("exec_lo", "exec_hi"): return {("s", "exec")}
    return set()

TRANS = ("v_exp_f32", "v_log_f32", "v_rcp_f32", "v_rsq_f32", "v_sqrt_f32", "v_sin_f32", "v_cos_f32", "v_exp_f16")

class Ins:
    def __init__(self, text, idx):
        self.text = text; self.idx = idx
        t = text.split(";")[0].strip()
        parts = t.split(None, 1)
        self.op = parts[0]
        rest = parts[1] if len(parts) > 1 else ""
        ops = []; cur = ""; depth = 0
        for ch in rest:
            if ch in "[(": depth += 1
            if ch in "])": depth -= 1
            if ch == "," and depth == 0:
                ops.append(cur.strip()); cur = ""
            else:
                cur += ch
        if cur.strip(): ops.append(cur.strip())
        self.mods = ""
        if ops:
            last = ops[-1].split(None, 1)
            if len(last) > 1 and not ops[-1].startswith("hwreg") and not self.op.startswith("s_waitcnt"):
                ops[-1] = last[0]; self.mods = last[1]
        self.ops = ops
        self.classify()
    def classify(self):
        op = self.op; o = self.ops
        self.w = set(); self.r = set()
        self.kind = "other"
        self.states = 1
        R = lambda i: regs(o[i]) if i < len(o) else set()
        if op == "s_nop":
            self.kind = "nop"; self.states = int(o[0], 0) + 1
        elif op.startswith("v_mfma"):
            self.kind = "mfma"; self.w = R(0); self.a = R(1); self.b = R(2); self.cc = R(3); self.r = self.a | self.b | self.cc
            self.passes = 8 if "32x32" in op else 4
        elif op.startswith("v_"):
            self.kind = "valu"
            base = op.replace("_e32", "").replace("_e64", "").replace("_dpp", "").replace("_sdwa", "")
            self.base = base
            self.trans = base in TRANS
            if op.startswith("v_cmp"):
                self.w = R(0); self.r = R(1) | R(2)
            elif base in ("v_readfirstlane_b32", "v_readlane_b32"):
                self.w = R(0); self.r = R(1) | R(2)
            elif base.startswith("v_permlane32_swap") or base.startswith("v_permlane16_swap"):
                self.w = R(0) | R(1); self.r = R(0) | R(1)
            elif base in ("v_add_co_u32", "v_sub_co_u32", "v_addc_co_u32", "v_subb_co_u32"):
                self.w = R(0) | R(1); self.r = set().union(*[R(i) for i in range(2, len(o))])
            else:
                self.w = R(0); self.r = set().union(*[R(i) for i in range(1, len(o))]) if len(o) > 1 else set()
                if base in ("v_fmac_f32", "v_dot2c_f32_bf16", "v_pk_fmac_f16") or "_dpp" in op or "_sdwa" in op or base == "v_writelane_b32":
                    self.r |= R(0)
                if base == "v_cndmask_b32" and len(o) == 3:
                    self.r |= {("s", "vcc")}
            self.r |= {("s", "exec")}
            self.dot = base.startswith("v_dot2")
            self.dpp = "_dpp" in op or "row_" in self.mods or "quad_perm" in self.mods
        elif op.startswith("ds_"):
            self.kind = "ds"
            if op.startswith("ds_read") or op.startswith("ds_bpermute") or op.startswith("ds_swizzle") or op.startswith("ds_permute"):
                self.w = R(0); self.r = set().union(*[R(i) for i in range(1, len(o))])
            else:
                self.r = set().union(*[R(i) for i in range(len(o))])
        elif op.startswith("buffer_") or op.startswith("global_"):
            self.kind = "vmem"
            self.lds = " lds" in (" " + self.mods) or op.startswith("global_load_lds")
            if op in ("buffer_wbl2", "buffer_inv"):
                pass
            elif op.startswith("buffer_load"):
                if self.lds:
                    self.r = R(0) | R(1) | R(2) | {("s", "m0")}
                else:
                    self.w = R(0); self.r = R(1) | R(2) | R(3)
            elif op.startswith("buffer_store") or op.startswith("buffer_atomic"):
                self.r = R(0) | R(1) | R(2) | R(3); self.data = R(0)
                if op.startswith("buffer_atomic") and "sc0" in self.mods: self.w = R(0)
            elif op.startswith("global_load"):
                self.w = R(0); self.r = R(1) | R(2)
            elif op.startswith("global_store") or op.startswith("global_atomic"):
                self.r = R(0) | R(1) | R(2); self.data = R(1)
            self.wide = ("x3" in op or "x4" in op) and "store" in op
        elif op.startswith("s_load") or op.startswith("s_memtime") or op.startswith("s_memrealtime") or op.startswith("s_buffer_load"):
            self.kind = "smem"; self.w = R(0); self.r = R(1)
        elif op.startswith("s_waitcnt"):
            self.kind = "wait"
            t = " ".join(o) + " " + self.mods
            m = re.search(r"vmcnt\((\d+)\)", t); self.vm = int(m.group(1)) if m else None
            m = re.search(r"lgkmcnt\((\d+)\)", t); self.lgkm = int(m.group(1)) if m else None
        elif op.startswith("s_cbranch") or op == "s_branch":
            self.kind = "branch"; self.target = o[0]
            if "vcc" in op: self.r = {("s", "vcc")}
            if "exec" in op: self.r = {("s", "exec")}
        elif op in ("s_barrier", "s_endpgm", "s_sleep", "s_setprio"):
            self.kind = "misc"
        elif op.startswith("s_cmp") or op.startswith("s_bitcmp"):
            self.kind = "salu"; self.r = R(0) | R(1)
        elif op.startswith("s_"):
            self.kind = "salu"; self.w = R(0); self.r = set().union(*[R(i) for i in range(1, len(o))]) if len(o) > 1 else set()
            if "saveexec" in op: self.w |= {("s", "exec")}; self.r |= {("s", "exec")}
            if op in ("s_addk_i32", "s_mulk_i32", "s_cmovk_i32"): self.r |= R(0)

def parse(lines):
    ins = []; labels = {}
    for l in lines:
        l0 = l.split(";")[0].strip()
        if not l0 or l0.startswith("."): continue
        if l0.endswith(":"):
            labels[l0[:-1]] = len(ins); continue
        ins.append(Ins(l0, len(ins)))
    return ins, labels

def isv(rs): return {r for r in rs if r[0] == "v"}
def iss(rs): return {r for r in rs if r[0] == "s"}

def need(p, c):
    n = 0
    if p.kind == "valu":
        pw = isv(p.w); ps = iss(p.w)
        if c.kind == "mfma" and pw & c.r: n = max(n, 2)
        if c.kind == "valu":
            if p.trans and not c.trans and (pw & c.r): n = max(n, 1)
            if c.base.startswith("v_permlane") and (pw & c.r): n = max(n, 2)
            if c.base in ("v_readfirstlane_b32", "v_readlane_b32") and (pw & c.r): n = max(n, 1)
            if c.dpp and (pw & c.r): n = max(n, 2)
            if ps & (c.r - {("s", "exec")}): n = max(n, 2)
            if p.dot:
                if pw & (c.r | c.w):
                    same = c.base == p.base
                    if same and c.base == "v_dot2c_f32_bf16":
                        ab = regs(c.ops[1]) | regs(c.ops[2])
                        if pw & ab: n = max(n, 3)
                    else:
                        n = max(n, 3)
        if c.kind == "vmem" and (ps & c.r): n = max(n, 5)
        if p.dot and c.kind in ("vmem", "ds", "mfma") and (pw & c.r): n = max(n, 3)
    if p.kind == "mfma":
        d = p.w
        big = {8: 12, 4: 8}[p.passes]
        if c.kind in ("valu",) and (d & (c.r | c.w)): n = max(n, big)
        if c.kind in ("vmem", "ds") and (d & (c.r | c.w)): n = max(n, big)
        if c.kind == "mfma":
            if d & (c.a | c.b): n = max(n, big)
            if d & c.cc:
                if not (c.cc == d and c.passes == p.passes): n = max(n, {8: 10, 4: 6}[p.passes])
            if (d & c.w) and not (c.cc == d):
                n = max(n, 0)
        if c.kind == "valu" and (p.cc & c.w): n = max(n, {8: 7, 4: 3}[p.passes])
    if p.kind == "salu" and ("s", "m0") in p.w and c.kind == "vmem" and getattr(c, "lds", False): n = max(n, 1)
    if p.kind == "vmem" and getattr(p, "wide", False):
        if c.kind == "valu" and (p.data & c.w): n = max(n, 2)
        elif (p.data & c.w): n = max(n, 1)
    return n

def check_window(seq, errs):
    for i, c in enumerate(seq):
        dist = 0
        for j in range(i - 1, max(-1, i - 24), -1):
            p = seq[j]
            n = need(p, c)
            if n > dist:
                errs.add(f"HAZARD need {n} have {dist}: [{p.idx}] {p.text}  ->  [{c.idx}] {c.text}")
            dist += p.states
            if dist >= 13: break

def check_hazards(lines):
    ins, labels = parse(lines)
    errs = set()
    check_window(ins, errs)
    for k, b in enumerate(ins):
        if b.kind == "branch" and b.target in labels:
            t = labels[b.target]
            seq = ins[max(0, k - 16):k + 1] + ins[t:t + 16]
            check_window(seq, errs)
    return sorted(errs)

def check_waits(lines, maxloops=2, take=()):
    ins, labels = parse(lines)
    errs = set()
    vm = []; lg = []
    taken = {}
    pc = 0; steps = 0
    while pc < len(ins) and steps < 200000:
        steps += 1
        c = ins[pc]
        if c.kind == "wait":
            if c.vm is not None:
                while len(vm) > c.vm: vm.pop(0)
            if c.lgkm is not None:
                if any(e[1].kind == "smem" for e in lg) and c.lgkm != 0:
                    errs.add(f"WAIT counted lgkmcnt with SMEM outstanding: [{c.idx}] {c.text}")
                while len(lg) > c.lgkm: lg.pop(0)
        else:
            touched = c.r | c.w
            for q, nm in ((vm, "vm"), (lg, "lgkm")):
                for (d, p) in q:
                    if d & touched and p is not c:
                        errs.add(f"WAIT {nm} pending: [{p.idx}] {p.text}  touched by [{c.idx}] {c.text}")
            if c.kind == "vmem":
                vm.append((set(c.w), c))
                if len(vm) > 63: errs.add(f"vmcnt overflow at [{c.idx}] {c.text}")
            elif c.kind == "ds":
                lg.append((set(c.w), c))
                if len(lg) > 15: errs.add(f"lgkmcnt overflow at [{c.idx}] {c.text}")
            elif c.kind == "smem":
                lg.append((set(c.w), c))
            if c.kind == "branch" and c.target in labels:
                t = labels[c.target]
                if t <= pc:
                    if taken.get(pc, 0) < maxloops - 1:
                        taken[pc] = taken.get(pc, 0) + 1
                        pc = t; continue
                elif c.op == "s_branch" or c.target in take:
                    pc = t; continue
            if c.op == "s_endpgm":
                break
        pc += 1
    return sorted(errs)
```

```python
from asmlib import *
import gen as G
from gen import *

T_W1 = 0
T_WO = 98304
T_RX = 98304
T_MISC = 98304 + 49152
T_CS1 = T_MISC
T_HST = 0
V_H = 240
V_XR = 12
V_W2 = 152
WS_HST = 0xE80000

S_RB, S_CB, S_RB2, S_T0F = 100, 101, 3, 51

def tr_addr(a, dst, base, t1, t2):
    L = V_LANE
    a(f"v_lshrrev_b32 v{t1}, 5, v{L}")
    a(f"v_bfe_u32 v{t2}, v{L}, 2, 2")
    a(f"v_lshl_add_u32 v{t1}, v{t1}, 2, v{t2}")
    a(f"v_lshlrev_b32 v{dst}, 6, v{t1}")
    a(f"v_bfe_u32 v{t2}, v{L}, 4, 1")
    a(f"v_lshl_add_u32 v{dst}, v{t2}, 5, v{dst}")
    a(f"v_and_b32 v{t2}, 3, v{L}")
    a(f"v_lshl_add_u32 v{dst}, v{t2}, 3, v{dst}")
    if base: a(f"v_add_u32 v{dst}, {base}, v{dst}")

def wtile_voff(a, dst, stride, t1):
    L = V_LANE
    a(f"v_lshrrev_b32 v{t1}, 2, v{L}")
    a(f"v_mul_u32_u24 v{dst}, {stride}, v{t1}")
    a(f"v_and_b32 v{t1}, 3, v{L}")
    a(f"v_lshl_add_u32 v{dst}, v{t1}, 4, v{dst}")

def barrier_team(a, cfg, bidx, nflags, first_s, uniq, stampidx=None):
    T = S_A
    a(f"s_cmp_lg_u32 s{S_W}, 0")
    a(f"s_cbranch_scc1 L_tb_{uniq}")
    a(f"s_lshl_b32 s{T+4}, s{S_J}, 7")
    a(f"s_add_u32 s{T+4}, s{T+4}, {WS_TFLAG + bidx*1024}")
    a(f"s_lshl_b32 s{T+5}, s{S_H}, 2")
    a(f"s_add_u32 s{T+5}, s{T+5}, s{T+4}")
    team_flag(a, cfg, T+5, uniq)
    if first_s is not None:
        a(f"s_lshl_b32 s{T+5}, s{first_s}, 2")
        a(f"s_add_u32 s{T+4}, s{T+4}, s{T+5}")
    a(f"v_and_b32 v2, {nflags-1}, v{V_LANE}")
    a("v_lshlrev_b32 v2, 2, v2")
    poll(a, 2, 3, T+4, uniq)
    a.label(f"L_tb_{uniq}")

def mode_store(a, instr_fmt, uniq):
    a(f"s_cmp_eq_u32 s{S_FAST}, 0")
    a(f"s_cbranch_scc1 L_ms_{uniq}_s")
    for i in instr_fmt: a(i.format(sc=""))
    a(f"s_branch L_ms_{uniq}_d")
    a.label(f"L_ms_{uniq}_s")
    for i in instr_fmt: a(i.format(sc="sc1"))
    a.label(f"L_ms_{uniq}_d")

def reduce4(a, acc, uniq, wsrc_slot):
    pass

def tail(a, cfg):
    L = V_LANE
    T = S_A
    WS = f"s[{S_WS}:{S_WS+3}]"
    a(f"s_lshr_b32 s{S_RB}, s{S_H}, 3")
    a(f"s_and_b32 s{S_CB}, s{S_H}, 7")
    a(f"s_lshr_b32 s{S_RB2}, s{S_H}, 4")
    a(f"s_and_b32 s{T+4}, s{S_H}, 15")
    a(f"s_mul_i32 s{T+4}, s{T+4}, {8*21846}")
    a(f"s_lshr_b32 s{S_T0F}, s{T+4}, 16")
    a(f"s_lshl_b32 s{T+4}, s{S_J}, 3")
    a(f"s_add_u32 s{T+4}, s{T+4}, s{S_W}")
    a(f"s_lshl_b32 s{T+4}, s{T+4}, 5")
    a(f"s_add_u32 s{T+4}, s{T+4}, s{S_H}")
    a(f"s_lshl_b32 s{T+4}, s{T+4}, 10")
    a(f"s_add_u32 s{T+4}, s{T+4}, {WS_OF}")
    mode_store(a, [f"buffer_store_dwordx4 v[4:7], v{V_L16}, {WS}, s{T+4} offen {{sc}}"], "o")
    FT, TT, HF = T+11, T+12, T+13
    a(f"s_lshr_b32 s{FT}, s{S_W}, 2")
    a(f"s_bfe_u32 s{TT}, s{S_W}, 0x10001")
    a(f"s_and_b32 s{HF}, s{S_W}, 1")
    COL = T+14
    a(f"s_lshl_b32 s{COL}, s{S_CB}, 6")
    a(f"s_lshl_b32 s{T+5}, s{FT}, 5")
    a(f"s_add_u32 s{COL}, s{COL}, s{T+5}")
    a(f"s_lshl_b32 s{T+5}, s{HF}, 4")
    a(f"s_add_u32 s{COL}, s{COL}, s{T+5}")
    ROW = T+15
    a(f"s_lshl_b32 s{ROW}, s{S_J}, 8")
    a(f"s_lshl_b32 s{T+5}, s{S_RB}, 6")
    a(f"s_add_u32 s{ROW}, s{ROW}, s{T+5}")
    a(f"s_lshl_b32 s{T+5}, s{TT}, 5")
    a(f"s_add_u32 s{ROW}, s{ROW}, s{T+5}")
    a(f"v_and_b32 v8, 31, v{L}")
    a(f"v_lshlrev_b32 v8, 10, v8")
    a(f"v_lshrrev_b32 v9, 5, v{L}")
    a(f"v_lshlrev_b32 v9, 3, v9")
    a(f"v_add_u32 v8, v8, v9")
    a(f"s_lshl_b32 s{T+5}, s{ROW}, 10")
    a(f"s_lshl_b32 s{T+6}, s{COL}, 1")
    a(f"s_add_u32 s{T+5}, s{T+5}, s{T+6}")
    XO = T+16
    a(f"s_mov_b32 s{XO}, s{T+5}")
    a(f"buffer_load_dwordx2 v[{V_XR}:{V_XR+1}], v8, s[{S_X}:{S_X+3}], s{T+5} offen")
    a(f"buffer_load_dwordx2 v[{V_XR+2}:{V_XR+3}], v8, s[{S_X}:{S_X+3}], s{T+5} offen offset:16")
    a(f"buffer_load_dwordx2 v[{V_B2}:{V_B2+1}], v9, s[{S_B2}:{S_B2+3}], s{T+6} offen")
    a(f"buffer_load_dwordx2 v[{V_B2+2}:{V_B2+3}], v9, s[{S_B2}:{S_B2+3}], s{T+6} offen offset:16")
    stamp(a, cfg, 15)
    a("s_barrier")
    wtile_voff(a, 10, 1024, 11)
    a(f"s_lshl_b32 s{T+5}, s{S_W}, 16")
    a(f"s_lshl_b32 s{T+6}, s{S_CB}, 7")
    a(f"s_add_u32 s{T+5}, s{T+5}, s{T+6}")
    a(f"s_lshl_b32 s{T+6}, s{S_W}, 12")
    for ft in range(2):
        for i in range(4):
            a(f"s_add_u32 m0, s{T+6}, {T_WO + ft*32768 + i*1024}")
            a(f"s_add_u32 s{T+7}, s{T+5}, {i*16*1024 + ft*64}")
            a(f"buffer_load_dwordx4 v10, s[{S_WO}:{S_WO+3}], s{T+7} offen lds")
    a("s_waitcnt vmcnt(12)")
    a("s_barrier")
    barrier_team(a, cfg, 2, 32, None, "o")
    a("s_waitcnt vmcnt(0)")
    a("s_barrier")
    stamp(a, cfg, 16)
    KQ = T+17
    a(f"s_lshl_b32 s{KQ}, s{FT}, 1")
    a(f"s_add_u32 s{KQ}, s{KQ}, s{HF}")
    a(f"s_lshl_b32 s{T+5}, s{S_J}, 3")
    a(f"s_lshl_b32 s{T+6}, s{S_RB}, 1")
    a(f"s_add_u32 s{T+5}, s{T+5}, s{T+6}")
    a(f"s_add_u32 s{T+5}, s{T+5}, s{TT}")
    a(f"s_lshl_b32 s{T+5}, s{T+5}, 5")
    a(f"s_lshl_b32 s{T+6}, s{KQ}, 3")
    a(f"s_add_u32 s{T+5}, s{T+5}, s{T+6}")
    a(f"s_lshl_b32 s{T+5}, s{T+5}, 10")
    a(f"s_add_u32 s{T+5}, s{T+5}, {WS_OF}")
    for ks in range(8):
        if ks == 4: a(f"s_add_u32 s{T+5}, s{T+5}, 4096")
        a(f"buffer_load_dwordx4 v[{16+4*ks}:{19+4*ks}], v{V_L16}, {WS}, s{T+5} offen offset:{(ks%4)*1024} sc1")
    wtile_voff(a, 10, 2752, 11)
    a(f"s_mul_i32 s{T+5}, s{S_W}, {64*2752}")
    a(f"s_lshl_b32 s{T+6}, s{S_T0F}, 6")
    a(f"s_add_u32 s{T+5}, s{T+5}, s{T+6}")
    a(f"s_lshl_b32 s{T+6}, s{S_W}, 12")
    for ft in range(3):
        for i in range(4):
            a(f"s_add_u32 m0, s{T+6}, {T_W1 + ft*32768 + i*1024}")
            a(f"s_add_u32 s{T+7}, s{T+5}, {i*16*2752 + ft*64}")
            a(f"buffer_load_dwordx4 v10, s[{S_W1}:{S_W1+3}], s{T+7} offen lds")
    tr_addr(a, 10, T_WO, 11, 9)
    a(f"s_lshl_b32 s{T+5}, s{KQ}, 13")
    a(f"v_add_u32 v10, s{T+5}, v10")
    a(f"v_add_u32 v11, 32768, v10")
    for r in range(48, 80): a(f"v_mov_b32 v{r}, 0")
    def wo_reads(ks):
        b = 80 + 8 * (ks % 2)
        for ft in range(2):
            a(f"ds_read_b64_tr_b16 v[{b+4*ft}:{b+4*ft+1}], v{10+ft} offset:{ks*1024}")
            a(f"ds_read_b64_tr_b16 v[{b+4*ft+2}:{b+4*ft+3}], v{10+ft} offset:{ks*1024+512}")
    wo_reads(0)
    for ks in range(8):
        if ks < 7: wo_reads(ks + 1)
        a(f"s_waitcnt vmcnt({12 + 7 - ks}) lgkmcnt({4 if ks < 7 else 0})")
        b = 80 + 8 * (ks % 2)
        for ft in range(2):
            a(f"v_mfma_f32_32x32x16_bf16 v[{48+16*ft}:{63+16*ft}], v[{b+4*ft}:{b+4*ft+3}], v[{16+4*ks}:{19+4*ks}], v[{48+16*ft}:{63+16*ft}]")
    stamp(a, cfg, 17)
    def red_write(acc, dest_of, src_s):
        pass
    a(f"s_lshl_b32 s{T+5}, s{TT}, 1")
    a(f"s_lshl_b32 s{T+5}, s{T+5}, 13")
    a(f"s_lshl_b32 s{T+6}, s{KQ}, 11")
    a(f"s_add_u32 s{T+5}, s{T+5}, s{T+6}")
    a(f"s_add_u32 s{T+5}, s{T+5}, {T_RX}")
    a(f"v_add_u32 v8, s{T+5}, v{V_L16}")
    a("s_nop 7")
    a("s_barrier")
    for ftp in range(2):
        for hp in range(2):
            off = (4*ftp + hp) * 8192
            r = 48 + 16*ftp + 8*hp
            a(f"ds_write_b128 v8, v[{r}:{r+3}] offset:{off}")
            a(f"ds_write_b128 v8, v[{r+4}:{r+7}] offset:{off+1024}")
    a(f"s_lshl_b32 s{T+5}, s{S_W}, 13")
    a(f"s_add_u32 s{T+5}, s{T+5}, {T_RX}")
    a(f"v_add_u32 v9, s{T+5}, v{V_L16}")
    a("s_waitcnt lgkmcnt(0)")
    a("s_barrier")
    for q in range(4):
        a(f"ds_read_b128 v[{16+8*q}:{19+8*q}], v9 offset:{q*2048}")
        a(f"ds_read_b128 v[{20+8*q}:{23+8*q}], v9 offset:{q*2048+1024}")
    a("s_waitcnt lgkmcnt(0)")
    for i in range(8):
        a(f"v_add_f32 v{16+i}, v{16+i}, v{24+i}")
        a(f"v_add_f32 v{32+i}, v{32+i}, v{40+i}")
    for i in range(8):
        a(f"v_add_f32 v{16+i}, v{16+i}, v{32+i}")
    for n in range(4):
        a(f"v_lshlrev_b32 v{24+2*n}, 16, v{V_XR+n}")
        a(f"v_and_b32 v{25+2*n}, 0xffff0000, v{V_XR+n}")
    for i in range(8):
        a(f"v_add_f32 v{V_H+i}, v{16+i}, v{24+i}")
    for n in range(4):
        a(f"v_cvt_pk_bf16_f32 v{32+n}, v{V_H+2*n}, v{V_H+2*n+1}")
    for n in range(4):
        a(f"v_lshlrev_b32 v{24+2*n}, 16, v{32+n}")
        a(f"v_and_b32 v{25+2*n}, 0xffff0000, v{32+n}")
    a("v_add_f32 v40, v24, v25")
    a("v_mul_f32 v41, v24, v24")
    a("v_fmac_f32 v41, v25, v25")
    for i in range(2, 8):
        a(f"v_add_f32 v40, v40, v{24+i}")
        a(f"v_fmac_f32 v41, v{24+i}, v{24+i}")
    a(f"s_lshr_b32 s{T+5}, s{ROW}, 5")
    a(f"s_lshl_b32 s{T+6}, s{T+5}, 5")
    a(f"s_lshr_b32 s{T+7}, s{COL}, 4")
    a(f"s_add_u32 s{T+6}, s{T+6}, s{T+7}")
    a(f"s_lshl_b32 s{T+6}, s{T+6}, 10")
    a(f"s_add_u32 s{T+6}, s{T+6}, {WS_HF}")
    a("v_mov_b32 v42, v40")
    a("v_mov_b32 v43, v41")
    mode_store(a, [f"buffer_store_dwordx4 v[32:35], v{V_L16}, {WS}, s{T+6} offen {{sc}}"], "h")
    a("v_permlane32_swap_b32 v40, v42")
    a("v_permlane32_swap_b32 v41, v43")
    a(f"s_lshl_b32 s{T+6}, s{T+5}, 5")
    a(f"s_add_u32 s{T+6}, s{T+6}, s{T+7}")
    a(f"s_lshl_b32 s{T+6}, s{T+6}, 8")
    a(f"s_add_u32 s{T+6}, s{T+6}, {WS_HST}")
    a("v_add_f32 v40, v40, v42")
    a("v_add_f32 v41, v41, v43")
    a(f"v_and_b32 v8, 31, v{L}")
    a("v_lshlrev_b32 v8, 3, v8")
    a("s_mov_b64 exec, 0xffffffff")
    mode_store(a, [f"buffer_store_dwordx2 v[40:41], v8, {WS}, s{T+6} offen {{sc}}"], "hs")
    a("s_mov_b64 exec, -1")
    a("s_waitcnt vmcnt(0)")
    a("s_barrier")
    stamp(a, cfg, 18)
    a(f"s_lshl_b32 s{T+8}, s{S_RB2}, 4")
    barrier_team(a, cfg, 3, 16, T+8, "h")
    tr_addr(a, 10, T_W1, 11, 9)
    a(f"s_lshl_b32 s{T+5}, s{S_W}, 12")
    a(f"v_add_u32 v10, s{T+5}, v10")
    a("v_mov_b32 v18, 0x3f803f80")
    for ft in range(3):
        a(f"v_mov_b32 v{20+ft}, 0")
    for ft in range(3):
        if ft: a(f"v_add_u32 v10, 32768, v10")
        for ks in range(4):
            a(f"ds_read_b64_tr_b16 v[{24+4*ks}:{25+4*ks}], v10 offset:{ks*1024}")
            a(f"ds_read_b64_tr_b16 v[{26+4*ks}:{27+4*ks}], v10 offset:{ks*1024+512}")
        a("s_waitcnt lgkmcnt(0)")
        for r in range(16):
            a(f"v_dot2c_f32_bf16 v{20+ft}, v{24+r}, v18")
    a("s_nop 2")
    for ft in range(3):
        a(f"v_mov_b32 v{24+ft}, v{20+ft}")
    a("s_nop 1")
    for ft in range(3):
        a(f"v_permlane32_swap_b32 v{20+ft}, v{24+ft}")
    a(f"s_mul_i32 s{T+5}, s{S_W}, 384")
    a(f"s_add_u32 s{T+5}, s{T+5}, {T_CS1}")
    a(f"v_and_b32 v8, 31, v{L}")
    a("v_lshlrev_b32 v8, 2, v8")
    a(f"v_add_u32 v8, s{T+5}, v8")
    for ft in range(3):
        a(f"v_add_f32 v{20+ft}, v{20+ft}, v{24+ft}")
    for ft in range(3):
        a(f"ds_write_b32 v8, v{20+ft} offset:{ft*128}")
    a("s_waitcnt lgkmcnt(0)")
    a("s_barrier")
    stamp(a, cfg, 19)
    TT4, KH = T+11, T+12
    a(f"s_lshr_b32 s{TT4}, s{S_W}, 1")
    a(f"s_and_b32 s{KH}, s{S_W}, 1")
    TILE = T+13
    a(f"s_lshl_b32 s{TILE}, s{S_J}, 3")
    a(f"s_lshl_b32 s{T+5}, s{S_RB2}, 2")
    a(f"s_add_u32 s{TILE}, s{TILE}, s{T+5}")
    a(f"s_add_u32 s{TILE}, s{TILE}, s{TT4}")
    a(f"s_lshl_b32 s{T+5}, s{TILE}, 5")
    a(f"s_lshl_b32 s{T+6}, s{KH}, 4")
    a(f"s_add_u32 s{T+5}, s{T+5}, s{T+6}")
    a(f"s_lshl_b32 s{T+5}, s{T+5}, 10")
    a(f"s_add_u32 s{T+5}, s{T+5}, {WS_HF}")
    for ks in range(16):
        if ks and ks % 4 == 0: a(f"s_add_u32 s{T+5}, s{T+5}, 4096")
        a(f"buffer_load_dwordx4 v[{16+4*ks}:{19+4*ks}], v{V_L16}, {WS}, s{T+5} offen offset:{(ks%4)*1024} sc1")
    a(f"s_lshl_b32 s{T+5}, s{TILE}, 13")
    a(f"s_add_u32 s{T+5}, s{T+5}, {WS_HST}")
    a(f"v_and_b32 v8, 31, v{L}")
    a("v_lshlrev_b32 v8, 3, v8")
    a(f"v_lshrrev_b32 v9, 5, v{L}")
    a("v_lshl_add_u32 v8, v9, 12, v8")
    for q in range(16):
        a(f"buffer_load_dwordx2 v[{128+2*q}:{129+2*q}], v8, {WS}, s{T+5} offen offset:{q*256} sc1")
    tr_addr(a, 10, T_W1, 11, 9)
    a(f"s_lshl_b32 s{T+5}, s{KH}, 14")
    a(f"v_add_u32 v10, s{T+5}, v10")
    a("v_add_u32 v11, 32768, v10")
    a("v_add_u32 v9, 0x10000, v10")
    WA = [10, 11, 9]
    for r in range(80, 128): a(f"v_mov_b32 v{r}, 0")
    W1B = [160 - 160 + 128 + 32, 128 + 32 + 12]
    def w1_reads(ks):
        b = W1B[ks % 2]
        for ft in range(3):
            a(f"ds_read_b64_tr_b16 v[{b+4*ft}:{b+4*ft+1}], v{WA[ft]} offset:{ks*1024}")
            a(f"ds_read_b64_tr_b16 v[{b+4*ft+2}:{b+4*ft+3}], v{WA[ft]} offset:{ks*1024+512}")
    w1_reads(0)
    for ks in range(16):
        if ks < 15: w1_reads(ks + 1)
        a(f"s_waitcnt vmcnt({16 + 15 - ks}) lgkmcnt({6 if ks < 15 else 0})")
        b = W1B[ks % 2]
        for ft in range(3):
            a(f"v_mfma_f32_32x32x16_bf16 v[{80+16*ft}:{95+16*ft}], v[{b+4*ft}:{b+4*ft+3}], v[{16+4*ks}:{19+4*ks}], v[{80+16*ft}:{95+16*ft}]")
    stamp(a, cfg, 20)
    a("s_waitcnt vmcnt(0)")
    for q in range(1, 16):
        a(f"v_add_f32 v128, v128, v{128+2*q}")
        a(f"v_add_f32 v129, v129, v{129+2*q}")
    a("v_mov_b32 v130, v128")
    a("v_mov_b32 v131, v129")
    a(f"s_mul_i32 s{T+5}, s{KH}, 48")
    a(f"s_lshl_b32 s{T+6}, s{S_T0F}, 5")
    a(f"s_add_u32 s{T+5}, s{T+5}, s{T+6}")
    F0 = T+14
    a(f"s_mov_b32 s{F0}, s{T+5}")
    a(f"s_lshl_b32 s{T+5}, s{T+5}, 1")
    a(f"v_lshrrev_b32 v9, 5, v{L}")
    a("v_lshlrev_b32 v9, 3, v9")
    for n in range(3):
        a(f"buffer_load_dwordx2 v[{140+4*n}:{141+4*n}], v9, s[{S_B1}:{S_B1+3}], s{T+5} offen offset:{n*32}")
        a(f"buffer_load_dwordx2 v[{142+4*n}:{143+4*n}], v9, s[{S_B1}:{S_B1+3}], s{T+5} offen offset:{n*32+16}")
    a("v_permlane32_swap_b32 v128, v130")
    a("v_permlane32_swap_b32 v129, v131")
    a(f"s_mul_i32 s{T+5}, s{S_W}, 6144")
    a(f"s_add_u32 s{T+5}, s{T+5}, {T_RX}")
    a(f"v_add_u32 v8, s{T+5}, v{V_L16}")
    a(f"s_xor_b32 s{T+6}, s{S_W}, 1")
    a(f"s_mul_i32 s{T+6}, s{T+6}, 6144")
    a(f"s_add_u32 s{T+6}, s{T+6}, {T_RX}")
    a(f"v_add_u32 v10, s{T+6}, v{V_L16}")
    a("v_add_f32 v128, v128, v130")
    a("v_add_f32 v129, v129, v131")
    a("v_mul_f32 v128, 0x3b000000, v128")
    a("v_mul_f32 v129, 0x3b000000, v129")
    a("v_fma_f32 v129, -v128, v128, v129")
    a("v_add_f32 v129, 0x3727c5ac, v129")
    a("v_rsq_f32 v129, v129")
    a(f"s_cmp_eq_u32 s{KH}, 0")
    a("s_cbranch_scc0 L_f1_k1")
    for kh in range(2):
        if kh == 1: a.label("L_f1_k1")
        send = 80 + (24 if kh == 0 else 0)
        keep = 80 + (0 if kh == 0 else 24)
        for n in range(6):
            a(f"ds_write_b128 v8, v[{send+4*n}:{send+4*n+3}] offset:{n*1024}")
        a("s_waitcnt lgkmcnt(0)")
        a("s_barrier")
        for n in range(6):
            a(f"ds_read_b128 v[{16+4*n}:{19+4*n}], v10 offset:{n*1024}")
        a(f"v_lshrrev_b32 v11, 5, v{L}")
        a("v_lshlrev_b32 v11, 4, v11")
        a(f"v_add_u32 v11, {T_CS1 + kh*192}, v11")
        a("s_waitcnt lgkmcnt(0)")
        for i in range(24):
            a(f"v_add_f32 v{keep+i}, v{keep+i}, v{16+i}")
        for w in range(8):
            dst = 16 if w == 0 else 40
            for n in range(3):
                for jp in range(2):
                    a(f"ds_read_b128 v[{dst+8*n+4*jp}:{dst+8*n+4*jp+3}], v11 offset:{w*384 + n*64 + jp*32}")
            if w:
                a("s_waitcnt lgkmcnt(0)")
                for i in range(24): a(f"v_add_f32 v{16+i}, v{16+i}, v{40+i}")
        a("s_waitcnt vmcnt(0)")
        for n in range(3):
            for q in range(4):
                a(f"v_lshlrev_b32 v{40+8*n+2*q}, 16, v{140+4*n+q}")
                a(f"v_and_b32 v{41+8*n+2*q}, 0xffff0000, v{140+4*n+q}")
        for i in range(24):
            a(f"v_fma_f32 v{keep+i}, -v128, v{16+i}, v{keep+i}")
        for i in range(24):
            a(f"v_fma_f32 v{keep+i}, v{keep+i}, v129, v{40+i}")
        for i in range(24):
            a(f"v_max_f32 v{keep+i}, 0, v{keep+i}")
        for i in range(24):
            a(f"v_mul_f32 v{keep+i}, v{keep+i}, v{keep+i}")
        for n in range(12):
            a(f"v_cvt_pk_bf16_f32 v{16+n}, v{keep+2*n}, v{keep+2*n+1}")
        if kh == 0: a("s_branch L_f1_j")
    a.label("L_f1_j")
    a(f"s_mul_i32 s{T+5}, s{TILE}, 86")
    a(f"s_lshr_b32 s{T+6}, s{F0}, 4")
    a(f"s_add_u32 s{T+5}, s{T+5}, s{T+6}")
    a(f"s_lshl_b32 s{T+5}, s{T+5}, 10")
    a(f"s_add_u32 s{T+5}, s{T+5}, {WS_GF}")
    mode_store(a, [f"buffer_store_dwordx4 v[{16+4*n}:{19+4*n}], v{V_L16}, {WS}, s{T+5} offen offset:{n*1024} {{sc}}" for n in range(3)], "g")
    a("s_waitcnt vmcnt(0)")
    a("s_barrier")
    stamp(a, cfg, 21)
    a(f"s_lshl_b32 s{T+8}, s{S_RB2}, 4")
    barrier_team(a, cfg, 1 + 3 - 3 + 0 if False else 0, 16, T+8, "g") if False else None
    ffn2(a, cfg)

def ffn2(a, cfg):
    L = V_LANE
    T = S_A
    WS = f"s[{S_WS}:{S_WS+3}]"
    FT, KQ = T+11, T+12
    a(f"s_lshr_b32 s{FT}, s{S_W}, 2")
    a(f"s_and_b32 s{KQ}, s{S_W}, 3")
    wtile_voff(a, 10, 1024, 11)
    a(f"s_mul_i32 s{T+5}, s{KQ}, {22*16*1024}")
    a(f"s_lshl_b32 s{T+6}, s{S_CB}, 7")
    a(f"s_add_u32 s{T+5}, s{T+5}, s{T+6}")
    a(f"s_lshl_b32 s{T+6}, s{FT}, 6")
    a(f"s_add_u32 s{T+5}, s{T+5}, s{T+6}")
    a(f"s_mul_i32 s{T+6}, s{S_W}, 11264")
    tr_addr(a, 9, 0, 11, 8)
    a(f"v_add_u32 v9, s{T+6}, v9")
    def w2_dma(r):
        for i in range(11):
            a(f"s_add_u32 m0, s{T+6}, {i*1024}")
            a(f"s_add_u32 s{T+7}, s{T+5}, {(r*11+i)*16*1024}")
            a(f"buffer_load_dwordx4 v10, s[{S_W2}:{S_W2+3}], s{T+7} offen lds")
    def w2_read(r):
        for i in range(11):
            d = V_W2 + 4*(r*11+i)
            if i in (6,): a("s_waitcnt lgkmcnt(4)")
            a(f"ds_read_b64_tr_b16 v[{d}:{d+1}], v9 offset:{i*1024}")
            a(f"ds_read_b64_tr_b16 v[{d+2}:{d+3}], v9 offset:{i*1024+512}")
        a("s_waitcnt lgkmcnt(0)")
    w2_dma(0)
    a(f"s_lshl_b32 s{T+8}, s{S_RB2}, 4")
    a(f"s_mov_b32 s{T+9}, s{T+5}")
    a(f"s_mov_b32 s{T+10}, s{T+6}")
    barrier_team(a, cfg, 4 if False else 0, 16, T+8, "g") if False else None
    T5, T6 = T+9, T+10
    gbar(a, cfg)
    a(f"s_mov_b32 s{T+5}, s{T5}")
    a(f"s_mov_b32 s{T+6}, s{T6}")
    a("s_waitcnt vmcnt(0)")
    w2_read(0)
    w2_dma(1)
    a("s_waitcnt vmcnt(0)")
    w2_read(1)
    a("s_barrier")
    stamp(a, cfg, 22)
    TILE0 = T+13
    a(f"s_lshl_b32 s{TILE0}, s{S_J}, 3")
    a(f"s_lshl_b32 s{T+5}, s{S_RB}, 1")
    a(f"s_add_u32 s{TILE0}, s{TILE0}, s{T+5}")
    a(f"s_add_u32 s{T+5}, s{TILE0}, s{FT}")
    a(f"s_mul_i32 s{T+5}, s{T+5}, 86")
    a(f"s_mul_i32 s{T+6}, s{KQ}, 22")
    a(f"s_add_u32 s{T+5}, s{T+5}, s{T+6}")
    a(f"s_lshl_b32 s{T+5}, s{T+5}, 10")
    a(f"s_add_u32 s{T+5}, s{T+5}, {WS_GF}")
    a(f"s_mul_i32 s{T+6}, s{KQ}, 40960")
    a(f"s_lshl_b32 s{T+7}, s{FT}, 10")
    a(f"s_add_u32 s{T+6}, s{T+6}, s{T+7}")
    for ks in range(20):
        a(f"s_add_u32 m0, s{T+6}, {ks*2048}")
        a(f"s_add_u32 s{T+7}, s{T+5}, {ks*1024}")
        a(f"buffer_load_dwordx4 v{V_L16}, {WS}, s{T+7} offen sc1 lds")
    a(f"s_mul_i32 s{T+5}, s{TILE0}, 86")
    a(f"s_mul_i32 s{T+7}, s{KQ}, 22")
    a(f"s_add_u32 s{T+5}, s{T+5}, s{T+7}")
    a(f"s_add_u32 s{T+5}, s{T+5}, 20")
    a(f"s_lshl_b32 s{T+5}, s{T+5}, 10")
    a(f"s_add_u32 s{T+5}, s{T+5}, {WS_GF}")
    a(f"s_add_u32 s{T+7}, s{T+5}, {86*1024}")
    a(f"s_cmp_eq_u32 s{KQ}, 3")
    a(f"s_cselect_b32 s{T+5}, 0x40000000, s{T+5}")
    a(f"s_cselect_b32 s{T+7}, 0x40000000, s{T+7}")
    for q in range(2):
        a(f"buffer_load_dwordx4 v[{48+8*q}:{51+8*q}], v{V_L16}, {WS}, s{T+5} offen offset:{q*1024} sc1")
        a(f"buffer_load_dwordx4 v[{52+8*q}:{55+8*q}], v{V_L16}, {WS}, s{T+7} offen offset:{q*1024} sc1")
    a(f"s_mul_i32 s{T+6}, s{KQ}, 40960")
    a(f"v_add_u32 v8, s{T+6}, v{V_L16}")
    for r in range(80, 112): a(f"v_mov_b32 v{r}, 0")
    def g_reads(ks):
        b = 16 + 8 * (ks % 4)
        a(f"ds_read_b128 v[{b}:{b+3}], v8 offset:{ks*2048}")
        a(f"ds_read_b128 v[{b+4}:{b+7}], v8 offset:{ks*2048+1024}")
    stages = [(0, 5), (5, 10), (10, 15), (15, 20)]
    for si, (k0, k1) in enumerate(stages):
        a(f"s_waitcnt vmcnt({4 + 20 - k1})")
        a("s_barrier")
        g_reads(k0); g_reads(k0 + 1)
        for ks in range(k0, k1):
            if ks + 2 < k1: g_reads(ks + 2)
            left = min(k1 - 1, ks + 2) - ks
            a(f"s_waitcnt lgkmcnt({2*left})")
            b = 16 + 8 * (ks % 4)
            for tt in range(2):
                a(f"v_mfma_f32_32x32x16_bf16 v[{80+16*tt}:{95+16*tt}], v[{V_W2+4*ks}:{V_W2+4*ks+3}], v[{b+4*tt}:{b+4*tt+3}], v[{80+16*tt}:{95+16*tt}]")
    a("s_waitcnt vmcnt(0)")
    for q in range(2):
        ks = 20 + q
        for tt in range(2):
            a(f"v_mfma_f32_32x32x16_bf16 v[{80+16*tt}:{95+16*tt}], v[{V_W2+4*ks}:{V_W2+4*ks+3}], v[{48+8*q+4*tt}:{48+8*q+4*tt+3}], v[{80+16*tt}:{95+16*tt}]")
    stamp(a, cfg, 23)
    a(f"s_lshl_b32 s{T+5}, s{FT}, 15")
    a(f"s_lshl_b32 s{T+6}, s{KQ}, 11")
    a(f"s_add_u32 s{T+5}, s{T+5}, s{T+6}")
    a(f"v_add_u32 v8, s{T+5}, v{V_L16}")
    a("s_nop 7")
    a("s_barrier")
    for ttp in range(2):
        for hp in range(2):
            off = (2*ttp + hp) * 8192
            r = 80 + 16*ttp + 8*hp
            a(f"ds_write_b128 v8, v[{r}:{r+3}] offset:{off}")
            a(f"ds_write_b128 v8, v[{r+4}:{r+7}] offset:{off+1024}")
    a(f"s_lshl_b32 s{T+5}, s{S_W}, 13")
    a(f"v_add_u32 v9, s{T+5}, v{V_L16}")
    a("s_waitcnt lgkmcnt(0)")
    a("s_barrier")
    for q in range(4):
        a(f"ds_read_b128 v[{16+8*q}:{19+8*q}], v9 offset:{q*2048}")
        a(f"ds_read_b128 v[{20+8*q}:{23+8*q}], v9 offset:{q*2048+1024}")
    for n in range(4):
        a(f"v_lshlrev_b32 v{56+2*n}, 16, v{V_B2+n}")
        a(f"v_and_b32 v{57+2*n}, 0xffff0000, v{V_B2+n}")
    for i in range(8):
        a(f"v_add_f32 v{56+i}, v{56+i}, v{V_H+i}")
    a("s_waitcnt lgkmcnt(0)")
    for i in range(8):
        a(f"v_add_f32 v{16+i}, v{16+i}, v{24+i}")
        a(f"v_add_f32 v{32+i}, v{32+i}, v{40+i}")
    for i in range(8):
        a(f"v_add_f32 v{16+i}, v{16+i}, v{32+i}")
    for i in range(8):
        a(f"v_add_f32 v{16+i}, v{16+i}, v{56+i}")
    for n in range(4):
        a(f"v_cvt_pk_bf16_f32 v{24+n}, v{16+2*n}, v{17+2*n}")
    a("s_nop 1")
    a("v_permlane32_swap_b32 v24, v26")
    a("v_permlane32_swap_b32 v25, v27")
    a(f"v_and_b32 v8, 31, v{L}")
    a("v_lshlrev_b32 v8, 10, v8")
    a(f"v_lshrrev_b32 v9, 5, v{L}")
    a("v_lshl_add_u32 v8, v9, 4, v8")
    a(f"buffer_store_dwordx4 v[24:27], v8, s[{S_OUT}:{S_OUT+3}], s{S_A+16} offen")
    stamp(a, cfg, 24)

def gbar(a, cfg):
    T = S_A
    a(f"s_lshl_b32 s{T+8}, s{S_RB2}, 4")
    barrier_team(a, cfg, 4, 16, T+8, "g")
```

```python
import sys
from asmlib import *

NAME = "sequential_preLN__mha_block__dense_activation_squared_relu__prompt"
KNAME = NAME + "_kernel"

WS_EPOCH = 0x0
WS_KVFLAG = 0x1000
WS_TFLAG = 0x10000
WS_KV = 0x100000
WS_OF = 0x500000
WS_HF = 0x700000
WS_GF = 0x900000
WS_QF = 0x1000000
WS_KVL = 0x1200000
WS_STAMP = 0xF00000
WS_SIZE = 0x1600000

S_X, S_WQKV, S_WS, S_WO, S_W1, S_W2, S_OUT, S_B1, S_B2 = 4, 8, 12, 16, 20, 24, 28, 32, 36
S_DBG = 40
S_J, S_H, S_W, S_TAG, S_FAST = 42, 43, 44, 45, 46
S_RERUN = 47
S_VMASK = 48
S_T0 = 50
S_KA = 52
S_BLK = 74
S_XCC = 75
S_MODE = 99
S_A = 76
S_STAMP = 96
S_STB = 98

LDS_SIZE = 163840

class Cfg:
    stamps = False
    stop_after = None
    p1_prefetch = False
    p1_detail = False
    force_slow = False
    exp = ''
    skip_p1 = False
    attn_variant = 1
    prio = 0

def stamp(a, cfg, idx):
    if not cfg.stamps: return
    a(f"s_memtime s[{S_STAMP}:{S_STAMP+1}]")
    a("s_waitcnt lgkmcnt(0)")
    a(f"v_writelane_b32 v255, s{S_STAMP}, {idx}")

def stamp_flush(a, cfg):
    if not cfg.stamps: return
    a(f"s_memrealtime s[{S_STAMP}:{S_STAMP+1}]")
    a("s_waitcnt lgkmcnt(0)")
    a(f"v_writelane_b32 v255, s{S_STAMP}, 31")
    a(f"s_lshl_b32 s{S_STB}, s2, 3")
    a(f"s_add_u32 s{S_STB}, s{S_STB}, s{S_W}")
    a(f"s_lshl_b32 s{S_STB}, s{S_STB}, 7")
    a(f"s_add_u32 s{S_STB}, s{S_STB}, {WS_STAMP}")
    a(f"v_lshlrev_b32 v254, 2, v{V_LANE}")
    a("s_mov_b64 exec, 0xffffffff")
    a(f"buffer_store_dword v255, v254, s[{S_WS}:{S_WS+3}], s{S_STB} offen")
    a("s_mov_b64 exec, -1")

V_Q = 240
V_XRES = 244
V_B2 = 248
V_L16 = 252
V_LANE = 253

def srd(a, s, lo, hi, size):
    a(f"s_mov_b32 s{s}, s{lo}")
    a(f"s_mov_b32 s{s+1}, s{hi}")
    a(f"s_mov_b32 s{s+2}, {size}")
    a(f"s_mov_b32 s{s+3}, 0x00020000")

def prologue(a, cfg):
    a("s_cmp_ge_u32 s2, 256")
    a("s_cbranch_scc1 L_end")
    a(f"s_load_dwordx16 s[{S_KA}:{S_KA+15}], s[0:1], 0")
    a(f"s_load_dwordx4 s[{S_KA+16}:{S_KA+19}], s[0:1], 64")
    a(f"s_load_dwordx2 s[{S_KA+20}:{S_KA+21}], s[0:1], 80")
    a(f"v_and_b32 v{V_LANE}, 63, v0")
    a("v_lshrrev_b32 v2, 6, v0")
    a(f"v_lshlrev_b32 v{V_L16}, 4, v{V_LANE}")
    a(f"v_readfirstlane_b32 s{S_W}, v2")
    a(f"s_and_b32 s{S_J}, s2, 7")
    a(f"s_lshr_b32 s{S_H}, s2, 3")
    a(f"s_mov_b32 s{S_VMASK}, 0x0000ffff")
    a(f"s_mov_b32 s{S_VMASK+1}, 0x0000ffff")
    a(f"s_getreg_b32 s{S_XCC}, hwreg(HW_REG_XCC_ID, 0, 4)")
    a(f"s_mov_b32 s{S_RERUN}, 0")
    if cfg.stamps:
        a(f"s_memrealtime s[{S_STAMP}:{S_STAMP+1}]")
        a("s_waitcnt lgkmcnt(0)")
        a(f"v_writelane_b32 v255, s{S_STAMP}, 30")
        stamp(a, cfg, 29)

P1_SLOT = 32768
P1_MISC = 131072
P1_CS = P1_MISC
P1_ST = P1_MISC + 512
P1_PR = P1_MISC + 1024
S_G, S_Q4, S_AH, S_TT = 100, 101, 3, 51

def phase1(a, cfg):
    L = V_LANE
    T = S_A
    TMP, TMP2, XO, WO_, M0B = T+9, T+10, T+4, T+1, T+2
    a(f"s_lshr_b32 s{S_G}, s{S_H}, 2")
    a(f"s_and_b32 s{S_Q4}, s{S_H}, 3")
    a(f"s_and_b32 s{S_AH}, s{S_W}, 3")
    a(f"s_lshr_b32 s{S_TT}, s{S_W}, 2")
    a(f"v_lshrrev_b32 v10, 3, v{L}")
    a(f"v_and_b32 v11, 7, v{L}")
    a(f"v_lshrrev_b32 v12, 4, v{L}")
    a(f"s_and_b32 s{TMP}, s{S_W}, 1")
    a(f"s_lshl_b32 s{TMP}, s{TMP}, 2")
    a(f"v_add_u32 v13, s{TMP}, v12")
    a(f"v_xor_b32 v13, v11, v13")
    a(f"v_lshlrev_b32 v13, 4, v13")
    a(f"v_lshl_add_u32 v2, v10, 10, v13")
    a(f"v_mul_u32_u24 v10, 3072, v10")
    a(f"v_and_b32 v12, 1, v12")
    a(f"v_lshrrev_b32 v13, 1, v11")
    a(f"v_and_b32 v14, 1, v11")
    a(f"v_lshl_add_u32 v10, v14, 4, v10")
    a(f"v_xor_b32 v14, v13, v12")
    a(f"v_lshl_add_u32 v3, v14, 5, v10")
    a(f"v_xor_b32 v14, 2, v14")
    a(f"v_lshl_add_u32 v4, v14, 5, v10")
    a(f"v_add_u32 v4, 1024, v4")
    a(f"v_lshlrev_b32 v12, 1, v12")
    a(f"v_xor_b32 v14, v13, v12")
    a(f"v_lshl_add_u32 v5, v14, 5, v10")
    a(f"v_add_u32 v5, 2048, v5")
    a(f"s_lshl_b32 s{XO}, s{S_J}, 8")
    a(f"s_lshl_b32 s{TMP}, s{S_Q4}, 6")
    a(f"s_add_u32 s{XO}, s{XO}, s{TMP}")
    a(f"s_lshl_b32 s{TMP}, s{S_W}, 3")
    a(f"s_add_u32 s{XO}, s{XO}, s{TMP}")
    a(f"s_lshl_b32 s{XO}, s{XO}, 10")
    a(f"s_mul_i32 s{WO_}, s{TMP}, 3072")
    a(f"s_lshl_b32 s{TMP}, s{S_G}, 7")
    a(f"s_add_u32 s{WO_}, s{WO_}, s{TMP}")
    a(f"s_lshl_b32 s{M0B}, s{S_W}, 10")
    a("s_waitcnt lgkmcnt(0)")
    k = S_KA
    srd(a, S_X, k, k+1, 2097152)
    srd(a, S_WQKV, k+2, k+3, 1572864)
    srd(a, S_WS, k+20, k+21, WS_SIZE)
    def group(c):
        base = (c % 4) * P1_SLOT
        a(f"s_add_u32 m0, s{M0B}, {base}")
        a(f"s_add_u32 s{TMP}, s{XO}, {c*128}")
        a(f"buffer_load_dwordx4 v2, s[{S_X}:{S_X+3}], s{TMP} offen lds")
        a(f"s_add_u32 m0, s{M0B}, {base+8192}")
        a(f"s_add_u32 s{TMP}, s{WO_}, {c*64*3072}")
        a(f"buffer_load_dwordx4 v3, s[{S_WQKV}:{S_WQKV+3}], s{TMP} offen lds")
        a(f"s_add_u32 m0, s{M0B}, {base+16384}")
        a("s_nop 0")
        a(f"buffer_load_dwordx4 v4, s[{S_WQKV}:{S_WQKV+3}], s{TMP} offen lds")
        a(f"s_add_u32 m0, s{M0B}, {base+24576}")
        a("s_nop 0")
        a(f"buffer_load_dwordx4 v5, s[{S_WQKV}:{S_WQKV+3}], s{TMP} offen lds")
    a("v_mov_b32 v30, 0")
    a(f"buffer_load_dword v31, v30, s[{S_WS}:{S_WS+3}], 0 offen")
    group(0)
    if cfg.p1_prefetch:
        a(f"s_cmp_ge_u32 s{S_W}, 6")
        a("s_cbranch_scc1 L_p1_pfx")
        a(f"s_and_b32 s{TMP}, s{S_W}, 1")
        a(f"s_lshl_b32 s{TMP}, s{TMP}, 6")
        a(f"s_lshl_b32 s{TMP2}, s{S_Q4}, 7")
        a(f"s_add_u32 s{TMP}, s{TMP}, s{TMP2}")
        a(f"s_mul_i32 s{TMP}, s{TMP}, 3072")
        a(f"s_lshr_b32 s{TMP2}, s{S_W}, 1")
        a(f"s_lshl_b32 s{TMP2}, s{TMP2}, 10")
        a(f"s_add_u32 s{TMP}, s{TMP}, s{TMP2}")
        a(f"s_lshl_b32 s{TMP2}, s{S_G}, 7")
        a(f"s_add_u32 s{TMP}, s{TMP}, s{TMP2}")
        a(f"v_mul_u32_u24 v40, 3072, v{L}")
        a(f"buffer_load_dword v41, v40, s[{S_WQKV}:{S_WQKV+3}], s{TMP} offen")
        a(f"buffer_load_dword v42, v40, s[{S_WQKV}:{S_WQKV+3}], s{TMP} offen offset:64")
        a("s_branch L_p1_pfd")
        a.label("L_p1_pfx")
        a(f"s_lshl_b32 s{TMP}, s{S_J}, 8")
        a(f"s_lshl_b32 s{TMP2}, s{S_Q4}, 6")
        a(f"s_add_u32 s{TMP}, s{TMP}, s{TMP2}")
        a(f"s_lshl_b32 s{TMP2}, s{S_G}, 3")
        a(f"s_add_u32 s{TMP}, s{TMP}, s{TMP2}")
        a(f"s_lshl_b32 s{TMP}, s{TMP}, 10")
        a(f"v_lshlrev_b32 v40, 7, v{L}")
        a(f"buffer_load_dword v41, v40, s[{S_X}:{S_X+3}], s{TMP} offen")
        a(f"buffer_load_dword v42, v40, s[{S_X}:{S_X+3}], s{TMP} offen offset:64")
        a.label("L_p1_pfd")
    a("s_barrier")
    group(1)
    a(f"v_and_b32 v20, 31, v{L}")
    a(f"v_lshrrev_b32 v21, 5, v{L}")
    a(f"v_bfe_u32 v22, v{L}, 1, 3")
    a(f"v_xor_b32 v22, v21, v22")
    a(f"v_lshlrev_b32 v22, 4, v22")
    a(f"v_lshl_add_u32 v22, v20, 7, v22")
    a(f"s_lshl_b32 s{TMP}, s{S_TT}, 12")
    a(f"v_add_u32 v8, s{TMP}, v22")
    a(f"v_xor_b32 v9, 32, v8")
    a(f"v_xor_b32 v10, 64, v8")
    a(f"v_xor_b32 v11, 96, v8")
    a(f"s_lshl_b32 s{TMP}, s{S_AH}, 5")
    a(f"v_xor_b32 v7, s{TMP}, v8")
    a(f"v_bfe_u32 v20, v{L}, 2, 2")
    a(f"v_lshl_add_u32 v23, v21, 3, v20")
    a(f"v_lshlrev_b32 v23, 7, v23")
    a(f"v_and_b32 v22, 3, v{L}")
    a(f"v_lshl_add_u32 v23, v22, 3, v23")
    a(f"v_bfe_u32 v24, v{L}, 3, 1")
    a(f"v_bfe_u32 v25, v{L}, 4, 1")
    a(f"v_lshlrev_b32 v26, 1, v25")
    a(f"v_xor_b32 v26, v26, v24")
    a(f"v_xor_b32 v26, s{S_AH}, v26")
    a(f"v_lshl_add_u32 v12, v26, 5, v23")
    a(f"v_lshl_add_u32 v12, v25, 13, v12")
    a(f"v_add_u32 v12, 8192, v12")
    a(f"s_and_b32 s{TMP}, s{S_AH}, 2")
    a(f"v_lshlrev_b32 v26, 1, v24")
    a(f"v_or_b32 v25, s{TMP}, v25")
    a(f"v_xor_b32 v26, v26, v25")
    a(f"v_lshl_add_u32 v13, v26, 5, v23")
    a(f"v_add_u32 v13, 24576, v13")
    a("v_mov_b32 v18, 0x3f803f80")
    for r in (14, 15, 16, 17, 22, 23): a(f"v_mov_b32 v{r}, 0")
    for r in range(48, 80): a(f"v_mov_b32 v{r}, 0")
    a("s_barrier")
    group(2); group(3)
    srd(a, S_WO, k+4, k+5, 524288)
    srd(a, S_W1, k+8, k+9, 1409024)
    srd(a, S_B1, k+10, k+11, 2752)
    srd(a, S_W2, k+12, k+13, 1409024)
    srd(a, S_B2, k+14, k+15, 1024)
    srd(a, S_OUT, k+16, k+17, 2097152)
    a(f"s_mov_b32 s{S_DBG}, s{k+18}")
    a(f"s_mov_b32 s{S_DBG+1}, s{k+19}")
    a(f"v_lshlrev_b32 v20, 3, v{L}")
    a(f"v_add_u32 v20, {P1_ST}, v20")
    a("v_mov_b32 v24, 0")
    a("v_mov_b32 v25, 0")
    a("ds_write_b64 v20, v[24:25]")
    stamp(a, cfg, 0)
    a(f"s_waitcnt vmcnt({14 if cfg.p1_prefetch else 12})")
    a(f"v_readfirstlane_b32 s{S_TAG}, v31")
    a("s_waitcnt lgkmcnt(0)")
    a(f"s_mul_i32 s{S_TAG}, s{S_TAG}, 1664525")
    a(f"s_add_u32 s{S_TAG}, s{S_TAG}, 1013904223")
    a("s_barrier")
    stamp(a, cfg, 1)
    XB = [80 + 4*i for i in range(4)]
    XS = 96
    WQ = [112 + 8*i for i in range(4)]; WVr = [116 + 8*i for i in range(4)]
    def reads(c, ks, owner):
        o = (c % 4) * P1_SLOT
        a(f"ds_read_b128 v[{XB[ks]}:{XB[ks]+3}], v{8+ks} offset:{o % 65536}" if o < 65536 else f"ds_read_b128 v[{XB[ks]}:{XB[ks]+3}], v{148+ks} offset:{o-65536}")
        qa = 12 if o < 65536 else 152
        oo = (o % 65536) + ks*2048
        a(f"ds_read_b64_tr_b16 v[{WQ[ks]}:{WQ[ks]+1}], v{qa} offset:{oo}")
        a(f"ds_read_b64_tr_b16 v[{WQ[ks]+2}:{WQ[ks]+3}], v{qa} offset:{oo+512}")
        if owner:
            va = 13 if o < 65536 else 153
            a(f"ds_read_b64_tr_b16 v[{WVr[ks]}:{WVr[ks]+1}], v{va} offset:{oo}")
            a(f"ds_read_b64_tr_b16 v[{WVr[ks]+2}:{WVr[ks]+3}], v{va} offset:{oo+512}")
    def sread(c):
        o = (c % 4) * P1_SLOT
        xs = XS + 4 * (c % 2)
        a(f"ds_read_b128 v[{xs}:{xs+3}], v{7 if o < 65536 else 154} offset:{o % 65536}")
    def stats(c, r):
        t = 36 + 2 * (r & 1)
        xs = XS + 4 * (c % 2)
        a(f"v_and_b32 v{t}, 0xffff0000, v{xs+r}")
        a(f"v_lshlrev_b32 v{t+1}, 16, v{xs+r}")
        a(f"v_fmac_f32 v{14+(r&1)}, v{t}, v{t}")
        a(f"v_add_f32 v{22+(r&1)}, v{22+(r&1)}, v{t}")
        a(f"v_fmac_f32 v{16+(r&1)}, v{t+1}, v{t+1}")
        a(f"v_add_f32 v{22+(r&1)}, v{22+(r&1)}, v{t+1}")
    def compute(c, ks, owner):
        x = XB[ks]
        a(f"v_mfma_f32_32x32x16_bf16 v[48:63], v[{WQ[ks]}:{WQ[ks]+3}], v[{x}:{x+3}], v[48:63]")
        if 'novalu' not in cfg.exp: stats(c, ks)
        if 'nodot' in cfg.exp:
            if owner: a(f"v_mfma_f32_32x32x16_bf16 v[64:79], v[{x}:{x+3}], v[{WVr[ks]}:{WVr[ks]+3}], v[64:79]")
            return
        if owner:
            a(f"v_mfma_f32_32x32x16_bf16 v[64:79], v[{x}:{x+3}], v[{WVr[ks]}:{WVr[ks]+3}], v[64:79]")
            for r in range(4): a(f"v_dot2c_f32_bf16 v19, v{WVr[ks]+r}, v18")
        else:
            for r in range(4): a(f"v_dot2c_f32_bf16 v19, v{WQ[ks]+r}, v18")
    for i in range(4): a(f"v_add_u32 v{148+i}, 0x10000, v{8+i}")
    a("v_add_u32 v152, 0x10000, v12")
    a("v_add_u32 v153, 0x10000, v13")
    a("v_add_u32 v154, 0x10000, v7")
    a("v_mov_b32 v19, 0")
    a(f"s_cmp_lg_u32 s{S_W}, 0")
    a("s_cbranch_scc1 L_p1_nohello")
    a(f"s_lshl_b32 s{TMP}, s{S_J}, 7")
    a(f"s_lshl_b32 s{TMP2}, s{S_H}, 2")
    a(f"s_add_u32 s{TMP}, s{TMP}, s{TMP2}")
    a(f"s_add_u32 s{TMP}, s{TMP}, {WS_TFLAG}")
    a(f"s_add_u32 s{TMP2}, s{S_TAG}, s{S_XCC}")
    a(f"s_add_u32 s{TMP2}, s{TMP2}, 1")
    a(f"v_mov_b32 v28, s{TMP2}")
    a("v_mov_b32 v29, 0")
    a("s_mov_b64 exec, 1")
    a(f"buffer_store_dword v28, v29, s[{S_WS}:{S_WS+3}], s{TMP} offen sc1")
    a("s_mov_b64 exec, -1")
    a.label("L_p1_nohello")
    a(f"s_and_b32 s{TMP}, s{S_AH}, 1")
    a(f"s_cmp_eq_u32 s{TMP}, s{S_TT}")
    a("s_cbranch_scc0 L_p1_nonowner")
    for owner in (True, False):
        n = 5 if owner else 3
        tagn = "o" if owner else "n"
        if not owner: a.label("L_p1_nonowner")
        sread(0); reads(0, 0, owner); reads(0, 1, owner)
        for c in range(8):
            last = c == 7
            if cfg.p1_detail: stamp(a, cfg, 16 + c)
            a(f"s_waitcnt lgkmcnt({n})")
            reads(c, 2, owner)
            compute(c, 0, owner)
            a(f"s_waitcnt lgkmcnt({n})")
            reads(c, 3, owner)
            compute(c, 1, owner)
            if not last:
                a(f"s_waitcnt vmcnt({[8,4,4,4,4,5,1][c]})")
                a("s_barrier")
                a(f"s_waitcnt lgkmcnt({n})")
                sread(c + 1); reads(c + 1, 0, owner)
                if c >= 1 and c + 3 <= 7 and 'nodma' not in cfg.exp:
                    group(c + 3)
                if c == 4:
                    a(f"s_lshl_b32 s{TMP}, s{S_J}, 7")
                    a(f"s_add_u32 s{TMP}, s{TMP}, {WS_TFLAG}")
                    a(f"v_and_b32 v28, 31, v{L}")
                    a("v_lshlrev_b32 v28, 2, v28")
                    a(f"buffer_load_dword v29, v28, s[{S_WS}:{S_WS+3}], s{TMP} offen sc1")
                compute(c, 2, owner)
                a(f"s_waitcnt lgkmcnt({n+1})")
                reads(c + 1, 1, owner)
                compute(c, 3, owner)
            else:
                a(f"s_waitcnt lgkmcnt({n})")
                compute(c, 2, owner)
                a("s_waitcnt lgkmcnt(0)")
                compute(c, 3, owner)
        if owner: a("s_branch L_p1_joined")
    a.label("L_p1_joined")
    stamp(a, cfg, 2)
    p1_epilogue(a, cfg)

def p1_epilogue(a, cfg):
    L = V_LANE
    T = S_A
    TMP, TMP2 = T+9, T+10
    a(f"v_lshrrev_b32 v21, 5, v{L}")
    a("v_add_f32 v14, v14, v15")
    a("v_add_f32 v16, v16, v17")
    a("v_add_f32 v22, v22, v23")
    a("v_add_f32 v16, v16, v14")
    a("v_mov_b32 v24, v19")
    a("v_mov_b32 v23, v22")
    a("v_mov_b32 v17, v16")
    a(f"v_and_b32 v25, 31, v{L}")
    a(f"v_lshlrev_b32 v25, 2, v25")
    a("v_permlane32_swap_b32 v22, v23")
    a("v_permlane32_swap_b32 v16, v17")
    a("v_permlane32_swap_b32 v19, v24")
    a(f"s_lshl_b32 s{TMP}, s{S_TT}, 8")
    a(f"s_add_u32 s{TMP}, s{TMP}, {P1_ST}")
    a(f"v_add_u32 v26, s{TMP}, v25")
    a("v_add_f32 v22, v22, v23")
    a("v_add_f32 v16, v16, v17")
    a("v_add_f32 v19, v19, v24")
    a("s_mov_b64 exec, 0xffffffff")
    a("ds_add_f32 v26, v22")
    a("ds_add_f32 v26, v16 offset:128")
    a(f"s_and_b32 s{TMP2}, s{S_AH}, 1")
    a(f"s_cmp_eq_u32 s{TMP2}, s{S_TT}")
    a("s_cbranch_scc1 L_p1_e1")
    a(f"s_lshl_b32 s{TMP}, s{S_AH}, 7")
    a(f"s_add_u32 s{TMP}, s{TMP}, {P1_CS}")
    a(f"v_add_u32 v27, s{TMP}, v25")
    a("ds_write_b32 v27, v19")
    a.label("L_p1_e1")
    a("s_mov_b64 exec, -1")
    a(f"s_lshl_b32 s{TMP}, s{S_J}, 7")
    a(f"s_add_u32 s{TMP}, s{TMP}, {WS_TFLAG}")
    a(f"s_add_u32 s{TMP2}, s{S_TAG}, 1")
    a(f"s_mov_b32 s{T+11}, 0")
    a("s_waitcnt vmcnt(0)")
    a.label("L_p1_hchk")
    a(f"v_subrev_u32 v29, s{TMP2}, v29")
    a("v_cmp_lt_u32 vcc, 15, v29")
    a("s_cbranch_vccz L_p1_hok")
    a(f"s_add_u32 s{T+11}, s{T+11}, 1")
    a(f"s_cmp_gt_u32 s{T+11}, 0x100000")
    a("s_cbranch_scc1 L_p1_hok")
    a(f"buffer_load_dword v29, v28, s[{S_WS}:{S_WS+3}], s{TMP} offen sc1")
    a("s_waitcnt vmcnt(0)")
    a("s_branch L_p1_hchk")
    a.label("L_p1_hok")
    a(f"v_cmp_ne_u32 vcc, s{S_XCC}, v29")
    a(f"s_cmp_eq_u64 vcc, 0")
    a(f"s_cselect_b32 s{S_FAST}, 1, 0")
    if cfg.force_slow: a(f"s_mov_b32 s{S_FAST}, 0")
    a("s_waitcnt lgkmcnt(0)")
    a("s_barrier")
    stamp(a, cfg, 3)
    a("ds_read_b32 v14, v26")
    a("ds_read_b32 v16, v26 offset:128")
    a(f"s_lshl_b32 s{TMP}, s{S_AH}, 7")
    a(f"s_add_u32 s{TMP}, s{TMP}, {P1_CS}")
    a(f"v_lshlrev_b32 v20, 4, v21")
    a(f"v_add_u32 v20, s{TMP}, v20")
    for jj in range(4):
        a(f"ds_read_b128 v[{80+4*jj}:{83+4*jj}], v20 offset:{jj*32}")
    HH, WP, KVO, QO = T+11, T+12, T+13, T+14
    a(f"s_lshl_b32 s{HH}, s{S_G}, 2")
    a(f"s_add_u32 s{HH}, s{HH}, s{S_AH}")
    a(f"s_lshl_b32 s{WP}, s{S_Q4}, 1")
    a(f"s_add_u32 s{WP}, s{WP}, s{S_TT}")
    a(f"s_lshl_b32 s{KVO}, s{HH}, 3")
    a(f"s_add_u32 s{KVO}, s{KVO}, s{S_J}")
    a(f"s_lshl_b32 s{QO}, s{KVO}, 13")
    a(f"s_lshl_b32 s{KVO}, s{KVO}, 14")
    a(f"s_lshl_b32 s{TMP}, s{WP}, 10")
    a(f"s_add_u32 s{KVO}, s{KVO}, s{TMP}")
    a(f"s_add_u32 s{QO}, s{QO}, s{TMP}")
    a(f"s_add_u32 s{QO}, s{QO}, {WS_QF}")
    a("s_waitcnt lgkmcnt(4)")
    a("v_mul_f32 v14, 0x3b000000, v14")
    a("v_mul_f32 v16, 0x3b000000, v16")
    a("v_fma_f32 v16, -v14, v14, v16")
    a("v_add_f32 v16, 0x3727c5ac, v16")
    a("v_rsq_f32 v16, v16")
    a(f"s_lshl_b32 s{TMP}, s{S_W}, 8")
    a(f"s_add_u32 s{TMP}, s{TMP}, {P1_PR}")
    a(f"v_add_u32 v25, s{TMP}, v25")
    a("v_mul_f32 v17, v14, v16")
    a("v_mul_f32 v15, 0x3eb8aa3b, v16")
    a(f"v_lshlrev_b32 v23, 4, v21")
    a(f"v_add_u32 v23, s{TMP}, v23")
    a("ds_write_b32 v25, v16")
    a("ds_write_b32 v25, v17 offset:128")
    a("s_waitcnt lgkmcnt(2)")
    for i in range(8, 16):
        a(f"v_fma_f32 v{48+i}, -v14, v{80+i}, v{48+i}")
    for i in range(8, 16):
        a(f"v_mul_f32 v{48+i}, v{48+i}, v16")
    for n in range(4):
        a(f"v_cvt_pk_bf16_f32 v{28+n}, v{56+2*n}, v{57+2*n}")
    a("s_waitcnt lgkmcnt(0)")
    for jj in range(4):
        a(f"ds_read_b128 v[{96+4*jj}:{99+4*jj}], v23 offset:{jj*32}")
        a(f"ds_read_b128 v[{112+4*jj}:{115+4*jj}], v23 offset:{128+jj*32}")
    for i in range(8):
        a(f"v_fma_f32 v{48+i}, -v14, v{80+i}, v{48+i}")
    for i in range(8):
        a(f"v_mul_f32 v{48+i}, v{48+i}, v15")
    for n in range(4):
        a(f"v_cvt_pk_bf16_f32 v{32+n}, v{48+2*n}, v{49+2*n}")
    KL, KR = T+15, T+16
    a(f"s_add_u32 s{KL}, s{KVO}, {WS_KVL}")
    a(f"s_add_u32 s{KR}, s{KVO}, {WS_KV}")
    a(f"s_and_b32 s{TMP2}, s{S_AH}, 1")
    a(f"s_cmp_eq_u32 s{TMP2}, s{S_TT}")
    a("s_cbranch_scc0 L_p1_st_n")
    a("s_waitcnt lgkmcnt(0)")
    for i in range(16):
        a(f"v_mul_f32 v{112+i}, v{112+i}, v19")
    for i in range(16):
        a(f"v_fma_f32 v{64+i}, v{64+i}, v{96+i}, -v{112+i}")
    for n in range(8):
        a(f"v_cvt_pk_bf16_f32 v{40+n}, v{64+2*n}, v{65+2*n}")
    a(f"v_bfe_u32 v24, v{L}, 4, 1")
    a(f"s_and_b32 s{TMP2}, s{S_AH}, 1")
    a(f"v_subrev_u32 v24, s{TMP2}, v24")
    a(f"v_lshlrev_b32 v24, 17, v24")
    a(f"v_and_b32 v22, 15, v{L}")
    a(f"v_lshlrev_b32 v22, 4, v22")
    a(f"v_lshl_add_u32 v22, v21, 8, v22")
    a(f"v_add_u32 v22, v24, v22")
    a(f"v_add_u32 v22, {8192 + 0x20000}, v22")
    a(f"s_sub_u32 s{T+17}, s{KL}, 0x20000")
    a(f"s_sub_u32 s{T+18}, s{KR}, 0x20000")
    def stores(owner):
        W = f"s[{S_WS}:{S_WS+3}]"
        for mode in ("fast", "slow"):
            sc = "" if mode == "fast" else "sc1"
            tg = ("o" if owner else "n") + mode[0]
            if mode == "fast":
                a(f"s_cmp_eq_u32 s{S_FAST}, 0")
                a(f"s_cbranch_scc1 L_p1_st_{('o' if owner else 'n')}s")
            else:
                a.label(f"L_p1_st_{tg}")
            a(f"buffer_store_dwordx4 v[32:35], v{V_L16}, {W}, s{QO} offen {sc}")
            a(f"buffer_store_dwordx4 v[28:31], v{V_L16}, {W}, s{KL} offen {sc}")
            if owner:
                a(f"buffer_store_dwordx4 v[40:43], v22, {W}, s{T+17} offen {sc}")
                a(f"buffer_store_dwordx4 v[44:47], v22, {W}, s{T+17} offen offset:512 {sc}")
            if mode == "fast": a(f"s_branch L_p1_st_{('o' if owner else 'n')}r")
        a.label(f"L_p1_st_{('o' if owner else 'n')}r")
        a(f"buffer_store_dwordx4 v[28:31], v{V_L16}, {W}, s{KR} offen sc1")
        if owner:
            a(f"buffer_store_dwordx4 v[40:43], v22, {W}, s{T+18} offen sc1")
            a(f"buffer_store_dwordx4 v[44:47], v22, {W}, s{T+18} offen offset:512 sc1")
        a(f"s_waitcnt vmcnt({3 if owner else 1})")
    stores(True)
    a("s_branch L_p1_st_done")
    a.label("L_p1_st_n")
    a("s_waitcnt lgkmcnt(0)")
    stores(False)
    a.label("L_p1_st_done")
    a("s_barrier")
    stamp(a, cfg, 4)
    a(f"s_lshl_b32 s{TMP}, s{S_J}, 7")
    a(f"s_add_u32 s{TMP}, s{TMP}, {WS_TFLAG + 1024}")
    a(f"s_cmp_lg_u32 s{S_W}, 0")
    a("s_cbranch_scc1 L_p1_lwait")
    a(f"s_lshl_b32 s{TMP2}, s{S_H}, 2")
    a(f"s_add_u32 s{TMP2}, s{TMP2}, s{TMP}")
    team_flag(a, cfg, TMP2, "p1")
    a(f"s_lshl_b32 s{TMP2}, s{S_G}, 4")
    a(f"s_add_u32 s{TMP}, s{TMP}, s{TMP2}")
    a(f"v_and_b32 v2, 3, v{L}")
    a("v_lshlrev_b32 v2, 2, v2")
    poll(a, 2, 3, TMP, "p1l")
    a.label("L_p1_lwait")
    a("s_barrier")
    stamp(a, cfg, 13)
    a(f"s_lshl_b32 s{TMP}, s{S_H}, 3")
    a(f"s_add_u32 s{TMP}, s{TMP}, s{S_J}")
    a(f"s_lshl_b32 s{TMP2}, s{TMP}, 13")
    a(f"s_lshl_b32 s{TMP}, s{TMP}, 14")
    a(f"s_lshl_b32 s{T+11}, s{S_W}, 10")
    a(f"s_add_u32 s{TMP2}, s{TMP2}, s{T+11}")
    a(f"s_add_u32 s{TMP2}, s{TMP2}, {WS_QF}")
    a(f"s_add_u32 s{TMP}, s{TMP}, s{T+11}")
    a(f"s_add_u32 s{TMP}, s{TMP}, {WS_KVL}")
    a(f"s_mov_b32 m0, s{T+11}")
    a(f"buffer_load_dwordx4 v[{V_Q}:{V_Q+3}], v{V_L16}, s[{S_WS}:{S_WS+3}], s{TMP2} offen sc1")
    a(f"buffer_load_dwordx4 v{V_L16}, s[{S_WS}:{S_WS+3}], s{TMP} offen sc1 lds")
    a(f"s_add_u32 m0, m0, 8192")
    a(f"s_add_u32 s{TMP}, s{TMP}, 8192")
    a(f"buffer_load_dwordx4 v{V_L16}, s[{S_WS}:{S_WS+3}], s{TMP} offen sc1 lds")
    a("s_waitcnt vmcnt(0)")
    a("s_barrier")
    a(f"s_cmp_lg_u32 s{S_W}, 0")
    a("s_cbranch_scc1 L_p1_end")
    a(f"s_lshl_b32 s{TMP}, s{S_H}, 7")
    a(f"s_lshl_b32 s{TMP2}, s{S_J}, 2")
    a(f"s_add_u32 s{TMP}, s{TMP}, s{TMP2}")
    a(f"s_add_u32 s{TMP}, s{TMP}, {WS_KVFLAG}")
    flag_store(a, S_TAG, TMP, "sc1")
    a.label("L_p1_end")
    stamp(a, cfg, 14)

def team_flag(a, cfg, off_s, uniq):
    a(f"v_mov_b32 v2, s{S_TAG}")
    a("v_mov_b32 v3, 0")
    a("s_mov_b64 exec, 1")
    a(f"s_cmp_eq_u32 s{S_FAST}, 0")
    a(f"s_cbranch_scc1 L_tf_{uniq}_s")
    a(f"buffer_store_dword v2, v3, s[{S_WS}:{S_WS+3}], s{off_s} offen")
    a(f"s_branch L_tf_{uniq}_d")
    a.label(f"L_tf_{uniq}_s")
    a(f"buffer_store_dword v2, v3, s[{S_WS}:{S_WS+3}], s{off_s} offen sc1")
    a.label(f"L_tf_{uniq}_d")
    a("s_mov_b64 exec, -1")

def poll(a, vaddr, vtmp, off_s, uniq):
    C = S_A + 19
    a(f"s_mov_b32 s{C}, 0")
    a.label(f"L_poll_{uniq}")
    a(f"buffer_load_dword v{vtmp}, v{vaddr}, s[{S_WS}:{S_WS+3}], s{off_s} offen sc1")
    a(f"s_add_u32 s{C}, s{C}, 1")
    a("s_waitcnt vmcnt(0)")
    a(f"v_cmp_ne_u32 vcc, s{S_TAG}, v{vtmp}")
    a(f"s_cmp_gt_u32 s{C}, 0x100000")
    a(f"s_cbranch_scc1 L_poll_{uniq}_x")
    a(f"s_cbranch_vccnz L_poll_{uniq}")
    a.label(f"L_poll_{uniq}_x")

A_S = [16, 32]; A_C = 48; A_O = 64; A_P = 80; A_KF = [88, 92]; A_VF = [96, 104]; A_VK = 112; A_VV = 113
def mfma32(a, d, x, y, c):
    cs = c if isinstance(c, str) else f"v[{c}:{c+15}]"
    a(f"v_mfma_f32_32x32x16_bf16 v[{d}:{d+15}], v[{x}:{x+3}], v[{y}:{y+3}], {cs}")

def attention(a, cfg):
    L = V_LANE
    T = S_A
    a(f"v_mov_b32 v{A_VK}, v{V_L16}")
    a(f"v_and_b32 v2, 15, v{L}")
    a(f"v_lshlrev_b32 v2, 4, v2")
    a(f"v_lshrrev_b32 v3, 5, v{L}")
    a(f"v_lshl_add_u32 v2, v3, 8, v2")
    a(f"v_add_u32 v{A_VV}, 8192, v2")
    a(f"v_and_b32 v3, 31, v{L}")
    a(f"v_cmp_eq_u32 vcc, 16, v3")
    a(f"v_mov_b32 v4, 0x3f803f80")
    a("s_nop 0")
    a(f"v_cndmask_b32 v{A_VF[0]}, 0, v4, vcc")
    for r in range(1, 16):
        a(f"v_mov_b32 v{A_VF[0]+r}, v{A_VF[0]}")
    a(f"ds_read_b128 v[{A_KF[0]}:{A_KF[0]+3}], v{A_VK}")
    a("s_waitcnt lgkmcnt(0)")
    mfma32(a, A_S[0], A_KF[0], V_Q, "0")
    a(f"s_mov_b32 s{S_BLK}, 0")
    a(f"s_lshl_b32 s{T}, s{S_H}, 17")
    a(f"s_add_u32 s{T}, s{T}, {WS_KV}")
    a(f"s_lshl_b32 s{T+1}, s{S_W}, 10")
    a(f"s_add_u32 s{T}, s{T}, s{T+1}")
    a(f"s_add_u32 s{T+2}, s{T+1}, 0")
    a("s_nop 4")
    a("s_nop 1")
    def maxtree(src, dst):
        a(f"v_max3_f32 v{dst}, v{src}, v{src+1}, v{src+2}")
        for i in range(3, 15, 2):
            a(f"v_max3_f32 v{dst}, v{dst}, v{src+i}, v{src+i+1}")
        a(f"v_max_f32 v{dst}, v{dst}, v{src+15}")
    maxtree(A_S[0], 2)
    a("s_nop 0")
    a("v_mov_b32 v3, v2")
    a("s_nop 1")
    a("v_permlane32_swap_b32 v2, v3")
    a("s_nop 0")
    a("v_max_f32 v2, v2, v3")
    if cfg.prio:
        a(f"s_cmp_ge_u32 s{S_W}, 4")
        a("s_cbranch_scc0 L_at_noprio")
        a("s_setprio 1")
        a.label("L_at_noprio")
    a.label("L_at_start")
    a(f"v_sub_f32 v{A_C}, 0, v2")
    for r in range(1, 16):
        a(f"v_mov_b32 v{A_C+r}, v{A_C}")
    for r in range(16):
        a(f"v_mov_b32 v{A_O+r}, 0")
    for r in range(8):
        a(f"v_mov_b32 v{A_P+r}, 0")
    a(f"v_mov_b32 v{A_VK}, v{V_L16}")
    a(f"v_and_b32 v2, 15, v{L}")
    a(f"v_lshlrev_b32 v2, 4, v2")
    a(f"v_lshrrev_b32 v3, 5, v{L}")
    a(f"v_lshl_add_u32 v2, v3, 8, v2")
    a(f"v_add_u32 v{A_VV}, 8192, v2")
    a(f"s_mov_b32 s{S_BLK}, 0")
    a(f"s_lshl_b32 s{S_MODE}, s{S_RERUN}, 8")
    a(f"ds_read_b128 v[{A_KF[0]}:{A_KF[0]+3}], v{A_VK}")
    a(f"ds_read_b128 v[{A_KF[1]}:{A_KF[1]+3}], v{A_VK} offset:1024")
    a(f"s_mov_b64 exec, s[{S_VMASK}:{S_VMASK+1}]")
    a(f"ds_read_b128 v[{A_VF[0]}:{A_VF[0]+3}], v{A_VV}")
    a(f"ds_read_b128 v[{A_VF[0]+4}:{A_VF[0]+7}], v{A_VV} offset:512")
    a("s_mov_b64 exec, -1")
    a("s_waitcnt lgkmcnt(0)")
    mfma32(a, A_S[0], A_KF[0], V_Q, A_C)
    a("s_nop 7")
    a("s_nop 3")
    a.label("L_at_blk")
    for t in range(8):
        cur = A_S[t % 2]; nxt = A_S[(t + 1) % 2]
        X = lambda i: cur + i
        P = A_P
        e = lambda i: a(f"v_exp_f32 v{X(i)}, v{X(i)}")
        c = lambda n: a(f"v_cvt_pk_bf16_f32 v{P+n}, v{X(2*n)}, v{X(2*n+1)}")
        if t == 3:
            a(f"s_cmp_eq_u32 s{S_MODE}, 0")
            a("s_cbranch_scc1 L_hq")
            a.label("L_hq_back")
        if t == 6:
            a(f"s_cmp_lt_u32 s{S_MODE}, 4")
            a("s_cbranch_scc1 L_hs")
            a.label("L_hs_back")
        koff = (t + 2) * 1024 if t < 6 else 16384 + (t - 6) * 1024
        voff = (t + 1) * 1024 if t < 7 else 16384
        vn = A_VF[(t + 1) % 2]
        def pv2(): mfma32(a, A_O, A_VF[(t + 1) % 2] + 4, P + 4, A_O)
        def pv1(): mfma32(a, A_O, A_VF[t % 2], P, A_O)
        def smm():
            a("s_waitcnt lgkmcnt(0)")
            mfma32(a, nxt, A_KF[(t + 1) % 2], V_Q, A_C)
        def rdk(): a(f"ds_read_b128 v[{A_KF[t%2]}:{A_KF[t%2]+3}], v{A_VK} offset:{koff}")
        def rdv():
            a(f"s_mov_b64 exec, s[{S_VMASK}:{S_VMASK+1}]")
            a(f"ds_read_b128 v[{vn}:{vn+3}], v{A_VV} offset:{voff}")
            a(f"ds_read_b128 v[{vn+4}:{vn+7}], v{A_VV} offset:{voff+512}")
            a("s_mov_b64 exec, -1")
        v = cfg.attn_variant
        if v == 0:
            e(0); e(1); pv2(); smm(); rdk(); rdv()
            e(2); c(0); e(3); e(4); c(1); e(5); e(6); c(2); e(7); e(8); c(3); e(9); e(10)
            pv1()
            c(4); e(11); e(12); c(5); e(13); e(14); e(15); c(6); c(7)
        elif v == 1:
            e(0); e(1); pv2(); e(2); c(0); e(3); e(4); c(1); smm(); rdk(); rdv()
            e(5); e(6); c(2); e(7); e(8); c(3); e(9); e(10)
            pv1()
            c(4); e(11); e(12); c(5); e(13); e(14); e(15); c(6); c(7)
        elif v == 2:
            e(0); e(1); pv2(); e(2); c(0); e(3); e(4); c(1); e(5); e(6); smm(); rdk(); rdv()
            c(2); e(7); e(8); c(3); e(9); e(10); c(4); e(11)
            pv1()
            e(12); c(5); e(13); e(14); e(15); c(6); c(7)
        elif v == 3:
            e(0); e(1); pv2(); e(2); c(0); e(3); e(4); c(1); smm(); rdk()
            a(f"ds_read_b128 v[{vn}:{vn+3}], v{A_VV} offset:{voff}")
            a(f"ds_read_b128 v[{vn+4}:{vn+7}], v{A_VV} offset:{voff+512}")
            e(5); e(6); c(2); e(7); e(8); c(3); e(9); e(10)
            pv1()
            c(4); e(11); e(12); c(5); e(13); e(14); e(15); c(6); c(7)
        elif v == 4:
            e(0); e(1); pv2(); e(2); c(0); e(3); e(4); c(1); mfma32(a, nxt, A_KF[(t + 1) % 2], V_Q, A_C)
            e(5); e(6); c(2); e(7); e(8); c(3); e(9); e(10)
            pv1()
            c(4); e(11); e(12); c(5); e(13); e(14); e(15); c(6); c(7)
    a(f"v_add_u32 v{A_VK}, 16384, v{A_VK}")
    a(f"v_add_u32 v{A_VV}, 16384, v{A_VV}")
    a(f"s_add_u32 s{S_BLK}, s{S_BLK}, 1")
    a(f"s_add_u32 s{S_MODE}, s{S_MODE}, 1")
    a(f"s_cmp_lt_u32 s{S_BLK}, 8")
    a("s_cbranch_scc1 L_at_blk")
    mfma32(a, A_O, A_VF[1] + 4, A_P + 4, A_O)
    a("s_waitcnt lgkmcnt(0)")
    stamp(a, cfg, 8)
    a("s_nop 7")
    a("s_nop 3")
    a(f"v_mov_b32 v2, v{A_O+8}")
    a(f"v_mov_b32 v3, v{A_O+8}")
    a("s_nop 1")
    a("v_permlane32_swap_b32 v2, v3")
    a("s_nop 0")
    a("v_mov_b32 v4, 0x5d800000")
    a("v_cmp_nle_f32 vcc, v2, v4")
    a(f"s_cmp_lg_u32 s{S_RERUN}, 0")
    a("s_cbranch_scc1 L_at_ok")
    a("s_cbranch_vccz L_at_ok")
    a(f"s_mov_b32 s{S_RERUN}, 1")
    a(f"v_mov_b32 v{A_VK}, v{V_L16}")
    a("v_mov_b32 v2, 0xff800000")
    a(f"s_mov_b32 s{S_BLK}, 0")
    a.label("L_at_max")
    for t in range(8):
        a(f"ds_read_b128 v[{A_KF[0]}:{A_KF[0]+3}], v{A_VK} offset:{t*1024}")
        a("s_waitcnt lgkmcnt(0)")
        mfma32(a, A_S[0], A_KF[0], V_Q, "0")
        a("s_nop 7")
        a("s_nop 3")
        for i in range(0, 16, 2):
            a(f"v_max3_f32 v2, v2, v{A_S[0]+i}, v{A_S[0]+i+1}")
    a(f"v_add_u32 v{A_VK}, 16384, v{A_VK}")
    a(f"s_add_u32 s{S_BLK}, s{S_BLK}, 1")
    a(f"s_cmp_lt_u32 s{S_BLK}, 8")
    a("s_cbranch_scc1 L_at_max")
    a("v_mov_b32 v3, v2")
    a("s_nop 1")
    a("v_permlane32_swap_b32 v2, v3")
    a("s_nop 0")
    a("v_max_f32 v2, v2, v3")
    a("s_branch L_at_start")
    hooks_out_of_line(a, cfg)
    a.label("L_at_ok")
    a("v_rcp_f32 v2, v2")
    a("s_nop 0")
    for i in range(8):
        a(f"v_mul_f32 v{A_O+i}, v{A_O+i}, v2")
    for n in range(4):
        a(f"v_cvt_pk_bf16_f32 v{4+n}, v{A_O+2*n}, v{A_O+2*n+1}")

def flag_store(a, val_s, off_s, sc):
    a(f"v_mov_b32 v2, s{val_s}")
    a("v_mov_b32 v3, 0")
    a("s_mov_b64 exec, 1")
    a(f"buffer_store_dword v2, v3, s[{S_WS}:{S_WS+3}], s{off_s} offen {sc}")
    a("s_mov_b64 exec, -1")

def kv_dma(a, blk):
    T = S_A
    a(f"s_add_u32 s{T+4}, s{S_J}, {blk}")
    a(f"s_and_b32 s{T+4}, s{T+4}, 7")
    a(f"s_lshl_b32 s{T+4}, s{T+4}, 14")
    a(f"s_add_u32 s{T+4}, s{T+4}, s{T}")
    a(f"s_add_u32 m0, s{T+2}, {blk*16384}")
    a(f"s_add_u32 s{T+6}, s{T+4}, 8192")
    a(f"buffer_load_dwordx4 v{V_L16}, s[{S_WS}:{S_WS+3}], s{T+4} offen sc1 lds")
    a(f"s_add_u32 m0, m0, 8192")
    a("s_nop 0")
    a(f"buffer_load_dwordx4 v{V_L16}, s[{S_WS}:{S_WS+3}], s{T+6} offen sc1 lds")

def hooks_out_of_line(a, cfg):
    T = S_A
    a.label("L_hq")
    stamp(a, cfg, 5)
    a(f"s_and_b32 s{T+4}, s{S_H}, 28")
    a(f"s_lshr_b32 s{T+5}, s{S_W}, 1")
    a(f"s_add_u32 s{T+4}, s{T+4}, s{T+5}")
    a(f"s_lshl_b32 s{T+4}, s{T+4}, 7")
    a(f"s_add_u32 s{T+3}, s{T+4}, {WS_KVFLAG}")
    a(f"v_and_b32 v2, 7, v{V_LANE}")
    a("v_lshlrev_b32 v2, 2, v2")
    poll(a, 2, 3, T+3, "kv")
    a.label("L_hq_go")
    stamp(a, cfg, 6)
    kv_dma(a, 1); kv_dma(a, 2)
    a("s_branch L_hq_back")
    a.label("L_hs")
    a(f"s_cmp_eq_u32 s{S_MODE}, 0")
    a("s_cbranch_scc1 L_hs0")
    a(f"s_cmp_eq_u32 s{S_MODE}, 1")
    a("s_cbranch_scc1 L_hs1")
    a(f"s_cmp_eq_u32 s{S_MODE}, 3")
    a("s_cbranch_scc0 L_hs_back")
    a("s_waitcnt vmcnt(0)")
    a("s_barrier")
    stamp(a, cfg, 12)
    warmup(a, cfg)
    a("s_branch L_hs_back")
    a.label("L_hs0")
    a("s_waitcnt vmcnt(2)")
    a("s_barrier")
    stamp(a, cfg, 10)
    kv_dma(a, 3); kv_dma(a, 4); kv_dma(a, 5)
    a("s_branch L_hs_back")
    a.label("L_hs1")
    a("s_waitcnt vmcnt(4)")
    a("s_barrier")
    stamp(a, cfg, 11)
    kv_dma(a, 6); kv_dma(a, 7)
    a("s_branch L_hs_back")

def warmup(a, cfg):
    pass

def attn_out(a, cfg, sc):
    T = S_A
    a(f"s_lshl_b32 s{T+4}, s{S_J}, 3")
    a(f"s_add_u32 s{T+4}, s{T+4}, s{S_W}")
    a(f"s_lshl_b32 s{T+4}, s{T+4}, 5")
    a(f"s_add_u32 s{T+4}, s{T+4}, s{S_H}")
    a(f"s_lshl_b32 s{T+4}, s{T+4}, 10")
    a(f"s_add_u32 s{T+4}, s{T+4}, {WS_OF}")
    a(f"buffer_store_dwordx4 v[4:7], v{V_L16}, s[{S_WS}:{S_WS+3}], s{T+4} offen {sc}")

def finish(a, cfg):
    T = S_A
    a(f"s_or_b32 s{T+4}, s2, s{S_W}")
    a(f"s_cmp_lg_u32 s{T+4}, 0")
    a("s_cbranch_scc1 L_fin")
    a(f"s_mov_b32 s{T+4}, {WS_EPOCH}")
    flag_store(a, S_TAG, T+4, "sc1")
    a.label("L_fin")
    stamp_flush(a, cfg)
    a("s_waitcnt vmcnt(0)")
    a.label("L_end")
    a("s_endpgm")

def build(cfg):
    a = Asm()
    prologue(a, cfg)
    if cfg.skip_p1:
        a("s_waitcnt lgkmcnt(0)")
        srd(a, S_WS, S_KA+20, S_KA+21, WS_SIZE)
        a(f"s_mov_b32 s{S_RERUN}, 1")
        for r in range(4): a(f"v_mov_b32 v{V_Q+r}, 0x3c003c00")
        a("s_barrier")
        stamp(a, cfg, 4)
    else:
        phase1(a, cfg)
    if cfg.stop_after != "p1":
        attention(a, cfg)
        if cfg.stop_after == "attn":
            attn_out(a, cfg, "sc1")
            stamp(a, cfg, 9)
        else:
            import tail
            tail.tail(a, cfg)
    finish(a, cfg)
    errs = check_hazards(a.lines) + check_waits(a.lines)
    for e in errs: print("!!", e, file=sys.stderr)
    hdr = open("cdna_kernels/" + NAME + ".s.ref").read().split("; Override")[0]
    out = hdr
    out += f"; @launch kernel={KNAME} grid=(256,1,1) block=(512,1,1) lds={LDS_SIZE}\n"
    out += '.amdgcn_target "amdgcn-amd-amdhsa--gfx950"\n.text\n'
    out += f".globl {KNAME}\n.p2align 8\n.type {KNAME},@function\n{KNAME}:\n"
    out += a.text()
    out += f""".section .rodata,"a"
.p2align 6
.amdhsa_kernel {KNAME}
  .amdhsa_next_free_vgpr 256
  .amdhsa_next_free_sgpr 102
  .amdhsa_accum_offset 256
  .amdhsa_group_segment_fixed_size 0
  .amdhsa_kernarg_size 88
  .amdhsa_user_sgpr_count 2
  .amdhsa_user_sgpr_kernarg_segment_ptr 1
  .amdhsa_system_sgpr_workgroup_id_x 1
.end_amdhsa_kernel
"""
    return out, errs

if __name__ == "__main__":
    cfg = Cfg()
    outp = "cdna_kernels/" + NAME + ".s"
    for arg in sys.argv[1:]:
        if arg == "stamps": cfg.stamps = True
        elif arg.startswith("stop="): cfg.stop_after = arg[5:]
        elif arg.startswith("out="): outp = arg[4:]
        elif arg == "pf": cfg.p1_prefetch = True
        elif arg == "p1d": cfg.p1_detail = True
        elif arg == "slow": cfg.force_slow = True
        elif arg.startswith("exp="): cfg.exp = arg[4:]
        elif arg == "skip_p1": cfg.skip_p1 = True
        elif arg.startswith("av="): cfg.attn_variant = int(arg[3:])
        elif arg.startswith("prio="): cfg.prio = int(arg[5:])
    txt, errs = build(cfg)
    open(outp, "w").write(txt)
    print("wrote", outp, len(txt), "bytes;", len(errs), "checker findings")
```

```python
from asmlib import *
import gen as G
from gen import *

T_W1 = 0
T_WO = 98304
T_RX = 98304
T_MISC = 98304 + 49152
T_CS1 = T_MISC
T_HST = 0
V_H = 240
V_B1K = 11+135

S_RB, S_CB, S_RB2, S_T0F = 100, 101, 3, 51

def tr_addr(a, dst, base, t1, t2):
    L = V_LANE
    a(f"v_lshrrev_b32 v{t1}, 5, v{L}")
    a(f"v_bfe_u32 v{t2}, v{L}, 2, 2")
    a(f"v_lshl_add_u32 v{t1}, v{t1}, 2, v{t2}")
    a(f"v_lshlrev_b32 v{dst}, 6, v{t1}")
    a(f"v_bfe_u32 v{t2}, v{L}, 4, 1")
    a(f"v_lshl_add_u32 v{dst}, v{t2}, 5, v{dst}")
    a(f"v_and_b32 v{t2}, 3, v{L}")
    a(f"v_lshl_add_u32 v{dst}, v{t2}, 3, v{dst}")
    if base: a(f"v_add_u32 v{dst}, {base}, v{dst}")

def wtile_voff(a, dst, stride, t1):
    L = V_LANE
    a(f"v_lshrrev_b32 v{t1}, 2, v{L}")
    a(f"v_mul_u32_u24 v{dst}, {stride}, v{t1}")
    a(f"v_and_b32 v{t1}, 3, v{L}")
    a(f"v_lshl_add_u32 v{dst}, v{t1}, 4, v{dst}")

def barrier_team(a, cfg, bidx, nflags, first_s, uniq, stampidx=None):
    T = S_A
    a(f"s_cmp_lg_u32 s{S_W}, 0")
    a(f"s_cbranch_scc1 L_tb_{uniq}")
    a(f"s_lshl_b32 s{T+4}, s{S_J}, 7")
    a(f"s_add_u32 s{T+4}, s{T+4}, {WS_TFLAG + bidx*1024}")
    a(f"s_lshl_b32 s{T+5}, s{S_H}, 2")
    a(f"s_add_u32 s{T+5}, s{T+5}, s{T+4}")
    team_flag(a, cfg, T+5, uniq)
    if first_s is not None:
        a(f"s_lshl_b32 s{T+5}, s{first_s}, 2")
        a(f"s_add_u32 s{T+4}, s{T+4}, s{T+5}")
    a(f"v_and_b32 v2, {nflags-1}, v{V_LANE}")
    a("v_lshlrev_b32 v2, 2, v2")
    if uniq == "h": stamp(a, cfg, 25)
    poll(a, 2, 3, T+4, uniq)
    if uniq == "h":
        stamp(a, cfg, 26)
        if cfg.stamps: a(f"v_writelane_b32 v255, s{S_A+19}, 27")
    a.label(f"L_tb_{uniq}")
    if uniq == "h": stamp(a, cfg, 28)

def mode_store(a, instr_fmt, uniq):
    a(f"s_cmp_eq_u32 s{S_FAST}, 0")
    a(f"s_cbranch_scc1 L_ms_{uniq}_s")
    for i in instr_fmt: a(i.format(sc=""))
    a(f"s_branch L_ms_{uniq}_d")
    a.label(f"L_ms_{uniq}_s")
    for i in instr_fmt: a(i.format(sc="sc1"))
    a.label(f"L_ms_{uniq}_d")

def reduce4(a, acc, uniq, wsrc_slot):
    pass

def pk_add(a, d, x, y): a(f"v_pk_add_f32 v[{d}:{d+1}], v[{x}:{x+1}], v[{y}:{y+1}]")

def tail(a, cfg):
    L = V_LANE
    T = S_A
    WS = f"s[{S_WS}:{S_WS+3}]"
    WO1, WO0 = 98304, 131072
    OST = 98304
    a(f"s_lshr_b32 s{S_RB}, s{S_H}, 3")
    a(f"s_and_b32 s{S_CB}, s{S_H}, 7")
    a(f"s_lshr_b32 s{S_RB2}, s{S_H}, 4")
    a(f"s_and_b32 s{T+4}, s{S_H}, 15")
    a(f"s_mul_i32 s{T+4}, s{T+4}, {8*21846}")
    a(f"s_lshr_b32 s{S_T0F}, s{T+4}, 16")
    a(f"s_lshl_b32 s{T+4}, s{S_J}, 3")
    a(f"s_add_u32 s{T+4}, s{T+4}, s{S_W}")
    a(f"s_lshl_b32 s{T+4}, s{T+4}, 5")
    a(f"s_add_u32 s{T+4}, s{T+4}, s{S_H}")
    a(f"s_lshl_b32 s{T+4}, s{T+4}, 10")
    a(f"s_add_u32 s{T+4}, s{T+4}, {WS_OF}")
    mode_store(a, [f"buffer_store_dwordx4 v[4:7], v{V_L16}, {WS}, s{T+4} offen {{sc}}"], "o")
    FT, TT, HF = T+11, T+12, T+13
    a(f"s_lshr_b32 s{FT}, s{S_W}, 2")
    a(f"s_bfe_u32 s{TT}, s{S_W}, 0x10001")
    a(f"s_and_b32 s{HF}, s{S_W}, 1")
    COL, ROW, XO = T+14, T+15, T+16
    a(f"s_lshl_b32 s{COL}, s{S_CB}, 6")
    a(f"s_lshl_b32 s{T+5}, s{FT}, 5")
    a(f"s_add_u32 s{COL}, s{COL}, s{T+5}")
    a(f"s_lshl_b32 s{T+5}, s{HF}, 4")
    a(f"s_add_u32 s{COL}, s{COL}, s{T+5}")
    a(f"s_lshl_b32 s{ROW}, s{S_J}, 8")
    a(f"s_lshl_b32 s{T+5}, s{S_RB}, 6")
    a(f"s_add_u32 s{ROW}, s{ROW}, s{T+5}")
    a(f"s_lshl_b32 s{T+5}, s{TT}, 5")
    a(f"s_add_u32 s{ROW}, s{ROW}, s{T+5}")
    a(f"v_mov_b32 v{V_B1K}, v{V_B1R}")
    stamp(a, cfg, 15)
    a("s_barrier")
    a(f"s_lshl_b32 s{T+5}, s{S_W}, 16")
    a(f"s_lshl_b32 s{T+6}, s{S_CB}, 7")
    a(f"s_add_u32 s{T+5}, s{T+5}, s{T+6}")
    a(f"s_lshl_b32 s{T+6}, s{S_W}, 12")
    for i in range(4):
        a(f"s_add_u32 m0, s{T+6}, {WO1 + i*1024}")
        a(f"s_add_u32 s{T+7}, s{T+5}, {i*16*1024 + 64}")
        a(f"buffer_load_dwordx4 v114, s[{S_WO}:{S_WO+3}], s{T+7} offen lds")
    a(f"s_lshl_b32 s{T+5}, s{ROW}, 10")
    a(f"s_lshl_b32 s{T+6}, s{COL}, 1")
    a(f"s_add_u32 s{XO}, s{T+5}, s{T+6}")
    a("s_waitcnt vmcnt(4)")
    a("s_barrier")
    barrier_team(a, cfg, 2, 32, None, "o")
    tr_addr(a, 10, 0, 11, 9)
    a(f"s_cmp_eq_u32 s{FT}, 0")
    a(f"s_mov_b32 s{T+5}, {WO1}")
    a(f"s_cselect_b32 s{T+5}, {WO0}, s{T+5}")
    a(f"s_lshl_b32 s{T+6}, s{HF}, 14")
    a(f"s_add_u32 s{T+5}, s{T+5}, s{T+6}")
    a(f"v_add_u32 v10, s{T+5}, v10")
    a("s_waitcnt vmcnt(0)")
    a("s_barrier")
    for ks in range(16):
        if ks in (7, 14): a("s_waitcnt lgkmcnt(0)")
        a(f"ds_read_b64_tr_b16 v[{80+4*ks}:{81+4*ks}], v10 offset:{ks*1024}")
        a(f"ds_read_b64_tr_b16 v[{82+4*ks}:{83+4*ks}], v10 offset:{ks*1024+512}")
    for r in range(48, 64): a(f"v_mov_b32 v{r}, 0")
    a("s_waitcnt lgkmcnt(0)")
    a("s_barrier")
    stamp(a, cfg, 16)
    a(f"s_lshr_b32 s{T+5}, s{ROW}, 5")
    a(f"s_lshl_b32 s{T+5}, s{T+5}, 5")
    a(f"s_lshl_b32 s{T+6}, s{HF}, 4")
    a(f"s_lshl_b32 s{T+7}, s{FT}, 3")
    a(f"s_add_u32 s{T+6}, s{T+6}, s{T+7}")
    a(f"s_add_u32 s{T+5}, s{T+5}, s{T+6}")
    a(f"s_lshl_b32 s{T+5}, s{T+5}, 10")
    a(f"s_add_u32 s{T+5}, s{T+5}, {WS_OF}")
    a(f"s_lshl_b32 s{T+7}, s{TT}, 5")
    a(f"s_add_u32 s{T+6}, s{T+6}, s{T+7}")
    a(f"s_lshl_b32 s{T+6}, s{T+6}, 10")
    a(f"s_add_u32 s{T+6}, s{T+6}, {OST}")
    for i in range(8):
        a(f"s_add_u32 m0, s{T+6}, {i*1024}")
        a(f"s_add_u32 s{T+7}, s{T+5}, {i*1024}")
        a(f"buffer_load_dwordx4 v{V_L16}, {WS}, s{T+7} offen sc1 lds")
    a(f"s_lshl_b32 s{T+6}, s{TT}, 5")
    a(f"s_lshl_b32 s{T+7}, s{HF}, 4")
    a(f"s_add_u32 s{T+6}, s{T+6}, s{T+7}")
    a(f"s_lshl_b32 s{T+6}, s{T+6}, 10")
    a(f"s_add_u32 s{T+6}, s{T+6}, {OST}")
    a(f"v_add_u32 v8, s{T+6}, v{V_L16}")
    wtile_voff(a, 10, 2752, 11)
    W1O, W1M = T+17, T+18
    a(f"s_mul_i32 s{W1O}, s{S_W}, {64*2752}")
    a(f"s_lshl_b32 s{T+6}, s{S_T0F}, 6")
    a(f"s_add_u32 s{W1O}, s{W1O}, s{T+6}")
    a(f"s_lshl_b32 s{W1M}, s{S_W}, 12")
    def w1_dma(p):
        ft, i = p // 4, p % 4
        a(f"s_add_u32 m0, s{W1M}, {T_W1 + ft*32768 + i*1024}")
        a(f"s_add_u32 s{T+7}, s{W1O}, {i*16*2752 + ft*64}")
        a(f"buffer_load_dwordx4 v10, s[{S_W1}:{S_W1+3}], s{T+7} offen lds")
    order = [0, 1, 2, 3, 8, 9, 10, 11, 4, 5, 6, 7, 12, 13, 14, 15]
    np_ = 0
    for st in range(2):
        a(f"s_waitcnt vmcnt({4 if st == 0 else np_})")
        a("s_barrier")
        ksl = order[8*st:8*st+8]
        for q in range(2): a(f"ds_read_b128 v[{16+4*q}:{19+4*q}], v8 offset:{ksl[q]*1024}")
        for q, ks in enumerate(ksl):
            if q + 2 < 8: a(f"ds_read_b128 v[{16+4*((q+2)%4)}:{19+4*((q+2)%4)}], v8 offset:{ksl[q+2]*1024}")
            a(f"s_waitcnt lgkmcnt({min(2, 7-q)})")
            b = 16 + 4*(q % 4)
            a(f"v_mfma_f32_32x32x16_bf16 v[48:63], v[{80+4*ks}:{83+4*ks}], v[{b}:{b+3}], v[48:63]")
            if q % 2 == 1 and np_ < 12 and (st == 1 or q >= 3):
                w1_dma(np_); np_ += 1
    stamp(a, cfg, 17)
    XCH = 0 + OST
    a(f"s_lshl_b32 s{T+5}, s{S_W}, 11")
    a(f"s_add_u32 s{T+5}, s{T+5}, {XCH}")
    a(f"v_add_u32 v8, s{T+5}, v{V_L16}")
    a(f"s_xor_b32 s{T+5}, s{T+5}, 2048")
    a(f"v_add_u32 v9, s{T+5}, v{V_L16}")
    while np_ < 12:
        w1_dma(np_); np_ += 1
    a("s_barrier")
    a(f"s_cmp_eq_u32 s{HF}, 0")
    a("s_cbranch_scc0 L_op_k1")
    for kh in range(2):
        if kh == 1: a.label("L_op_k1")
        send = 56 if kh == 0 else 48
        keep = 48 if kh == 0 else 56
        a(f"ds_write_b128 v8, v[{send}:{send+3}]")
        a(f"ds_write_b128 v8, v[{send+4}:{send+7}] offset:1024")
        for n in range(4):
            a(f"v_lshlrev_b32 v{24+2*n}, 16, v{V_XR+n}")
            a(f"v_and_b32 v{25+2*n}, 0xffff0000, v{V_XR+n}")
        for n in range(4): pk_add(a, V_H+2*n, keep+2*n, 24+2*n)
        if kh == 0: a("s_branch L_op_j")
    a.label("L_op_j")
    a("s_waitcnt lgkmcnt(0)")
    a("s_barrier")
    a("ds_read_b128 v[16:19], v9")
    a("ds_read_b128 v[20:23], v9 offset:1024")
    a(f"s_lshr_b32 s{T+5}, s{ROW}, 5")
    a(f"s_lshl_b32 s{T+6}, s{T+5}, 5")
    a(f"s_lshr_b32 s{T+7}, s{COL}, 4")
    a(f"s_add_u32 s{T+8}, s{T+6}, s{T+7}")
    a(f"s_lshl_b32 s{T+6}, s{T+8}, 10")
    a(f"s_add_u32 s{T+6}, s{T+6}, {WS_HF}")
    a(f"s_lshl_b32 s{T+8}, s{T+8}, 8")
    a(f"s_add_u32 s{T+8}, s{T+8}, {WS_HST}")
    a("s_waitcnt lgkmcnt(0)")
    for n in range(4): pk_add(a, V_H+2*n, V_H+2*n, 16+2*n)
    for n in range(4):
        a(f"v_cvt_pk_bf16_f32 v{32+n}, v{V_H+2*n}, v{V_H+2*n+1}")
    mode_store(a, [f"buffer_store_dwordx4 v[32:35], v{V_L16}, {WS}, s{T+6} offen {{sc}}"], "h")
    for n in range(4):
        a(f"v_lshlrev_b32 v{24+2*n}, 16, v{32+n}")
        a(f"v_and_b32 v{25+2*n}, 0xffff0000, v{32+n}")
    a("v_pk_mul_f32 v[16:17], v[24:25], v[24:25]")
    pk_add(a, 18, 24, 26)
    for n in range(1, 4):
        a(f"v_pk_fma_f32 v[16:17], v[{24+2*n}:{25+2*n}], v[{24+2*n}:{25+2*n}], v[16:17]")
    pk_add(a, 20, 28, 30)
    pk_add(a, 18, 18, 20)
    a("v_add_f32 v40, v18, v19")
    a("v_add_f32 v41, v16, v17")
    a(f"v_and_b32 v8, 31, v{L}")
    a("v_mov_b32 v42, v40")
    a("v_mov_b32 v43, v41")
    a("v_lshlrev_b32 v8, 3, v8")
    a("s_nop 0")
    a("v_permlane32_swap_b32 v40, v42")
    a("v_permlane32_swap_b32 v41, v43")
    a("s_nop 0")
    pk_add(a, 40, 40, 42)
    a("s_mov_b64 exec, 0xffffffff")
    mode_store(a, [f"buffer_store_dwordx2 v[40:41], v8, {WS}, s{T+8} offen {{sc}}"], "hs")
    a("s_mov_b64 exec, -1")
    CS1 = OST + 32768
    B1F = CS1 + 768
    a("s_waitcnt vmcnt(0) lgkmcnt(0)")
    a("s_barrier")
    stamp(a, cfg, 18)
    a(f"s_lshl_b32 s{T+8}, s{S_RB2}, 4")
    barrier_team(a, cfg, 3, 16, T+8, "h")
    a(f"s_sub_u32 s{T+5}, s{S_W}, 1")
    a(f"s_cmp_ge_u32 s{T+5}, 6")
    a("s_cbranch_scc1 L_f1_nocs")
    tr_addr(a, 10, T_W1, 11, 9)
    a(f"s_lshr_b32 s{T+6}, s{T+5}, 1")
    a(f"s_and_b32 s{T+7}, s{T+5}, 1")
    a(f"s_lshl_b32 s{T+5}, s{T+6}, 15")
    a(f"s_lshl_b32 s{T+8}, s{T+7}, 14")
    a(f"s_add_u32 s{T+5}, s{T+5}, s{T+8}")
    a(f"v_add_u32 v10, s{T+5}, v10")
    for r in range(4): a(f"v_mov_b32 v{20+r}, 0x3f803f80")
    for r in range(16): a(f"v_mov_b32 v{48+r}, 0")
    for ks in range(16):
        if ks in (4, 8, 12):
            a("s_waitcnt lgkmcnt(0)")
            for q in range(ks-4, ks):
                a(f"v_mfma_f32_32x32x16_bf16 v[48:63], v[{64+4*(q%4)}:{67+4*(q%4)}], v[20:23], v[48:63]")
        a(f"ds_read_b64_tr_b16 v[{64+4*(ks%4)}:{65+4*(ks%4)}], v10 offset:{ks*1024}")
        a(f"ds_read_b64_tr_b16 v[{66+4*(ks%4)}:{67+4*(ks%4)}], v10 offset:{ks*1024+512}")
    a("s_waitcnt lgkmcnt(0)")
    for q in range(12, 16):
        a(f"v_mfma_f32_32x32x16_bf16 v[48:63], v[{64+4*(q%4)}:{67+4*(q%4)}], v[20:23], v[48:63]")
    a(f"s_mul_i32 s{T+7}, s{T+7}, 384")
    a(f"s_lshl_b32 s{T+6}, s{T+6}, 7")
    a(f"s_add_u32 s{T+7}, s{T+7}, s{T+6}")
    a(f"s_add_u32 s{T+7}, s{T+7}, {CS1}")
    a(f"v_lshrrev_b32 v9, 5, v{L}")
    a("v_lshlrev_b32 v9, 4, v9")
    a(f"v_add_u32 v9, s{T+7}, v9")
    a(f"s_mov_b32 exec_lo, 1")
    a(f"s_mov_b32 exec_hi, 1")
    a("s_nop 7")
    for jj in range(4):
        a(f"ds_write_b128 v9, v[{48+4*jj}:{51+4*jj}] offset:{jj*32}")
    a("s_mov_b64 exec, -1")
    a.label("L_f1_nocs")
    a(f"s_cmp_lg_u32 s{S_W}, 7")
    a("s_cbranch_scc1 L_f1_nob1")
    a(f"v_lshlrev_b32 v8, 3, v{L}")
    a(f"v_add_u32 v8, {B1F}, v8")
    a(f"v_lshlrev_b32 v74, 16, v{V_B1K}")
    a(f"v_and_b32 v75, 0xffff0000, v{V_B1K}")
    a(f"v_cmp_gt_u32 vcc, 48, v{L}")
    a(f"s_and_saveexec_b64 s[{T+6}:{T+7}], vcc")
    a("ds_write_b64 v8, v[74:75]")
    a("s_mov_b64 exec, -1")
    a.label("L_f1_nob1")
    a("s_waitcnt lgkmcnt(0)")
    a("s_barrier")
    stamp(a, cfg, 19)
    TT4, KH = T+11, T+12
    a(f"s_lshr_b32 s{TT4}, s{S_W}, 1")
    a(f"s_and_b32 s{KH}, s{S_W}, 1")
    TILE = T+13
    a(f"s_lshl_b32 s{TILE}, s{S_J}, 3")
    a(f"s_lshl_b32 s{T+5}, s{S_RB2}, 2")
    a(f"s_add_u32 s{TILE}, s{TILE}, s{T+5}")
    a(f"s_add_u32 s{TILE}, s{TILE}, s{TT4}")
    a(f"s_lshl_b32 s{T+5}, s{TILE}, 5")
    a(f"s_lshl_b32 s{T+6}, s{KH}, 4")
    a(f"s_add_u32 s{T+5}, s{T+5}, s{T+6}")
    a(f"s_lshl_b32 s{T+5}, s{T+5}, 10")
    a(f"s_add_u32 s{T+5}, s{T+5}, {WS_HF}")
    HO = T+17
    a(f"s_mov_b32 s{HO}, s{T+5}")
    def h_load(ks):
        if ks and ks % 4 == 0: a(f"s_add_u32 s{HO}, s{HO}, 4096")
        a(f"buffer_load_dwordx4 v[{16+4*ks}:{19+4*ks}], v{V_L16}, {WS}, s{HO} offen offset:{(ks%4)*1024} sc1")
    PD = 5
    for ks in range(PD): h_load(ks)
    SO = T+18
    a(f"s_lshl_b32 s{SO}, s{TILE}, 13")
    a(f"s_add_u32 s{SO}, s{SO}, {WS_HST}")
    a(f"v_and_b32 v8, 31, v{L}")
    a("v_lshlrev_b32 v8, 3, v8")
    a(f"v_lshrrev_b32 v9, 5, v{L}")
    a("v_lshl_add_u32 v8, v9, 12, v8")
    tr_addr(a, 10, T_W1, 11, 9)
    a(f"s_lshl_b32 s{T+5}, s{KH}, 14")
    a(f"v_add_u32 v10, s{T+5}, v10")
    a("v_add_u32 v11, 32768, v10")
    a("v_add_u32 v9, 0x10000, v10")
    WA = [10, 11, 9]
    for r in range(80, 128): a(f"v_mov_b32 v{r}, 0")
    W1B = [128, 140]
    SP = 0
    def w1_reads(ks):
        b = W1B[ks % 2]
        for ft in range(3):
            a(f"ds_read_b64_tr_b16 v[{b+4*ft}:{b+4*ft+1}], v{WA[ft]} offset:{ks*1024}")
            a(f"ds_read_b64_tr_b16 v[{b+4*ft+2}:{b+4*ft+3}], v{WA[ft]} offset:{ks*1024+512}")
    w1_reads(0)
    issued = [("h", k) for k in range(PD)]
    def pend_after(item):
        return len(issued) - 1 - issued.index(item)
    for ks in range(16):
        if ks < 15: w1_reads(ks + 1)
        if ks + PD < 16:
            h_load(ks + PD); issued.append(("h", ks + PD))
        elif ks >= 11 and ks < 15:
            for q in range(4*(ks-11), 4*(ks-11)+4):
                a(f"buffer_load_dwordx2 v[{16+2*q}:{17+2*q}], v8, {WS}, s{SO} offen offset:{q*256} sc1")
                issued.append(("s", q))
        a(f"s_waitcnt vmcnt({pend_after(('h', ks))}) lgkmcnt({6 if ks < 15 else 0})")
        b = W1B[ks % 2]
        for ft in range(3):
            a(f"v_mfma_f32_32x32x16_bf16 v[{80+16*ft}:{95+16*ft}], v[{b+4*ft}:{b+4*ft+3}], v[{16+4*ks}:{19+4*ks}], v[{80+16*ft}:{95+16*ft}]")
    stamp(a, cfg, 20)
    XB = 0
    a(f"s_mul_i32 s{T+5}, s{S_W}, 6144")
    a(f"v_add_u32 v10, s{T+5}, v{V_L16}")
    a(f"s_xor_b32 s{T+6}, s{S_W}, 1")
    a(f"s_mul_i32 s{T+6}, s{T+6}, 6144")
    a(f"v_add_u32 v11, s{T+6}, v{V_L16}")
    a("s_waitcnt vmcnt(0)")
    for n in range(8): pk_add(a, 16+2*n, 16+2*n, 32+2*n) if False else None
    for n in range(8): a(f"v_pk_add_f32 v[{16+2*n}:{17+2*n}], v[{16+2*n}:{17+2*n}], v[{32+2*n}:{33+2*n}]")
    for n in range(4): a(f"v_pk_add_f32 v[{16+2*n}:{17+2*n}], v[{16+2*n}:{17+2*n}], v[{24+2*n}:{25+2*n}]")
    for n in range(2): a(f"v_pk_add_f32 v[{16+2*n}:{17+2*n}], v[{16+2*n}:{17+2*n}], v[{20+2*n}:{21+2*n}]")
    a("v_pk_add_f32 v[16:17], v[16:17], v[18:19]")
    a("s_barrier")
    a("v_mov_b32 v18, v16")
    a("v_mov_b32 v19, v17")
    a(f"s_mul_i32 s{T+5}, s{KH}, 48")
    a(f"s_lshl_b32 s{T+6}, s{S_T0F}, 5")
    F0 = T+14
    a(f"s_add_u32 s{F0}, s{T+5}, s{T+6}")
    a("v_permlane32_swap_b32 v16, v18")
    a("v_permlane32_swap_b32 v17, v19")
    a(f"s_cmp_eq_u32 s{KH}, 0")
    a("s_cbranch_scc0 L_f1_k1")
    for kh in range(2):
        if kh == 1: a.label("L_f1_k1")
        send = 80 + (24 if kh == 0 else 0)
        keep = 80 + (0 if kh == 0 else 24)
        for n in range(6):
            a(f"ds_write_b128 v10, v[{send+4*n}:{send+4*n+3}] offset:{n*1024}")
        a(f"v_lshrrev_b32 v9, 5, v{L}")
        a("v_lshlrev_b32 v9, 4, v9")
        a(f"v_add_u32 v9, {CS1 + kh*192}, v9")
        for n in range(3):
            for jp in range(2):
                a(f"ds_read_b128 v[{32+8*n+4*jp}:{35+8*n+4*jp}], v9 offset:{n*64 + jp*32}")
        a("s_waitcnt lgkmcnt(6)")
        for n in range(3):
            for jp in range(2):
                a(f"ds_read_b128 v[{56+8*n+4*jp}:{59+8*n+4*jp}], v9 offset:{384 + n*64 + jp*32}")
        a("v_pk_add_f32 v[16:17], v[16:17], v[18:19]")
        a("v_mul_f32 v16, 0x3b000000, v16")
        a("v_mul_f32 v17, 0x3b000000, v17")
        a("v_fma_f32 v17, -v16, v16, v17")
        a("v_add_f32 v17, 0x3727c5ac, v17")
        a("v_rsq_f32 v18, v17")
        a("s_waitcnt lgkmcnt(0)")
        for n in range(12): pk_add(a, 32+2*n, 32+2*n, 56+2*n)
        for n in range(3):
            for jp in range(2):
                a(f"ds_read_b128 v[{56+8*n+4*jp}:{59+8*n+4*jp}], v9 offset:{768 + n*64 + jp*32}")
        a("v_mul_f32 v20, v16, v18")
        a("s_barrier")
        for n in range(6):
            a(f"ds_read_b128 v[{128+4*n}:{131+4*n}], v11 offset:{n*1024}")
        a("s_waitcnt lgkmcnt(6)")
        for n in range(12):
            a(f"v_pk_fma_f32 v[{56+2*n}:{57+2*n}], v[{32+2*n}:{33+2*n}], v[20:21], v[{56+2*n}:{57+2*n}] op_sel_hi:[1,0,1] neg_lo:[0,1,0] neg_hi:[0,1,0]")
        a("s_waitcnt lgkmcnt(0)")
        for n in range(12): pk_add(a, keep+2*n, keep+2*n, 128+2*n)
        for n in range(12):
            a(f"v_pk_fma_f32 v[{keep+2*n}:{keep+2*n+1}], v[{keep+2*n}:{keep+2*n+1}], v[18:19], v[{56+2*n}:{57+2*n}] op_sel_hi:[1,0,1]")
        for i in range(24):
            a(f"v_max_f32 v{32+i}, 0, v{keep+i}")
        for n in range(12):
            a(f"v_pk_mul_f32 v[{32+2*n}:{33+2*n}], v[{32+2*n}:{33+2*n}], v[{32+2*n}:{33+2*n}]")
        for n in range(12):
            a(f"v_cvt_pk_bf16_f32 v{16+n}, v{32+2*n}, v{33+2*n}")
        if kh == 0: a("s_branch L_f1_j")
    a.label("L_f1_j")
    a(f"s_mul_i32 s{T+5}, s{TILE}, 86")
    a(f"s_lshr_b32 s{T+6}, s{F0}, 4")
    a(f"s_add_u32 s{T+5}, s{T+5}, s{T+6}")
    a(f"s_lshl_b32 s{T+5}, s{T+5}, 10")
    a(f"s_add_u32 s{T+5}, s{T+5}, {WS_GF}")
    mode_store(a, [f"buffer_store_dwordx4 v[{16+4*n}:{19+4*n}], v{V_L16}, {WS}, s{T+5} offen offset:{n*1024} {{sc}}" for n in range(3)], "g")
    a("s_waitcnt vmcnt(0)")
    a("s_barrier")
    stamp(a, cfg, 21)
    ffn2(a, cfg)

def ffn2(a, cfg):
    L = V_LANE
    T = S_A
    WS = f"s[{S_WS}:{S_WS+3}]"
    FT, KQ = T+11, T+12
    a(f"s_lshr_b32 s{FT}, s{S_W}, 2")
    a(f"s_and_b32 s{KQ}, s{S_W}, 3")
    gbar(a, cfg)
    TILE0 = T+13
    a(f"s_lshl_b32 s{TILE0}, s{S_J}, 3")
    a(f"s_lshl_b32 s{T+5}, s{S_RB}, 1")
    a(f"s_add_u32 s{TILE0}, s{TILE0}, s{T+5}")
    GO, GM = T+17, T+18
    a(f"s_add_u32 s{T+5}, s{TILE0}, s{FT}")
    a(f"s_mul_i32 s{T+5}, s{T+5}, 86")
    a(f"s_mul_i32 s{T+6}, s{KQ}, 22")
    a(f"s_add_u32 s{T+5}, s{T+5}, s{T+6}")
    a(f"s_lshl_b32 s{T+5}, s{T+5}, 10")
    a(f"s_add_u32 s{GO}, s{T+5}, {WS_GF}")
    a(f"s_mul_i32 s{T+6}, s{KQ}, 40960")
    a(f"v_add_u32 v8, s{T+6}, v{V_L16}")
    a(f"s_lshl_b32 s{T+7}, s{FT}, 10")
    a(f"s_add_u32 s{GM}, s{T+6}, s{T+7}")
    D0, D1 = T+9, T+10
    a(f"s_mul_i32 s{T+5}, s{TILE0}, 86")
    a(f"s_mul_i32 s{T+7}, s{KQ}, 22")
    a(f"s_add_u32 s{T+5}, s{T+5}, s{T+7}")
    a(f"s_add_u32 s{T+5}, s{T+5}, 20")
    a(f"s_lshl_b32 s{T+5}, s{T+5}, 10")
    a(f"s_add_u32 s{D0}, s{T+5}, {WS_GF}")
    a(f"s_add_u32 s{D1}, s{D0}, {86*1024}")
    a(f"s_cmp_eq_u32 s{KQ}, 3")
    a(f"s_cselect_b32 s{D0}, 0x40000000, s{D0}")
    a(f"s_cselect_b32 s{D1}, 0x40000000, s{D1}")
    for r in range(80, 112): a(f"v_mov_b32 v{r}, 0")
    a("s_barrier")
    stamp(a, cfg, 22)
    def g_dma(ks):
        a(f"s_add_u32 m0, s{GM}, {ks*2048}")
        a(f"s_add_u32 s{T+7}, s{GO}, {ks*1024}")
        a(f"buffer_load_dwordx4 v{V_L16}, {WS}, s{T+7} offen sc1 lds")
    def g_reads(ks):
        b = 16 + 8 * (ks % 4)
        a(f"ds_read_b128 v[{b}:{b+3}], v8 offset:{ks*2048}")
        a(f"ds_read_b128 v[{b+4}:{b+7}], v8 offset:{ks*2048+1024}")
    NS = 4
    nst = 20 // NS
    for ks in range(2 * NS): g_dma(ks)
    nis = 2 * NS
    for si in range(nst):
        k0, k1 = si * NS, (si + 1) * NS
        a(f"s_waitcnt vmcnt({nis - k1})")
        if cfg.f2_detail: stamp(a, cfg, 0 + si)
        a("s_barrier")
        if cfg.f2_detail: stamp(a, cfg, 5 + si)
        g_reads(k0); g_reads(k0 + 1)
        for ks in range(k0, k1):
            if ks + 2 < k1: g_reads(ks + 2)
            left = min(k1 - 1, ks + 2) - ks
            a(f"s_waitcnt lgkmcnt({2*left})")
            b = 16 + 8 * (ks % 4)
            a(f"v_mfma_f32_32x32x16_bf16 v[80:95], v[{V_W2+4*ks}:{V_W2+4*ks+3}], v[{b}:{b+3}], v[80:95]")
            if nis < 20: g_dma(nis); nis += 1
            elif nis < 24:
                q = nis - 20; nis += 1
                a(f"buffer_load_dwordx4 v[{48+4*q}:{51+4*q}], v{V_L16}, {WS}, s{D0 if q % 2 == 0 else D1} offen offset:{(q//2)*1024} sc1")
            a(f"v_mfma_f32_32x32x16_bf16 v[96:111], v[{V_W2+4*ks}:{V_W2+4*ks+3}], v[{b+4}:{b+7}], v[96:111]")
    a("s_waitcnt vmcnt(0)")
    for q in range(2):
        ks = 20 + q
        for tt in range(2):
            a(f"v_mfma_f32_32x32x16_bf16 v[{80+16*tt}:{95+16*tt}], v[{V_W2+4*ks}:{V_W2+4*ks+3}], v[{48+8*q+4*tt}:{48+8*q+4*tt+3}], v[{80+16*tt}:{95+16*tt}]")
    stamp(a, cfg, 23)
    a(f"s_lshl_b32 s{T+5}, s{FT}, 15")
    a(f"s_lshl_b32 s{T+6}, s{KQ}, 11")
    a(f"s_add_u32 s{T+5}, s{T+5}, s{T+6}")
    a(f"v_add_u32 v8, s{T+5}, v{V_L16}")
    a(f"s_lshl_b32 s{T+5}, s{S_W}, 13")
    a(f"v_add_u32 v9, s{T+5}, v{V_L16}")
    for n in range(4):
        a(f"v_lshlrev_b32 v{56+2*n}, 16, v{V_B2+n}")
        a(f"v_and_b32 v{57+2*n}, 0xffff0000, v{V_B2+n}")
    for n in range(4): pk_add(a, 56+2*n, 56+2*n, V_H+2*n)
    a("s_barrier")
    for ttp in range(2):
        for hp in range(2):
            off = (2*ttp + hp) * 8192
            r = 80 + 16*ttp + 8*hp
            a(f"ds_write_b128 v8, v[{r}:{r+3}] offset:{off}")
            a(f"ds_write_b128 v8, v[{r+4}:{r+7}] offset:{off+1024}")
    a("s_waitcnt lgkmcnt(0)")
    a("s_barrier")
    for q in range(4):
        a(f"ds_read_b128 v[{16+8*q}:{19+8*q}], v9 offset:{q*2048}")
        a(f"ds_read_b128 v[{20+8*q}:{23+8*q}], v9 offset:{q*2048+1024}")
    a(f"v_and_b32 v8, 31, v{L}")
    a("v_lshlrev_b32 v8, 10, v8")
    a(f"v_lshrrev_b32 v9, 5, v{L}")
    a("v_lshl_add_u32 v8, v9, 4, v8")
    a("s_waitcnt lgkmcnt(0)")
    for n in range(4):
        pk_add(a, 16+2*n, 16+2*n, 24+2*n)
        pk_add(a, 32+2*n, 32+2*n, 40+2*n)
    for n in range(4): pk_add(a, 16+2*n, 16+2*n, 56+2*n)
    for n in range(4): pk_add(a, 16+2*n, 16+2*n, 32+2*n)
    for n in range(4):
        a(f"v_cvt_pk_bf16_f32 v{24+n}, v{16+2*n}, v{17+2*n}")
    a("s_nop 1")
    a("v_permlane32_swap_b32 v24, v26")
    a("v_permlane32_swap_b32 v25, v27")
    a("s_nop 0")
    a(f"buffer_store_dwordx4 v[24:27], v8, s[{S_OUT}:{S_OUT+3}], s{S_A+16} offen")
    stamp(a, cfg, 24)

def gbar(a, cfg):
    T = S_A
    a(f"s_lshl_b32 s{T+8}, s{S_RB2}, 4")
    barrier_team(a, cfg, 4, 16, T+8, "g")
```

```python
import sys
from asmlib import *

NAME = "sequential_preLN__mha_block__dense_activation_squared_relu__prompt"
KNAME = NAME + "_kernel"

WS_EPOCH = 0x0
WS_KVFLAG = 0x1000
WS_TFLAG = 0x10000
WS_KV = 0x100000
WS_OF = 0x500000
WS_HF = 0x700000
WS_GF = 0x900000
WS_QF = 0x1000000
WS_KVL = 0x1200000
WS_HST = 0xE80000
WS_STAMP = 0xF00000
WS_SIZE = 0x1600000

S_X, S_WQKV, S_WS, S_WO, S_W1, S_W2, S_OUT, S_B1, S_B2 = 4, 8, 12, 16, 20, 24, 28, 32, 36
S_DBG = 40
S_J, S_H, S_W, S_TAG, S_FAST = 42, 43, 44, 45, 46
S_RERUN = 47
S_VMASK = 48
S_T0 = 50
S_KA = 52
S_BLK = 74
S_XCC = 75
S_MODE = 99
S_A = 76
S_STAMP = 96
S_STB = 98

LDS_SIZE = 163840

class Cfg:
    stamps = False
    stop_after = None
    p1_prefetch = False
    p1_detail = False
    force_slow = False
    f2_detail = False
    at_detail = False
    exp = ''
    skip_p1 = False
    attn_variant = 1
    prio = 0

def stamp(a, cfg, idx):
    if not cfg.stamps: return
    a(f"s_memtime s[{S_STAMP}:{S_STAMP+1}]")
    a("s_waitcnt lgkmcnt(0)")
    a(f"v_writelane_b32 v255, s{S_STAMP}, {idx}")

def stamp_flush(a, cfg):
    if not cfg.stamps: return
    a(f"s_memrealtime s[{S_STAMP}:{S_STAMP+1}]")
    a("s_waitcnt lgkmcnt(0)")
    a(f"v_writelane_b32 v255, s{S_STAMP}, 31")
    a(f"s_lshl_b32 s{S_STB}, s2, 3")
    a(f"s_add_u32 s{S_STB}, s{S_STB}, s{S_W}")
    a(f"s_lshl_b32 s{S_STB}, s{S_STB}, 7")
    a(f"s_add_u32 s{S_STB}, s{S_STB}, {WS_STAMP}")
    a(f"v_lshlrev_b32 v254, 2, v{V_LANE}")
    a("s_mov_b64 exec, 0xffffffff")
    a(f"buffer_store_dword v255, v254, s[{S_WS}:{S_WS+3}], s{S_STB} offen")
    a("s_mov_b64 exec, -1")

V_Q = 240
V_XRES = 244
V_B2 = 248
V_L16 = 252
V_LANE = 253

def srd(a, s, lo, hi, size):
    a(f"s_mov_b32 s{s}, s{lo}")
    a(f"s_mov_b32 s{s+1}, s{hi}")
    a(f"s_mov_b32 s{s+2}, {size}")
    a(f"s_mov_b32 s{s+3}, 0x00020000")

def prologue(a, cfg):
    a("s_cmp_ge_u32 s2, 256")
    a("s_cbranch_scc1 L_end")
    a(f"s_load_dwordx16 s[{S_KA}:{S_KA+15}], s[0:1], 0")
    a(f"s_load_dwordx4 s[{S_KA+16}:{S_KA+19}], s[0:1], 64")
    a(f"s_load_dwordx2 s[{S_KA+20}:{S_KA+21}], s[0:1], 80")
    a(f"v_and_b32 v{V_LANE}, 63, v0")
    a("v_lshrrev_b32 v2, 6, v0")
    a(f"v_lshlrev_b32 v{V_L16}, 4, v{V_LANE}")
    a(f"v_readfirstlane_b32 s{S_W}, v2")
    a(f"s_and_b32 s{S_J}, s2, 7")
    a(f"s_lshr_b32 s{S_H}, s2, 3")
    a(f"s_mov_b32 s{S_VMASK}, 0x0000ffff")
    a(f"s_mov_b32 s{S_VMASK+1}, 0x0000ffff")
    a(f"s_getreg_b32 s{S_XCC}, hwreg(HW_REG_XCC_ID, 0, 4)")
    a(f"s_mov_b32 s{S_RERUN}, 0")
    if cfg.stamps:
        a(f"s_memrealtime s[{S_STAMP}:{S_STAMP+1}]")
        a("s_waitcnt lgkmcnt(0)")
        a(f"v_writelane_b32 v255, s{S_STAMP}, 30")
        stamp(a, cfg, 29)

P1_SLOT = 32768
P1_MISC = 131072
P1_CS = P1_MISC
P1_ST = P1_MISC + 4096
P1_PR = P1_MISC + 1024
S_G, S_Q4, S_AH, S_TT = 100, 101, 3, 51

def phase1(a, cfg):
    L = V_LANE
    T = S_A
    TMP, TMP2, XO, WO_, M0B = T+9, T+10, T+4, T+1, T+2
    a(f"s_lshr_b32 s{S_G}, s{S_H}, 2")
    a(f"s_and_b32 s{S_Q4}, s{S_H}, 3")
    a(f"s_and_b32 s{S_AH}, s{S_W}, 3")
    a(f"s_lshr_b32 s{S_TT}, s{S_W}, 2")
    a(f"v_lshrrev_b32 v10, 3, v{L}")
    a(f"v_and_b32 v11, 7, v{L}")
    a(f"v_lshrrev_b32 v12, 4, v{L}")
    a(f"s_and_b32 s{TMP}, s{S_W}, 1")
    a(f"s_lshl_b32 s{TMP}, s{TMP}, 2")
    a(f"v_add_u32 v13, s{TMP}, v12")
    a(f"v_xor_b32 v13, v11, v13")
    a(f"v_lshlrev_b32 v13, 4, v13")
    a(f"v_lshl_add_u32 v2, v10, 10, v13")
    a(f"v_mul_u32_u24 v10, 3072, v10")
    a(f"v_and_b32 v12, 1, v12")
    a(f"v_lshrrev_b32 v13, 1, v11")
    a(f"v_and_b32 v14, 1, v11")
    a(f"v_lshl_add_u32 v10, v14, 4, v10")
    a(f"v_xor_b32 v14, v13, v12")
    a(f"v_lshl_add_u32 v3, v14, 5, v10")
    a(f"v_xor_b32 v14, 2, v14")
    a(f"v_lshl_add_u32 v4, v14, 5, v10")
    a(f"v_add_u32 v4, 1024, v4")
    a(f"v_lshlrev_b32 v12, 1, v12")
    a(f"v_xor_b32 v14, v13, v12")
    a(f"v_lshl_add_u32 v5, v14, 5, v10")
    a(f"v_add_u32 v5, 2048, v5")
    a(f"s_lshl_b32 s{XO}, s{S_J}, 8")
    a(f"s_lshl_b32 s{TMP}, s{S_Q4}, 6")
    a(f"s_add_u32 s{XO}, s{XO}, s{TMP}")
    a(f"s_lshl_b32 s{TMP}, s{S_W}, 3")
    a(f"s_add_u32 s{XO}, s{XO}, s{TMP}")
    a(f"s_lshl_b32 s{XO}, s{XO}, 10")
    a(f"s_mul_i32 s{WO_}, s{TMP}, 3072")
    a(f"s_lshl_b32 s{TMP}, s{S_G}, 7")
    a(f"s_add_u32 s{WO_}, s{WO_}, s{TMP}")
    a(f"s_lshl_b32 s{M0B}, s{S_W}, 10")
    a("s_waitcnt lgkmcnt(0)")
    k = S_KA
    srd(a, S_X, k, k+1, 2097152)
    srd(a, S_WQKV, k+2, k+3, 1572864)
    srd(a, S_WS, k+20, k+21, WS_SIZE)
    def group(c):
        base = (c % 4) * P1_SLOT
        a(f"s_add_u32 m0, s{M0B}, {base}")
        a(f"s_add_u32 s{TMP}, s{XO}, {c*128}")
        a(f"buffer_load_dwordx4 v2, s[{S_X}:{S_X+3}], s{TMP} offen lds")
        a(f"s_add_u32 m0, s{M0B}, {base+8192}")
        a(f"s_add_u32 s{TMP}, s{WO_}, {c*64*3072}")
        a(f"buffer_load_dwordx4 v3, s[{S_WQKV}:{S_WQKV+3}], s{TMP} offen lds")
        a(f"s_add_u32 m0, s{M0B}, {base+16384}")
        a("s_nop 0")
        a(f"buffer_load_dwordx4 v4, s[{S_WQKV}:{S_WQKV+3}], s{TMP} offen lds")
        a(f"s_add_u32 m0, s{M0B}, {base+24576}")
        a("s_nop 0")
        a(f"buffer_load_dwordx4 v5, s[{S_WQKV}:{S_WQKV+3}], s{TMP} offen lds")
    a("v_mov_b32 v30, 0")
    a(f"buffer_load_dword v31, v30, s[{S_WS}:{S_WS+3}], 0 offen")
    group(0)
    if cfg.p1_prefetch:
        a(f"s_cmp_ge_u32 s{S_W}, 6")
        a("s_cbranch_scc1 L_p1_pfx")
        a(f"s_and_b32 s{TMP}, s{S_W}, 1")
        a(f"s_lshl_b32 s{TMP}, s{TMP}, 6")
        a(f"s_lshl_b32 s{TMP2}, s{S_Q4}, 7")
        a(f"s_add_u32 s{TMP}, s{TMP}, s{TMP2}")
        a(f"s_mul_i32 s{TMP}, s{TMP}, 3072")
        a(f"s_lshr_b32 s{TMP2}, s{S_W}, 1")
        a(f"s_lshl_b32 s{TMP2}, s{TMP2}, 10")
        a(f"s_add_u32 s{TMP}, s{TMP}, s{TMP2}")
        a(f"s_lshl_b32 s{TMP2}, s{S_G}, 7")
        a(f"s_add_u32 s{TMP}, s{TMP}, s{TMP2}")
        a(f"v_mul_u32_u24 v40, 3072, v{L}")
        a(f"buffer_load_dword v41, v40, s[{S_WQKV}:{S_WQKV+3}], s{TMP} offen")
        a(f"buffer_load_dword v42, v40, s[{S_WQKV}:{S_WQKV+3}], s{TMP} offen offset:64")
        a("s_branch L_p1_pfd")
        a.label("L_p1_pfx")
        a(f"s_lshl_b32 s{TMP}, s{S_J}, 8")
        a(f"s_lshl_b32 s{TMP2}, s{S_Q4}, 6")
        a(f"s_add_u32 s{TMP}, s{TMP}, s{TMP2}")
        a(f"s_lshl_b32 s{TMP2}, s{S_G}, 3")
        a(f"s_add_u32 s{TMP}, s{TMP}, s{TMP2}")
        a(f"s_lshl_b32 s{TMP}, s{TMP}, 10")
        a(f"v_lshlrev_b32 v40, 7, v{L}")
        a(f"buffer_load_dword v41, v40, s[{S_X}:{S_X+3}], s{TMP} offen")
        a(f"buffer_load_dword v42, v40, s[{S_X}:{S_X+3}], s{TMP} offen offset:64")
        a.label("L_p1_pfd")
    a("s_barrier")
    group(1)
    a(f"v_and_b32 v20, 31, v{L}")
    a(f"v_lshrrev_b32 v21, 5, v{L}")
    a(f"v_bfe_u32 v22, v{L}, 1, 3")
    a(f"v_xor_b32 v22, v21, v22")
    a(f"v_lshlrev_b32 v22, 4, v22")
    a(f"v_lshl_add_u32 v22, v20, 7, v22")
    a(f"s_lshl_b32 s{TMP}, s{S_TT}, 12")
    a(f"v_add_u32 v8, s{TMP}, v22")
    a(f"v_xor_b32 v9, 32, v8")
    a(f"v_xor_b32 v10, 64, v8")
    a(f"v_xor_b32 v11, 96, v8")
    a(f"s_lshl_b32 s{TMP}, s{S_AH}, 5")
    a(f"v_xor_b32 v7, s{TMP}, v8")
    a(f"v_bfe_u32 v20, v{L}, 2, 2")
    a(f"v_lshl_add_u32 v23, v21, 3, v20")
    a(f"v_lshlrev_b32 v23, 7, v23")
    a(f"v_and_b32 v22, 3, v{L}")
    a(f"v_lshl_add_u32 v23, v22, 3, v23")
    a(f"v_bfe_u32 v24, v{L}, 3, 1")
    a(f"v_bfe_u32 v25, v{L}, 4, 1")
    a(f"v_lshlrev_b32 v26, 1, v25")
    a(f"v_xor_b32 v26, v26, v24")
    a(f"v_xor_b32 v26, s{S_AH}, v26")
    a(f"v_lshl_add_u32 v12, v26, 5, v23")
    a(f"v_lshl_add_u32 v12, v25, 13, v12")
    a(f"v_add_u32 v12, 8192, v12")
    a(f"s_and_b32 s{TMP}, s{S_AH}, 2")
    a(f"v_lshlrev_b32 v26, 1, v24")
    a(f"v_or_b32 v25, s{TMP}, v25")
    a(f"v_xor_b32 v26, v26, v25")
    a(f"v_lshl_add_u32 v13, v26, 5, v23")
    a(f"v_add_u32 v13, 24576, v13")
    a("v_mov_b32 v18, 0x3f803f80")
    for r in (14, 15, 16, 17, 22, 23): a(f"v_mov_b32 v{r}, 0")
    for r in range(48, 80): a(f"v_mov_b32 v{r}, 0")
    a("s_barrier")
    group(2); group(3)
    a(f"s_cmp_ge_u32 s{S_W}, 3")
    a("s_cbranch_scc1 L_p1_nopt")
    a(f"s_lshl_b32 s{TMP}, s{S_H}, 3")
    a(f"s_add_u32 s{TMP}, s{TMP}, s{S_J}")
    a(f"s_lshl_b32 s{TMP2}, s{TMP}, 14")
    a(f"s_add_u32 s{TMP2}, s{TMP2}, {WS_KVL - 8192}")
    a(f"s_lshl_b32 s{TMP}, s{TMP}, 13")
    a(f"s_add_u32 s{TMP}, s{TMP}, {WS_QF}")
    a(f"s_cmp_eq_u32 s{S_W}, 0")
    a(f"s_cselect_b32 s{TMP}, s{TMP}, s{TMP2}")
    a(f"s_lshl_b32 s{TMP2}, s{S_W}, 13")
    a(f"s_add_u32 s{TMP}, s{TMP}, s{TMP2}")
    a(f"v_lshlrev_b32 v40, 7, v{L}")
    a(f"buffer_load_dword v41, v40, s[{S_WS}:{S_WS+3}], s{TMP} offen")
    a.label("L_p1_nopt")
    srd(a, S_WO, k+4, k+5, 524288)
    srd(a, S_W1, k+8, k+9, 1409024)
    srd(a, S_B1, k+10, k+11, 2752)
    srd(a, S_W2, k+12, k+13, 1409024)
    srd(a, S_B2, k+14, k+15, 1024)
    srd(a, S_OUT, k+16, k+17, 2097152)
    a(f"s_mov_b32 s{S_DBG}, s{k+18}")
    a(f"s_mov_b32 s{S_DBG+1}, s{k+19}")
    stamp(a, cfg, 0)
    a(f"s_waitcnt vmcnt({14 if cfg.p1_prefetch else 12})")
    a(f"v_readfirstlane_b32 s{S_TAG}, v31")
    a("s_waitcnt lgkmcnt(0)")
    a(f"s_mul_i32 s{S_TAG}, s{S_TAG}, 1664525")
    a(f"s_add_u32 s{S_TAG}, s{S_TAG}, 1013904223")
    a("s_barrier")
    stamp(a, cfg, 1)
    XB = [80 + 4*i for i in range(4)]
    XS = 96
    WQ = [112 + 8*i for i in range(4)]; WVr = [116 + 8*i for i in range(4)]
    def reads(c, ks, owner):
        o = (c % 4) * P1_SLOT
        a(f"ds_read_b128 v[{XB[ks]}:{XB[ks]+3}], v{8+ks} offset:{o % 65536}" if o < 65536 else f"ds_read_b128 v[{XB[ks]}:{XB[ks]+3}], v{148+ks} offset:{o-65536}")
        qa = 12 if o < 65536 else 152
        oo = (o % 65536) + ks*2048
        a(f"ds_read_b64_tr_b16 v[{WQ[ks]}:{WQ[ks]+1}], v{qa} offset:{oo}")
        a(f"ds_read_b64_tr_b16 v[{WQ[ks]+2}:{WQ[ks]+3}], v{qa} offset:{oo+512}")
        if owner:
            va = 13 if o < 65536 else 153
            a(f"ds_read_b64_tr_b16 v[{WVr[ks]}:{WVr[ks]+1}], v{va} offset:{oo}")
            a(f"ds_read_b64_tr_b16 v[{WVr[ks]+2}:{WVr[ks]+3}], v{va} offset:{oo+512}")
    def sread(c):
        o = (c % 4) * P1_SLOT
        xs = XS + 4 * (c % 2)
        a(f"ds_read_b128 v[{xs}:{xs+3}], v{7 if o < 65536 else 154} offset:{o % 65536}")
    def stats(c, r):
        t = 36 + 2 * (r & 1)
        xs = XS + 4 * (c % 2)
        a(f"v_and_b32 v{t}, 0xffff0000, v{xs+r}")
        a(f"v_lshlrev_b32 v{t+1}, 16, v{xs+r}")
        a(f"v_fmac_f32 v{14+(r&1)}, v{t}, v{t}")
        a(f"v_add_f32 v{22+(r&1)}, v{22+(r&1)}, v{t}")
        a(f"v_fmac_f32 v{16+(r&1)}, v{t+1}, v{t+1}")
        a(f"v_add_f32 v{22+(r&1)}, v{22+(r&1)}, v{t+1}")
    def compute(c, ks, owner):
        x = XB[ks]
        a(f"v_mfma_f32_32x32x16_bf16 v[48:63], v[{WQ[ks]}:{WQ[ks]+3}], v[{x}:{x+3}], v[48:63]")
        if 'novalu' not in cfg.exp: stats(c, ks)
        if 'nodot' in cfg.exp:
            if owner: a(f"v_mfma_f32_32x32x16_bf16 v[64:79], v[{x}:{x+3}], v[{WVr[ks]}:{WVr[ks]+3}], v[64:79]")
            return
        if owner:
            a(f"v_mfma_f32_32x32x16_bf16 v[64:79], v[{x}:{x+3}], v[{WVr[ks]}:{WVr[ks]+3}], v[64:79]")
            for r in range(4): a(f"v_dot2c_f32_bf16 v19, v{WVr[ks]+r}, v18")
        else:
            for r in range(4): a(f"v_dot2c_f32_bf16 v19, v{WQ[ks]+r}, v18")
    for i in range(4): a(f"v_add_u32 v{148+i}, 0x10000, v{8+i}")
    a("v_add_u32 v152, 0x10000, v12")
    a("v_add_u32 v153, 0x10000, v13")
    a("v_add_u32 v154, 0x10000, v7")
    a("v_mov_b32 v19, 0")
    a(f"s_cmp_lg_u32 s{S_W}, 0")
    a("s_cbranch_scc1 L_p1_nohello")
    a(f"s_lshl_b32 s{TMP}, s{S_J}, 7")
    a(f"s_lshl_b32 s{TMP2}, s{S_H}, 2")
    a(f"s_add_u32 s{TMP}, s{TMP}, s{TMP2}")
    a(f"s_add_u32 s{TMP}, s{TMP}, {WS_TFLAG}")
    a(f"s_add_u32 s{TMP2}, s{S_TAG}, s{S_XCC}")
    a(f"s_add_u32 s{TMP2}, s{TMP2}, 1")
    a(f"v_mov_b32 v28, s{TMP2}")
    a("v_mov_b32 v29, 0")
    a("s_mov_b64 exec, 1")
    a(f"buffer_store_dword v28, v29, s[{S_WS}:{S_WS+3}], s{TMP} offen sc1")
    a("s_mov_b64 exec, -1")
    a.label("L_p1_nohello")
    a(f"s_and_b32 s{TMP}, s{S_AH}, 1")
    a(f"s_cmp_eq_u32 s{TMP}, s{S_TT}")
    a("s_cbranch_scc0 L_p1_nonowner")
    for owner in (True, False):
        n = 5 if owner else 3
        tagn = "o" if owner else "n"
        if not owner: a.label("L_p1_nonowner")
        sread(0); reads(0, 0, owner); reads(0, 1, owner)
        for c in range(8):
            last = c == 7
            if cfg.p1_detail: stamp(a, cfg, 16 + c)
            a(f"s_waitcnt lgkmcnt({n})")
            reads(c, 2, owner)
            compute(c, 0, owner)
            a(f"s_waitcnt lgkmcnt({n})")
            reads(c, 3, owner)
            compute(c, 1, owner)
            if not last:
                a(f"s_waitcnt vmcnt({[8,4,4,4,4,5,1][c]})")
                a("s_barrier")
                a(f"s_waitcnt lgkmcnt({n})")
                sread(c + 1); reads(c + 1, 0, owner)
                if c >= 1 and c + 3 <= 7 and 'nodma' not in cfg.exp:
                    group(c + 3)
                if c == 4:
                    a(f"s_lshl_b32 s{TMP}, s{S_J}, 7")
                    a(f"s_add_u32 s{TMP}, s{TMP}, {WS_TFLAG}")
                    a(f"v_and_b32 v28, 31, v{L}")
                    a("v_lshlrev_b32 v28, 2, v28")
                    a(f"buffer_load_dword v29, v28, s[{S_WS}:{S_WS+3}], s{TMP} offen sc1")
                compute(c, 2, owner)
                a(f"s_waitcnt lgkmcnt({n+1})")
                reads(c + 1, 1, owner)
                compute(c, 3, owner)
            else:
                a(f"s_waitcnt lgkmcnt({n})")
                compute(c, 2, owner)
                a("s_waitcnt lgkmcnt(0)")
                compute(c, 3, owner)
        if owner: a("s_branch L_p1_joined")
    a.label("L_p1_joined")
    stamp(a, cfg, 2)
    p1_epilogue(a, cfg)

def p1_epilogue(a, cfg):
    L = V_LANE
    T = S_A
    TMP, TMP2 = T+9, T+10
    a(f"v_lshrrev_b32 v21, 5, v{L}")
    a("v_add_f32 v14, v14, v15")
    a("v_add_f32 v16, v16, v17")
    a("v_add_f32 v22, v22, v23")
    a("v_add_f32 v16, v16, v14")
    a("v_mov_b32 v24, v19")
    a("v_mov_b32 v23, v22")
    a("v_mov_b32 v17, v16")
    a(f"v_and_b32 v25, 31, v{L}")
    a(f"v_lshlrev_b32 v25, 2, v25")
    a("v_permlane32_swap_b32 v22, v23")
    a("v_permlane32_swap_b32 v16, v17")
    a("v_permlane32_swap_b32 v19, v24")
    a(f"s_lshl_b32 s{TMP}, s{S_TT}, 10")
    a(f"s_add_u32 s{TMP}, s{TMP}, {P1_ST}")
    a(f"v_lshl_add_u32 v26, v25, 1, s{TMP}")
    a(f"s_lshl_b32 s{TMP2}, s{S_AH}, 8")
    a(f"v_add_u32 v27, s{TMP2}, v26")
    a("v_add_f32 v22, v22, v23")
    a("v_add_f32 v23, v16, v17")
    a("v_add_f32 v19, v19, v24")
    a("s_mov_b64 exec, 0xffffffff")
    a("ds_write_b64 v27, v[22:23]")
    a(f"s_and_b32 s{TMP2}, s{S_AH}, 1")
    a(f"s_cmp_eq_u32 s{TMP2}, s{S_TT}")
    a("s_cbranch_scc1 L_p1_e1")
    a(f"s_lshl_b32 s{TMP}, s{S_AH}, 7")
    a(f"s_add_u32 s{TMP}, s{TMP}, {P1_CS}")
    a(f"v_add_u32 v27, s{TMP}, v25")
    a("ds_write_b32 v27, v19")
    a.label("L_p1_e1")
    a("s_mov_b64 exec, -1")
    a(f"s_lshl_b32 s{TMP}, s{S_J}, 7")
    a(f"s_add_u32 s{TMP}, s{TMP}, {WS_TFLAG}")
    a(f"s_add_u32 s{TMP2}, s{S_TAG}, 1")
    a(f"s_mov_b32 s{T+11}, 0")
    a("s_waitcnt vmcnt(0)")
    a.label("L_p1_hchk")
    a(f"v_subrev_u32 v29, s{TMP2}, v29")
    a("v_cmp_lt_u32 vcc, 15, v29")
    a("s_cbranch_vccz L_p1_hok")
    a(f"s_add_u32 s{T+11}, s{T+11}, 1")
    a(f"s_cmp_gt_u32 s{T+11}, 0x100000")
    a("s_cbranch_scc1 L_p1_hok")
    a(f"buffer_load_dword v29, v28, s[{S_WS}:{S_WS+3}], s{TMP} offen sc1")
    a("s_waitcnt vmcnt(0)")
    a("s_branch L_p1_hchk")
    a.label("L_p1_hok")
    a(f"v_cmp_ne_u32 vcc, s{S_XCC}, v29")
    a(f"s_cmp_eq_u64 vcc, 0")
    a(f"s_cselect_b32 s{S_FAST}, 1, 0")
    if cfg.force_slow: a(f"s_mov_b32 s{S_FAST}, 0")
    a("s_waitcnt lgkmcnt(0)")
    a("s_barrier")
    stamp(a, cfg, 3)
    for q in range(4):
        a(f"ds_read_b64 v[{36+2*q}:{37+2*q}], v26 offset:{q*256}")
    a(f"s_lshl_b32 s{TMP}, s{S_AH}, 7")
    a(f"s_add_u32 s{TMP}, s{TMP}, {P1_CS}")
    a(f"v_lshlrev_b32 v20, 4, v21")
    a(f"v_add_u32 v20, s{TMP}, v20")
    for jj in range(4):
        a(f"ds_read_b128 v[{80+4*jj}:{83+4*jj}], v20 offset:{jj*32}")
    HH, WP, KVO, QO = T+11, T+12, T+13, T+14
    a(f"s_lshl_b32 s{HH}, s{S_G}, 2")
    a(f"s_add_u32 s{HH}, s{HH}, s{S_AH}")
    a(f"s_lshl_b32 s{WP}, s{S_Q4}, 1")
    a(f"s_add_u32 s{WP}, s{WP}, s{S_TT}")
    a(f"s_lshl_b32 s{KVO}, s{HH}, 3")
    a(f"s_add_u32 s{KVO}, s{KVO}, s{S_J}")
    a(f"s_lshl_b32 s{QO}, s{KVO}, 13")
    a(f"s_lshl_b32 s{KVO}, s{KVO}, 14")
    a(f"s_lshl_b32 s{TMP}, s{WP}, 10")
    a(f"s_add_u32 s{KVO}, s{KVO}, s{TMP}")
    a(f"s_add_u32 s{QO}, s{QO}, s{TMP}")
    a(f"s_add_u32 s{QO}, s{QO}, {WS_QF}")
    a("s_waitcnt lgkmcnt(4)")
    a("v_pk_add_f32 v[36:37], v[36:37], v[38:39]")
    a("v_pk_add_f32 v[40:41], v[40:41], v[42:43]")
    a("v_pk_add_f32 v[36:37], v[36:37], v[40:41]")
    a("v_mul_f32 v14, 0x3b000000, v36")
    a("v_mul_f32 v16, 0x3b000000, v37")
    a("v_fma_f32 v16, -v14, v14, v16")
    a("v_add_f32 v16, 0x3727c5ac, v16")
    a("v_rsq_f32 v16, v16")
    a(f"s_lshl_b32 s{TMP}, s{S_W}, 8")
    a(f"s_add_u32 s{TMP}, s{TMP}, {P1_PR}")
    a(f"v_add_u32 v25, s{TMP}, v25")
    a("v_mul_f32 v17, v14, v16")
    a("v_mul_f32 v15, 0x3eb8aa3b, v16")
    a(f"v_lshlrev_b32 v23, 4, v21")
    a(f"v_add_u32 v23, s{TMP}, v23")
    a("ds_write_b32 v25, v16")
    a("ds_write_b32 v25, v17 offset:128")
    a("s_waitcnt lgkmcnt(2)")
    for i in range(8, 16):
        a(f"v_fma_f32 v{48+i}, -v14, v{80+i}, v{48+i}")
    for i in range(8, 16):
        a(f"v_mul_f32 v{48+i}, v{48+i}, v16")
    for n in range(4):
        a(f"v_cvt_pk_bf16_f32 v{28+n}, v{56+2*n}, v{57+2*n}")
    a("s_waitcnt lgkmcnt(0)")
    for jj in range(4):
        a(f"ds_read_b128 v[{96+4*jj}:{99+4*jj}], v23 offset:{jj*32}")
        a(f"ds_read_b128 v[{112+4*jj}:{115+4*jj}], v23 offset:{128+jj*32}")
    for i in range(8):
        a(f"v_fma_f32 v{48+i}, -v14, v{80+i}, v{48+i}")
    for i in range(8):
        a(f"v_mul_f32 v{48+i}, v{48+i}, v15")
    for n in range(4):
        a(f"v_cvt_pk_bf16_f32 v{32+n}, v{48+2*n}, v{49+2*n}")
    KL, KR = T+15, T+16
    a(f"s_add_u32 s{KL}, s{KVO}, {WS_KVL}")
    a(f"s_add_u32 s{KR}, s{KVO}, {WS_KV}")
    a(f"s_and_b32 s{TMP2}, s{S_AH}, 1")
    a(f"s_cmp_eq_u32 s{TMP2}, s{S_TT}")
    a("s_cbranch_scc0 L_p1_st_n")
    a("s_waitcnt lgkmcnt(0)")
    for i in range(16):
        a(f"v_mul_f32 v{112+i}, v{112+i}, v19")
    for i in range(16):
        a(f"v_fma_f32 v{64+i}, v{64+i}, v{96+i}, -v{112+i}")
    for n in range(8):
        a(f"v_cvt_pk_bf16_f32 v{40+n}, v{64+2*n}, v{65+2*n}")
    a(f"v_bfe_u32 v24, v{L}, 4, 1")
    a(f"s_and_b32 s{TMP2}, s{S_AH}, 1")
    a(f"v_subrev_u32 v24, s{TMP2}, v24")
    a(f"v_lshlrev_b32 v24, 17, v24")
    a(f"v_and_b32 v22, 15, v{L}")
    a(f"v_lshlrev_b32 v22, 4, v22")
    a(f"v_lshl_add_u32 v22, v21, 8, v22")
    a(f"v_add_u32 v22, v24, v22")
    a(f"v_add_u32 v22, {8192 + 0x20000}, v22")
    a(f"s_sub_u32 s{T+17}, s{KL}, 0x20000")
    a(f"s_sub_u32 s{T+18}, s{KR}, 0x20000")
    def stores(owner):
        W = f"s[{S_WS}:{S_WS+3}]"
        for mode in ("fast", "slow"):
            sc = "" if mode == "fast" else "sc1"
            tg = ("o" if owner else "n") + mode[0]
            if mode == "fast":
                a(f"s_cmp_eq_u32 s{S_FAST}, 0")
                a(f"s_cbranch_scc1 L_p1_st_{('o' if owner else 'n')}s")
            else:
                a.label(f"L_p1_st_{tg}")
            a(f"buffer_store_dwordx4 v[32:35], v{V_L16}, {W}, s{QO} offen {sc}")
            a(f"buffer_store_dwordx4 v[28:31], v{V_L16}, {W}, s{KL} offen {sc}")
            if owner:
                a(f"buffer_store_dwordx4 v[40:43], v22, {W}, s{T+17} offen {sc}")
                a(f"buffer_store_dwordx4 v[44:47], v22, {W}, s{T+17} offen offset:512 {sc}")
            if mode == "fast": a(f"s_branch L_p1_st_{('o' if owner else 'n')}r")
        a.label(f"L_p1_st_{('o' if owner else 'n')}r")
        a(f"buffer_store_dwordx4 v[28:31], v{V_L16}, {W}, s{KR} offen sc1")
        if owner:
            a(f"buffer_store_dwordx4 v[40:43], v22, {W}, s{T+18} offen sc1")
            a(f"buffer_store_dwordx4 v[44:47], v22, {W}, s{T+18} offen offset:512 sc1")
        a(f"s_waitcnt vmcnt({3 if owner else 1})")
    stores(True)
    a("s_branch L_p1_st_done")
    a.label("L_p1_st_n")
    a("s_waitcnt lgkmcnt(0)")
    stores(False)
    a.label("L_p1_st_done")
    a("s_barrier")
    stamp(a, cfg, 4)
    a(f"s_lshl_b32 s{TMP}, s{S_J}, 7")
    a(f"s_add_u32 s{TMP}, s{TMP}, {WS_TFLAG + 1024}")
    a(f"s_cmp_lg_u32 s{S_W}, 0")
    a("s_cbranch_scc1 L_p1_lwait")
    a(f"s_lshl_b32 s{TMP2}, s{S_H}, 2")
    a(f"s_add_u32 s{TMP2}, s{TMP2}, s{TMP}")
    team_flag(a, cfg, TMP2, "p1")
    a(f"s_lshl_b32 s{TMP2}, s{S_G}, 4")
    a(f"s_add_u32 s{TMP}, s{TMP}, s{TMP2}")
    a(f"v_and_b32 v2, 3, v{L}")
    a("v_lshlrev_b32 v2, 2, v2")
    poll(a, 2, 3, TMP, "p1l")
    a.label("L_p1_lwait")
    a("s_barrier")
    stamp(a, cfg, 13)
    a(f"s_lshl_b32 s{TMP}, s{S_H}, 3")
    a(f"s_add_u32 s{TMP}, s{TMP}, s{S_J}")
    a(f"s_lshl_b32 s{TMP2}, s{TMP}, 13")
    a(f"s_lshl_b32 s{TMP}, s{TMP}, 14")
    a(f"s_lshl_b32 s{T+11}, s{S_W}, 10")
    a(f"s_add_u32 s{TMP2}, s{TMP2}, s{T+11}")
    a(f"s_add_u32 s{TMP2}, s{TMP2}, {WS_QF}")
    a(f"s_add_u32 s{TMP}, s{TMP}, s{T+11}")
    a(f"s_add_u32 s{TMP}, s{TMP}, {WS_KVL}")
    a(f"s_mov_b32 m0, s{T+11}")
    a(f"buffer_load_dwordx4 v[{V_Q}:{V_Q+3}], v{V_L16}, s[{S_WS}:{S_WS+3}], s{TMP2} offen sc1")
    a(f"buffer_load_dwordx4 v{V_L16}, s[{S_WS}:{S_WS+3}], s{TMP} offen sc1 lds")
    a(f"s_add_u32 m0, m0, 8192")
    a(f"s_add_u32 s{TMP}, s{TMP}, 8192")
    a(f"buffer_load_dwordx4 v{V_L16}, s[{S_WS}:{S_WS+3}], s{TMP} offen sc1 lds")
    a("s_waitcnt vmcnt(0)")
    a("s_barrier")
    a(f"s_cmp_lg_u32 s{S_W}, 0")
    a("s_cbranch_scc1 L_p1_end")
    a(f"s_lshl_b32 s{TMP}, s{S_H}, 7")
    a(f"s_lshl_b32 s{TMP2}, s{S_J}, 2")
    a(f"s_add_u32 s{TMP}, s{TMP}, s{TMP2}")
    a(f"s_add_u32 s{TMP}, s{TMP}, {WS_KVFLAG}")
    flag_store(a, S_TAG, TMP, "sc1")
    a.label("L_p1_end")
    stamp(a, cfg, 14)

def team_flag(a, cfg, off_s, uniq):
    a(f"v_mov_b32 v2, s{S_TAG}")
    a("v_mov_b32 v3, 0")
    a("s_mov_b64 exec, 1")
    a(f"s_cmp_eq_u32 s{S_FAST}, 0")
    a(f"s_cbranch_scc1 L_tf_{uniq}_s")
    a(f"buffer_store_dword v2, v3, s[{S_WS}:{S_WS+3}], s{off_s} offen")
    a(f"s_branch L_tf_{uniq}_d")
    a.label(f"L_tf_{uniq}_s")
    a(f"buffer_store_dword v2, v3, s[{S_WS}:{S_WS+3}], s{off_s} offen sc1")
    a.label(f"L_tf_{uniq}_d")
    a("s_mov_b64 exec, -1")

def poll(a, vaddr, vtmp, off_s, uniq):
    C = S_A + 19
    a(f"s_mov_b32 s{C}, 0")
    a.label(f"L_poll_{uniq}")
    a(f"buffer_load_dword v{vtmp}, v{vaddr}, s[{S_WS}:{S_WS+3}], s{off_s} offen sc1")
    a(f"s_add_u32 s{C}, s{C}, 1")
    a("s_waitcnt vmcnt(0)")
    a(f"v_cmp_ne_u32 vcc, s{S_TAG}, v{vtmp}")
    a(f"s_cmp_gt_u32 s{C}, 0x100000")
    a(f"s_cbranch_scc1 L_poll_{uniq}_x")
    a(f"s_cbranch_vccnz L_poll_{uniq}")
    a.label(f"L_poll_{uniq}_x")

A_S = [16, 32]; A_C = 48; A_O = 64; A_P = 80; A_KF = [88, 92]; A_VF = [96, 104]; A_VK = 112; A_VV = 113
def mfma32(a, d, x, y, c):
    cs = c if isinstance(c, str) else f"v[{c}:{c+15}]"
    a(f"v_mfma_f32_32x32x16_bf16 v[{d}:{d+15}], v[{x}:{x+3}], v[{y}:{y+3}], {cs}")

def attention(a, cfg):
    L = V_LANE
    T = S_A
    a(f"v_mov_b32 v{A_VK}, v{V_L16}")
    a(f"v_and_b32 v2, 15, v{L}")
    a(f"v_lshlrev_b32 v2, 4, v2")
    a(f"v_lshrrev_b32 v3, 5, v{L}")
    a(f"v_lshl_add_u32 v2, v3, 8, v2")
    a(f"v_add_u32 v{A_VV}, 8192, v2")
    a(f"v_and_b32 v3, 31, v{L}")
    a(f"v_cmp_eq_u32 vcc, 16, v3")
    a(f"v_mov_b32 v4, 0x3f803f80")
    a("s_nop 0")
    a(f"v_cndmask_b32 v{A_VF[0]}, 0, v4, vcc")
    for r in range(1, 16):
        a(f"v_mov_b32 v{A_VF[0]+r}, v{A_VF[0]}")
    a(f"ds_read_b128 v[{A_KF[0]}:{A_KF[0]+3}], v{A_VK}")
    a("s_waitcnt lgkmcnt(0)")
    mfma32(a, A_S[0], A_KF[0], V_Q, "0")
    a(f"s_mov_b32 s{S_BLK}, 0")
    a(f"s_lshl_b32 s{T}, s{S_H}, 17")
    a(f"s_add_u32 s{T}, s{T}, {WS_KV}")
    a(f"s_lshl_b32 s{T+1}, s{S_W}, 10")
    a(f"s_add_u32 s{T}, s{T}, s{T+1}")
    a(f"s_add_u32 s{T+2}, s{T+1}, 0")
    a("s_nop 4")
    a("s_nop 1")
    def maxtree(src, dst):
        a(f"v_max3_f32 v{dst}, v{src}, v{src+1}, v{src+2}")
        for i in range(3, 15, 2):
            a(f"v_max3_f32 v{dst}, v{dst}, v{src+i}, v{src+i+1}")
        a(f"v_max_f32 v{dst}, v{dst}, v{src+15}")
    maxtree(A_S[0], 2)
    a("s_nop 0")
    a("v_mov_b32 v3, v2")
    a("s_nop 1")
    a("v_permlane32_swap_b32 v2, v3")
    a("s_nop 0")
    a("v_max_f32 v2, v2, v3")
    if cfg.prio:
        a(f"s_cmp_ge_u32 s{S_W}, 4")
        a("s_cbranch_scc0 L_at_noprio")
        a("s_setprio 1")
        a.label("L_at_noprio")
    a.label("L_at_start")
    a(f"v_sub_f32 v{A_C}, 0, v2")
    for r in range(1, 16):
        a(f"v_mov_b32 v{A_C+r}, v{A_C}")
    for r in range(16):
        a(f"v_mov_b32 v{A_O+r}, 0")
    for r in range(8):
        a(f"v_mov_b32 v{A_P+r}, 0")
    a(f"v_mov_b32 v{A_VK}, v{V_L16}")
    a(f"v_and_b32 v2, 15, v{L}")
    a(f"v_lshlrev_b32 v2, 4, v2")
    a(f"v_lshrrev_b32 v3, 5, v{L}")
    a(f"v_lshl_add_u32 v2, v3, 8, v2")
    a(f"v_add_u32 v{A_VV}, 8192, v2")
    a(f"s_mov_b32 s{S_BLK}, 0")
    a(f"s_lshl_b32 s{S_MODE}, s{S_RERUN}, 4")
    a(f"ds_read_b128 v[{A_KF[0]}:{A_KF[0]+3}], v{A_VK}")
    a(f"ds_read_b128 v[{A_KF[1]}:{A_KF[1]+3}], v{A_VK} offset:1024")
    a(f"s_mov_b64 exec, s[{S_VMASK}:{S_VMASK+1}]")
    a(f"ds_read_b128 v[{A_VF[0]}:{A_VF[0]+3}], v{A_VV}")
    a(f"ds_read_b128 v[{A_VF[0]+4}:{A_VF[0]+7}], v{A_VV} offset:512")
    a("s_mov_b64 exec, -1")
    a("s_waitcnt lgkmcnt(0)")
    mfma32(a, A_S[0], A_KF[0], V_Q, A_C)
    a("s_nop 7")
    a("s_nop 3")
    a.label("L_at_blk")
    for t in range(8):
        cur = A_S[t % 2]; nxt = A_S[(t + 1) % 2]
        X = lambda i: cur + i
        P = A_P
        e = lambda i: a(f"v_exp_f32 v{X(i)}, v{X(i)}")
        c = lambda n: a(f"v_cvt_pk_bf16_f32 v{P+n}, v{X(2*n)}, v{X(2*n+1)}")
        if HOOKS.get(t):
            mask = sum(1 << b for b in HOOKS[t])
            a(f"s_bitcmp1_b32 {hex(mask) if mask > 64 else mask}, s{S_MODE}")
            a(f"s_cbranch_scc1 L_hook{t}")
            a.label(f"L_hook{t}_back")
        koff = (t + 2) * 1024 if t < 6 else 16384 + (t - 6) * 1024
        voff = (t + 1) * 1024 if t < 7 else 16384
        vn = A_VF[(t + 1) % 2]
        def pv2(): mfma32(a, A_O, A_VF[(t + 1) % 2] + 4, P + 4, A_O)
        def pv1(): mfma32(a, A_O, A_VF[t % 2], P, A_O)
        def smm():
            a("s_waitcnt lgkmcnt(0)")
            mfma32(a, nxt, A_KF[(t + 1) % 2], V_Q, A_C)
        def rdk(): a(f"ds_read_b128 v[{A_KF[t%2]}:{A_KF[t%2]+3}], v{A_VK} offset:{koff}")
        def rdv():
            a(f"s_mov_b64 exec, s[{S_VMASK}:{S_VMASK+1}]")
            a(f"ds_read_b128 v[{vn}:{vn+3}], v{A_VV} offset:{voff}")
            a(f"ds_read_b128 v[{vn+4}:{vn+7}], v{A_VV} offset:{voff+512}")
            a("s_mov_b64 exec, -1")
        v = cfg.attn_variant
        if v == 0:
            e(0); e(1); pv2(); smm(); rdk(); rdv()
            e(2); c(0); e(3); e(4); c(1); e(5); e(6); c(2); e(7); e(8); c(3); e(9); e(10)
            pv1()
            c(4); e(11); e(12); c(5); e(13); e(14); e(15); c(6); c(7)
        elif v == 1:
            e(0); e(1); pv2(); e(2); c(0); e(3); e(4); c(1); smm(); rdk(); rdv()
            e(5); e(6); c(2); e(7); e(8); c(3); e(9); e(10)
            pv1()
            c(4); e(11); e(12); c(5); e(13); e(14); e(15); c(6); c(7)
        elif v == 2:
            e(0); e(1); pv2(); e(2); c(0); e(3); e(4); c(1); e(5); e(6); smm(); rdk(); rdv()
            c(2); e(7); e(8); c(3); e(9); e(10); c(4); e(11)
            pv1()
            e(12); c(5); e(13); e(14); e(15); c(6); c(7)
        elif v == 3:
            e(0); e(1); pv2(); e(2); c(0); e(3); e(4); c(1); smm(); rdk()
            a(f"ds_read_b128 v[{vn}:{vn+3}], v{A_VV} offset:{voff}")
            a(f"ds_read_b128 v[{vn+4}:{vn+7}], v{A_VV} offset:{voff+512}")
            e(5); e(6); c(2); e(7); e(8); c(3); e(9); e(10)
            pv1()
            c(4); e(11); e(12); c(5); e(13); e(14); e(15); c(6); c(7)
        elif v == 4:
            e(0); e(1); pv2(); e(2); c(0); e(3); e(4); c(1); mfma32(a, nxt, A_KF[(t + 1) % 2], V_Q, A_C)
            e(5); e(6); c(2); e(7); e(8); c(3); e(9); e(10)
            pv1()
            c(4); e(11); e(12); c(5); e(13); e(14); e(15); c(6); c(7)
    a(f"v_add_u32 v{A_VK}, 16384, v{A_VK}")
    a(f"v_add_u32 v{A_VV}, 16384, v{A_VV}")
    a(f"s_add_u32 s{S_BLK}, s{S_BLK}, 1")
    a(f"s_add_u32 s{S_MODE}, s{S_MODE}, 1")
    if cfg.stamps and cfg.at_detail:
        a(f"s_memtime s[{S_STAMP}:{S_STAMP+1}]")
        a(f"s_add_u32 m0, s{S_BLK}, 15")
        a("s_waitcnt lgkmcnt(0)")
        a(f"v_writelane_b32 v255, s{S_STAMP}, m0")
    a(f"s_cmp_lt_u32 s{S_BLK}, 8")
    a("s_cbranch_scc1 L_at_blk")
    mfma32(a, A_O, A_VF[1] + 4, A_P + 4, A_O)
    a("s_waitcnt lgkmcnt(0)")
    stamp(a, cfg, 8)
    a("s_nop 7")
    a("s_nop 3")
    a(f"v_mov_b32 v2, v{A_O+8}")
    a(f"v_mov_b32 v3, v{A_O+8}")
    a("s_nop 1")
    a("v_permlane32_swap_b32 v2, v3")
    a("s_nop 0")
    a("v_mov_b32 v4, 0x5d800000")
    a("v_cmp_nle_f32 vcc, v2, v4")
    a(f"s_cmp_lg_u32 s{S_RERUN}, 0")
    a("s_cbranch_scc1 L_at_ok")
    a("s_cbranch_vccz L_at_ok")
    a(f"s_mov_b32 s{S_RERUN}, 1")
    a(f"v_mov_b32 v{A_VK}, v{V_L16}")
    a("v_mov_b32 v2, 0xff800000")
    a(f"s_mov_b32 s{S_BLK}, 0")
    a.label("L_at_max")
    for t in range(8):
        a(f"ds_read_b128 v[{A_KF[0]}:{A_KF[0]+3}], v{A_VK} offset:{t*1024}")
        a("s_waitcnt lgkmcnt(0)")
        mfma32(a, A_S[0], A_KF[0], V_Q, "0")
        a("s_nop 7")
        a("s_nop 3")
        for i in range(0, 16, 2):
            a(f"v_max3_f32 v2, v2, v{A_S[0]+i}, v{A_S[0]+i+1}")
    a(f"v_add_u32 v{A_VK}, 16384, v{A_VK}")
    a(f"s_add_u32 s{S_BLK}, s{S_BLK}, 1")
    a(f"s_cmp_lt_u32 s{S_BLK}, 8")
    a("s_cbranch_scc1 L_at_max")
    a("v_mov_b32 v3, v2")
    a("s_nop 1")
    a("v_permlane32_swap_b32 v2, v3")
    a("s_nop 0")
    a("v_max_f32 v2, v2, v3")
    a("s_branch L_at_start")
    hooks_out_of_line(a, cfg)
    a.label("L_at_ok")
    a("v_rcp_f32 v2, v2")
    a("s_nop 0")
    for i in range(8):
        a(f"v_mul_f32 v{A_O+i}, v{A_O+i}, v2")
    for n in range(4):
        a(f"v_cvt_pk_bf16_f32 v{4+n}, v{A_O+2*n}, v{A_O+2*n+1}")

def flag_store(a, val_s, off_s, sc):
    a(f"v_mov_b32 v2, s{val_s}")
    a("v_mov_b32 v3, 0")
    a("s_mov_b64 exec, 1")
    a(f"buffer_store_dword v2, v3, s[{S_WS}:{S_WS+3}], s{off_s} offen {sc}")
    a("s_mov_b64 exec, -1")

def kv_dma(a, blk):
    T = S_A
    a(f"s_add_u32 s{T+4}, s{S_J}, {blk}")
    a(f"s_and_b32 s{T+4}, s{T+4}, 7")
    a(f"s_lshl_b32 s{T+4}, s{T+4}, 14")
    a(f"s_add_u32 s{T+4}, s{T+4}, s{T}")
    a(f"s_add_u32 m0, s{T+2}, {blk*16384}")
    a(f"s_add_u32 s{T+6}, s{T+4}, 8192")
    a(f"buffer_load_dwordx4 v{V_L16}, s[{S_WS}:{S_WS+3}], s{T+4} offen sc1 lds")
    a(f"s_add_u32 m0, m0, 8192")
    a("s_nop 0")
    a(f"buffer_load_dwordx4 v{V_L16}, s[{S_WS}:{S_WS+3}], s{T+6} offen sc1 lds")

V_W2 = 152
W2_STAGE = 131072
HOOKS = {0: [7], 1: [1, 2], 3: [0, 1, 2, 4, 5, 6], 5: [0, 1, 2], 6: [0, 1, 3], 7: [0, 1, 3, 4, 5, 6]}

def w2_setup(a):
    T = S_A; L = V_LANE
    a(f"s_and_b32 s{T+10}, s{S_W}, 3")
    a(f"s_mul_i32 s{T+10}, s{T+10}, {22*16*1024}")
    a(f"s_and_b32 s{T+11}, s{S_H}, 7")
    a(f"s_lshl_b32 s{T+11}, s{T+11}, 7")
    a(f"s_add_u32 s{T+10}, s{T+10}, s{T+11}")
    a(f"s_lshr_b32 s{T+11}, s{S_W}, 2")
    a(f"s_lshl_b32 s{T+11}, s{T+11}, 6")
    a(f"s_add_u32 s{T+10}, s{T+10}, s{T+11}")
    a(f"s_lshl_b32 s{T+11}, s{S_W}, 12")
    a(f"s_add_u32 s{T+11}, s{T+11}, {W2_STAGE}")
    a(f"v_lshrrev_b32 v115, 2, v{L}")
    a(f"v_lshlrev_b32 v114, 10, v115")
    a(f"v_and_b32 v115, 3, v{L}")
    a(f"v_lshl_add_u32 v114, v115, 4, v114")
    a(f"v_lshrrev_b32 v115, 5, v{L}")
    a(f"v_bfe_u32 v116, v{L}, 2, 2")
    a(f"v_lshl_add_u32 v115, v115, 2, v116")
    a(f"v_lshlrev_b32 v115, 6, v115")
    a(f"v_bfe_u32 v116, v{L}, 4, 1")
    a(f"v_lshl_add_u32 v115, v116, 5, v115")
    a(f"v_and_b32 v116, 3, v{L}")
    a(f"v_lshl_add_u32 v115, v116, 3, v115")
    a(f"v_add_u32 v115, s{T+11}, v115")

NOW2 = False
def w2_issue(a, r):
    T = S_A
    n = 4 if r < 5 else 2
    if NOW2: return
    for i in range(n):
        a(f"s_add_u32 m0, s{T+11}, {i*1024}")
        a(f"s_add_u32 s{T+4}, s{T+10}, {(r*4+i)*16*1024}")
        a(f"buffer_load_dwordx4 v114, s[{S_W2}:{S_W2+3}], s{T+4} offen lds")

def w2_read(a, r, younger=0):
    n = 4 if r < 5 else 2
    if NOW2: return
    a(f"s_waitcnt vmcnt({younger})")
    for i in range(n):
        d = V_W2 + 4*(r*4+i)
        a(f"ds_read_b64_tr_b16 v[{d}:{d+1}], v115 offset:{i*1024}")
        a(f"ds_read_b64_tr_b16 v[{d+2}:{d+3}], v115 offset:{i*1024+512}")
    a("s_waitcnt lgkmcnt(0)")

def warm(a, srd, piece_bytes, nlanes, vdst):
    T = S_A
    a(f"v_lshlrev_b32 v2, 7, v{V_LANE}")
    a(f"s_lshl_b32 s{T+4}, s{S_H}, 3")
    a(f"s_add_u32 s{T+4}, s{T+4}, s{S_W}")
    a(f"s_mul_i32 s{T+5}, s{T+4}, {piece_bytes}")
    a(f"s_and_b32 s{T+5}, s{T+5}, 0xffffff80")
    if nlanes > 32: a(f"s_mov_b32 exec_hi, {hex((1 << (nlanes-32)) - 1)}")
    else: a(f"s_mov_b64 exec, {hex((1 << nlanes) - 1)}")
    a(f"buffer_load_dword v{vdst}, v2, s[{srd}:{srd+3}], s{T+5} offen")
    a("s_mov_b64 exec, -1")

V_XR = 12
V_B1R = 122
def small_loads(a):
    T = S_A; L = V_LANE
    a(f"s_and_b32 s{T+4}, s{S_H}, 7")
    a(f"s_lshl_b32 s{T+4}, s{T+4}, 6")
    a(f"s_lshr_b32 s{T+5}, s{S_W}, 2")
    a(f"s_lshl_b32 s{T+5}, s{T+5}, 5")
    a(f"s_add_u32 s{T+4}, s{T+4}, s{T+5}")
    a(f"s_and_b32 s{T+5}, s{S_W}, 1")
    a(f"s_lshl_b32 s{T+5}, s{T+5}, 4")
    a(f"s_add_u32 s{T+4}, s{T+4}, s{T+5}")
    a(f"s_lshl_b32 s{T+5}, s{S_J}, 8")
    a(f"s_lshr_b32 s{T+6}, s{S_H}, 3")
    a(f"s_lshl_b32 s{T+6}, s{T+6}, 6")
    a(f"s_add_u32 s{T+5}, s{T+5}, s{T+6}")
    a(f"s_bfe_u32 s{T+6}, s{S_W}, 0x10001")
    a(f"s_lshl_b32 s{T+6}, s{T+6}, 5")
    a(f"s_add_u32 s{T+5}, s{T+5}, s{T+6}")
    a(f"s_lshl_b32 s{T+5}, s{T+5}, 10")
    a(f"s_lshl_b32 s{T+4}, s{T+4}, 1")
    a(f"s_add_u32 s{T+5}, s{T+5}, s{T+4}")
    a(f"v_and_b32 v2, 31, v{L}")
    a(f"v_lshlrev_b32 v2, 10, v2")
    a(f"v_lshrrev_b32 v3, 5, v{L}")
    a(f"v_lshlrev_b32 v3, 3, v3")
    a(f"v_add_u32 v2, v2, v3")
    a(f"buffer_load_dwordx2 v[{V_XR}:{V_XR+1}], v2, s[{S_X}:{S_X+3}], s{T+5} offen")
    a(f"buffer_load_dwordx2 v[{V_XR+2}:{V_XR+3}], v2, s[{S_X}:{S_X+3}], s{T+5} offen offset:16")
    a(f"buffer_load_dwordx2 v[{V_B2}:{V_B2+1}], v3, s[{S_B2}:{S_B2+3}], s{T+4} offen")
    a(f"buffer_load_dwordx2 v[{V_B2+2}:{V_B2+3}], v3, s[{S_B2}:{S_B2+3}], s{T+4} offen offset:16")
    a(f"s_and_b32 s{T+4}, s{S_H}, 15")
    a(f"s_mul_i32 s{T+4}, s{T+4}, {8*21846}")
    a(f"s_lshr_b32 s{T+4}, s{T+4}, 16")
    a(f"s_lshl_b32 s{T+4}, s{T+4}, 6")
    a(f"v_lshlrev_b32 v2, 2, v{L}")
    a(f"buffer_load_dword v{V_B1R}, v2, s[{S_B1}:{S_B1+3}], s{T+4} offen")

def pretouch_tail(a):
    T = S_A; L = V_LANE
    a(f"s_lshl_b32 s{T+4}, s{S_H}, 3")
    a(f"s_add_u32 s{T+4}, s{T+4}, s{S_W}")
    a(f"s_lshl_b32 s{T+5}, s{S_J}, 18")
    a(f"s_lshl_b32 s{T+6}, s{T+4}, 10")
    a(f"s_add_u32 s{T+5}, s{T+5}, s{T+6}")
    a(f"v_and_b32 v2, 7, v{L}")
    a(f"v_lshlrev_b32 v2, 7, v2")
    a(f"v_add_u32 v2, s{T+5}, v2")
    a(f"v_add_u32 v3, {WS_HF}, v2")
    a(f"v_add_u32 v2, {WS_OF}, v2")
    a(f"v_cmp_gt_u32 vcc, 8, v{L}")
    a("s_nop 1")
    a(f"v_cndmask_b32 v2, v3, v2, vcc")
    a(f"s_lshl_b32 s{T+5}, s{S_J}, 16")
    a(f"s_lshl_b32 s{T+6}, s{T+4}, 8")
    a(f"s_add_u32 s{T+5}, s{T+5}, s{T+6}")
    a(f"s_add_u32 s{T+5}, s{T+5}, {WS_HST - 16*128}")
    a(f"v_lshlrev_b32 v3, 7, v{L}")
    a(f"v_add_u32 v4, s{T+5}, v3")
    a(f"v_cmp_gt_u32 vcc, 16, v{L}")
    a(f"s_mul_i32 s{T+5}, s{S_J}, {8*86*1024}")
    a("s_nop 0")
    a(f"v_cndmask_b32 v2, v4, v2, vcc")
    a(f"s_mul_i32 s{T+6}, s{T+4}, 2752")
    a(f"s_and_b32 s{T+6}, s{T+6}, 0xffffff80")
    a(f"s_add_u32 s{T+5}, s{T+5}, s{T+6}")
    a(f"s_add_u32 s{T+5}, s{T+5}, {WS_GF - 18*128}")
    a(f"v_add_u32 v4, s{T+5}, v3")
    a(f"v_cmp_gt_u32 vcc, 18, v{L}")
    a("s_nop 1")
    a(f"v_cndmask_b32 v2, v4, v2, vcc")
    a("v_mov_b32 v3, 0") if False else None
    a("s_mov_b32 exec_hi, 0x1ff")
    a(f"buffer_load_dword v120, v2, s[{S_WS}:{S_WS+3}], 0 offen")
    a("s_mov_b64 exec, -1")

def hooks_out_of_line(a, cfg):
    T = S_A
    def dispatch(t, cases):
        a.label(f"L_hook{t}")
        for i, (b, lab) in enumerate(cases):
            if i < len(cases) - 1:
                a(f"s_cmp_eq_u32 s{S_MODE}, {b}")
                a(f"s_cbranch_scc1 {lab}")
            else:
                a(f"s_branch {lab}")
    def kvh(lab, blk, t):
        a.label(lab); kv_dma(a, blk); a(f"s_branch L_hook{t}_back")
    dispatch(3, [(0, "L_hq"), (1, "L_kv5"), (2, "L_wm1"), (4, "L_r0"), (5, "L_r2"), (6, "L_r4")])
    a.label("L_hq")
    stamp(a, cfg, 5)
    a(f"s_and_b32 s{T+4}, s{S_H}, 28")
    a(f"s_lshr_b32 s{T+5}, s{S_W}, 1")
    a(f"s_add_u32 s{T+4}, s{T+4}, s{T+5}")
    a(f"s_lshl_b32 s{T+4}, s{T+4}, 7")
    a(f"s_add_u32 s{T+3}, s{T+4}, {WS_KVFLAG}")
    a(f"v_and_b32 v2, 7, v{V_LANE}")
    a("v_lshlrev_b32 v2, 2, v2")
    poll(a, 2, 3, T+3, "kv")
    stamp(a, cfg, 6)
    kv_dma(a, 1)
    a("s_branch L_hook3_back")
    kvh("L_kv5", 5, 3)
    a.label("L_wm1")
    if 'nowarm' not in cfg.exp:
        warm(a, S_W1, 5504, 44, 117); warm(a, S_WO, 2048, 16, 118)
    else:
        a("v_mov_b32 v2, 0"); a(f"buffer_load_dword v117, v2, s[{S_WS}:{S_WS+3}], 0 offen"); a(f"buffer_load_dword v118, v2, s[{S_WS}:{S_WS+3}], 0 offen")
    a("s_branch L_hook3_back")
    a.label("L_r0"); w2_read(a, 0); w2_issue(a, 1); a("s_branch L_hook3_back")
    a.label("L_r2"); w2_read(a, 2, 1); w2_issue(a, 3); a("s_branch L_hook3_back")
    a.label("L_r4"); w2_read(a, 4); w2_issue(a, 5); a("s_branch L_hook3_back")
    dispatch(5, [(0, "L_kv2"), (1, "L_kv6"), (2, "L_sm")])
    kvh("L_kv2", 2, 5); kvh("L_kv6", 6, 5)
    a.label("L_sm"); small_loads(a); a("s_branch L_hook5_back")
    dispatch(1, [(1, "L_kv4"), (2, "L_wm2")])
    kvh("L_kv4", 4, 1)
    a.label("L_wm2")
    if 'nowarm' not in cfg.exp: warm(a, S_W2, 5504, 44, 119)
    else:
        a("v_mov_b32 v2, 0"); a(f"buffer_load_dword v119, v2, s[{S_WS}:{S_WS+3}], 0 offen")
    a("s_branch L_hook1_back")
    dispatch(7, [(0, "L_kv3"), (1, "L_kv7"), (3, "L_i0"), (4, "L_r1"), (5, "L_r3"), (6, "L_r5")])
    kvh("L_kv3", 3, 7); kvh("L_kv7", 7, 7)
    a.label("L_i0"); w2_setup(a); w2_issue(a, 0); a("s_branch L_hook7_back")
    a.label("L_r1"); w2_read(a, 1); w2_issue(a, 2); pretouch_tail(a); a("s_branch L_hook7_back")
    a.label("L_r3"); w2_read(a, 3); w2_issue(a, 4); a("s_branch L_hook7_back")
    a.label("L_r5"); w2_read(a, 5); a("s_branch L_hook7_back")
    dispatch(6, [(0, "L_hs0"), (1, "L_hs1"), (3, "L_hs3")])
    a.label("L_hs3")
    a("s_waitcnt vmcnt(8)")
    a("s_barrier")
    stamp(a, cfg, 12)
    a("s_branch L_hook6_back")
    a.label("L_hs0")
    a("s_waitcnt vmcnt(2)")
    a("s_barrier")
    stamp(a, cfg, 10)
    a("s_branch L_hook6_back")
    a.label("L_hs1")
    a("s_waitcnt vmcnt(6)")
    a("s_barrier")
    stamp(a, cfg, 11)
    a("s_branch L_hook6_back")
    a.label("L_hook0")
    a(f"s_lshl_b32 s{T+5}, s{S_W}, 16")
    a(f"s_and_b32 s{T+6}, s{S_H}, 7")
    a(f"s_lshl_b32 s{T+6}, s{T+6}, 7")
    a(f"s_add_u32 s{T+5}, s{T+5}, s{T+6}")
    a(f"s_lshl_b32 s{T+6}, s{S_W}, 12")
    for i in range(4):
        a(f"s_add_u32 m0, s{T+6}, {131072 + i*1024}")
        a(f"s_add_u32 s{T+7}, s{T+5}, {i*16*1024}")
        a(f"buffer_load_dwordx4 v114, s[{S_WO}:{S_WO+3}], s{T+7} offen lds")
    a("s_branch L_hook0_back")

def attn_out(a, cfg, sc):
    T = S_A
    a(f"s_lshl_b32 s{T+4}, s{S_J}, 3")
    a(f"s_add_u32 s{T+4}, s{T+4}, s{S_W}")
    a(f"s_lshl_b32 s{T+4}, s{T+4}, 5")
    a(f"s_add_u32 s{T+4}, s{T+4}, s{S_H}")
    a(f"s_lshl_b32 s{T+4}, s{T+4}, 10")
    a(f"s_add_u32 s{T+4}, s{T+4}, {WS_OF}")
    a(f"buffer_store_dwordx4 v[4:7], v{V_L16}, s[{S_WS}:{S_WS+3}], s{T+4} offen {sc}")

def finish(a, cfg):
    T = S_A
    a(f"s_or_b32 s{T+4}, s2, s{S_W}")
    a(f"s_cmp_lg_u32 s{T+4}, 0")
    a("s_cbranch_scc1 L_fin")
    a(f"s_mov_b32 s{T+4}, {WS_EPOCH}")
    flag_store(a, S_TAG, T+4, "sc1")
    a.label("L_fin")
    stamp_flush(a, cfg)
    a("s_waitcnt vmcnt(0)")
    a.label("L_end")
    a("s_endpgm")

def build(cfg):
    global NOW2
    NOW2 = 'now2' in cfg.exp
    a = Asm()
    prologue(a, cfg)
    if cfg.skip_p1:
        a("s_waitcnt lgkmcnt(0)")
        srd(a, S_WS, S_KA+20, S_KA+21, WS_SIZE)
        a(f"s_mov_b32 s{S_RERUN}, 1")
        for r in range(4): a(f"v_mov_b32 v{V_Q+r}, 0x3c003c00")
        a("s_barrier")
        stamp(a, cfg, 4)
    else:
        phase1(a, cfg)
    if cfg.stop_after != "p1":
        attention(a, cfg)
        if cfg.stop_after == "attn":
            attn_out(a, cfg, "sc1")
            stamp(a, cfg, 9)
        else:
            import tail
            tail.tail(a, cfg)
    finish(a, cfg)
    errs = check_hazards(a.lines) + check_waits(a.lines)
    for e in errs: print("!!", e, file=sys.stderr)
    hdr = open("cdna_kernels/" + NAME + ".s.ref").read().split("; Override")[0]
    out = hdr
    out += f"; @launch kernel={KNAME} grid=(256,1,1) block=(512,1,1) lds={LDS_SIZE}\n"
    out += '.amdgcn_target "amdgcn-amd-amdhsa--gfx950"\n.text\n'
    out += f".globl {KNAME}\n.p2align 8\n.type {KNAME},@function\n{KNAME}:\n"
    out += a.text()
    out += f""".section .rodata,"a"
.p2align 6
.amdhsa_kernel {KNAME}
  .amdhsa_next_free_vgpr 256
  .amdhsa_next_free_sgpr 102
  .amdhsa_accum_offset 256
  .amdhsa_group_segment_fixed_size 0
  .amdhsa_kernarg_size 88
  .amdhsa_user_sgpr_count 2
  .amdhsa_user_sgpr_kernarg_segment_ptr 1
  .amdhsa_system_sgpr_workgroup_id_x 1
.end_amdhsa_kernel
"""
    return out, errs

if __name__ == "__main__":
    cfg = Cfg()
    outp = "cdna_kernels/" + NAME + ".s"
    for arg in sys.argv[1:]:
        if arg == "stamps": cfg.stamps = True
        elif arg.startswith("stop="): cfg.stop_after = arg[5:]
        elif arg.startswith("out="): outp = arg[4:]
        elif arg == "pf": cfg.p1_prefetch = True
        elif arg == "p1d": cfg.p1_detail = True
        elif arg == "slow": cfg.force_slow = True
        elif arg == "f2d": cfg.f2_detail = True
        elif arg == "atd": cfg.at_detail = True
        elif arg.startswith("exp="): cfg.exp = arg[4:]
        elif arg == "skip_p1": cfg.skip_p1 = True
        elif arg.startswith("av="): cfg.attn_variant = int(arg[3:])
        elif arg.startswith("prio="): cfg.prio = int(arg[5:])
    txt, errs = build(cfg)
    open(outp, "w").write(txt)
    print("wrote", outp, len(txt), "bytes;", len(errs), "checker findings")
```

```python
from asmlib import *
import gen as G
from gen import *

T_W1 = 0
T_WO = 98304
T_RX = 98304
T_MISC = 98304 + 49152
T_CS1 = T_MISC
T_HST = 0
V_H = 240
V_B1K = 11+135

S_RB, S_CB, S_RB2, S_T0F = 100, 101, 3, 51

def tr_addr(a, dst, base, t1, t2):
    L = V_LANE
    a(f"v_lshrrev_b32 v{t1}, 5, v{L}")
    a(f"v_bfe_u32 v{t2}, v{L}, 2, 2")
    a(f"v_lshl_add_u32 v{t1}, v{t1}, 2, v{t2}")
    a(f"v_lshlrev_b32 v{dst}, 6, v{t1}")
    a(f"v_bfe_u32 v{t2}, v{L}, 4, 1")
    a(f"v_lshl_add_u32 v{dst}, v{t2}, 5, v{dst}")
    a(f"v_and_b32 v{t2}, 3, v{L}")
    a(f"v_lshl_add_u32 v{dst}, v{t2}, 3, v{dst}")
    if base: a(f"v_add_u32 v{dst}, {base}, v{dst}")

def tr_addr192(a, dst, t1, t2):
    L = V_LANE
    a(f"v_lshrrev_b32 v{t1}, 5, v{L}")
    a(f"v_bfe_u32 v{t2}, v{L}, 2, 2")
    a(f"v_lshl_add_u32 v{t1}, v{t1}, 2, v{t2}")
    a(f"v_mul_u32_u24 v{dst}, 192, v{t1}")
    a(f"v_bfe_u32 v{t2}, v{L}, 4, 1")
    a(f"v_lshl_add_u32 v{dst}, v{t2}, 5, v{dst}")
    a(f"v_and_b32 v{t2}, 3, v{L}")
    a(f"v_lshl_add_u32 v{dst}, v{t2}, 3, v{dst}")

def wtile_voff(a, dst, stride, t1):
    L = V_LANE
    a(f"v_lshrrev_b32 v{t1}, 2, v{L}")
    a(f"v_mul_u32_u24 v{dst}, {stride}, v{t1}")
    a(f"v_and_b32 v{t1}, 3, v{L}")
    a(f"v_lshl_add_u32 v{dst}, v{t1}, 4, v{dst}")

def barrier_team(a, cfg, bidx, nflags, first_s, uniq, work=None):
    T = S_A
    a(f"s_cmp_lg_u32 s{S_W}, 0")
    a(f"s_cbranch_scc1 L_tbo_{uniq}")
    a(f"s_lshl_b32 s{T+4}, s{S_J}, 7")
    a(f"s_add_u32 s{T+4}, s{T+4}, {WS_TFLAG + bidx*1024}")
    a(f"s_lshl_b32 s{T+5}, s{S_H}, 2")
    a(f"s_add_u32 s{T+5}, s{T+5}, s{T+4}")
    team_flag(a, cfg, T+5, uniq)
    if work: work()
    a(f"s_lshl_b32 s{T+4}, s{S_J}, 7")
    a(f"s_add_u32 s{T+4}, s{T+4}, {WS_TFLAG + bidx*1024}")
    if first_s is not None:
        a(f"s_lshl_b32 s{T+5}, s{S_RB2}, 6")
        a(f"s_add_u32 s{T+4}, s{T+4}, s{T+5}")
    a(f"v_and_b32 v2, {nflags-1}, v{V_LANE}")
    a("v_lshlrev_b32 v2, 2, v2")
    poll(a, 2, 3, T+4, uniq)
    a(f"s_branch L_tb_{uniq}")
    a.label(f"L_tbo_{uniq}")
    if work: work()
    a.label(f"L_tb_{uniq}")

def mode_store(a, instr_fmt, uniq):
    a(f"s_cmp_eq_u32 s{S_FAST}, 0")
    a(f"s_cbranch_scc1 L_ms_{uniq}_s")
    for i in instr_fmt: a(i.format(sc=""))
    a(f"s_branch L_ms_{uniq}_d")
    a.label(f"L_ms_{uniq}_s")
    for i in instr_fmt: a(i.format(sc="sc1"))
    a.label(f"L_ms_{uniq}_d")

def reduce4(a, acc, uniq, wsrc_slot):
    pass

def pk_add(a, d, x, y): a(f"v_pk_add_f32 v[{d}:{d+1}], v[{x}:{x+1}], v[{y}:{y+1}]")

def tail(a, cfg):
    L = V_LANE
    T = S_A
    WS = f"s[{S_WS}:{S_WS+3}]"
    WO1, WO0 = 98304, 131072
    OST = 98304
    a(f"s_lshr_b32 s{S_RB}, s{S_H}, 3")
    a(f"s_and_b32 s{S_CB}, s{S_H}, 7")
    a(f"s_lshr_b32 s{S_RB2}, s{S_H}, 4")
    a(f"s_and_b32 s{T+4}, s{S_H}, 15")
    a(f"s_mul_i32 s{T+4}, s{T+4}, {8*21846}")
    a(f"s_lshr_b32 s{S_T0F}, s{T+4}, 16")
    a(f"s_lshl_b32 s{T+4}, s{S_J}, 3")
    a(f"s_add_u32 s{T+4}, s{T+4}, s{S_W}")
    a(f"s_lshl_b32 s{T+4}, s{T+4}, 5")
    a(f"s_add_u32 s{T+4}, s{T+4}, s{S_H}")
    a(f"s_lshl_b32 s{T+4}, s{T+4}, 10")
    a(f"s_add_u32 s{T+4}, s{T+4}, {WS_OF}")
    mode_store(a, [f"buffer_store_dwordx4 v[4:7], v{V_L16}, {WS}, s{T+4} offen {{sc}}"], "o")
    FT, TT, HF = T+11, T+12, T+13
    a(f"s_lshr_b32 s{FT}, s{S_W}, 2")
    a(f"s_bfe_u32 s{TT}, s{S_W}, 0x10001")
    a(f"s_and_b32 s{HF}, s{S_W}, 1")
    COL, ROW, XO = T+14, T+15, T+16
    a(f"s_lshl_b32 s{COL}, s{S_CB}, 6")
    a(f"s_lshl_b32 s{T+5}, s{FT}, 5")
    a(f"s_add_u32 s{COL}, s{COL}, s{T+5}")
    a(f"s_lshl_b32 s{T+5}, s{HF}, 4")
    a(f"s_add_u32 s{COL}, s{COL}, s{T+5}")
    a(f"s_lshl_b32 s{ROW}, s{S_J}, 8")
    a(f"s_lshl_b32 s{T+5}, s{S_RB}, 6")
    a(f"s_add_u32 s{ROW}, s{ROW}, s{T+5}")
    a(f"s_lshl_b32 s{T+5}, s{TT}, 5")
    a(f"s_add_u32 s{ROW}, s{ROW}, s{T+5}")
    a(f"v_mov_b32 v{V_B1K}, v{V_B1R}")
    stamp(a, cfg, 15)
    a(f"v_lshrrev_b32 v10, 3, v{L}")
    a(f"v_lshlrev_b32 v10, 10, v10")
    a(f"v_bfe_u32 v11, v{L}, 4, 1")
    a(f"v_lshlrev_b32 v11, 1, v11")
    a(f"v_bfe_u32 v9, v{L}, 1, 2")
    a(f"v_xor_b32 v9, v9, v11")
    a(f"v_lshl_add_u32 v10, v9, 5, v10")
    a(f"v_and_b32 v9, 1, v{L}")
    a(f"v_lshl_add_u32 v10, v9, 4, v10")
    a(f"s_lshl_b32 s{T+5}, s{S_W}, 16")
    a(f"s_lshl_b32 s{T+6}, s{S_CB}, 7")
    a(f"s_add_u32 s{T+5}, s{T+5}, s{T+6}")
    a(f"s_lshl_b32 s{T+6}, s{S_W}, 13")
    for i in range(8):
        a(f"s_add_u32 m0, s{T+6}, {WO1 + i*1024}")
        a(f"s_add_u32 s{T+7}, s{T+5}, {i*8*1024}")
        a(f"buffer_load_dwordx4 v10, s[{S_WO}:{S_WO+3}], s{T+7} offen lds")
    a(f"s_mov_b32 s{T+7}, 0x1556")
    a(f"v_mul_u32_u24 v47, s{T+7}, v{L}")
    a(f"v_lshrrev_b32 v47, 16, v47")
    a(f"v_mul_u32_u24 v46, 12, v47")
    a(f"v_sub_u32 v46, v{L}, v46")
    a(f"v_mul_u32_u24 v47, 2752, v47")
    a(f"v_lshl_add_u32 v47, v46, 4, v47")
    W1O, W1M = T+17, T+18
    a(f"s_sub_u32 s{T+8}, s{S_W}, 1")
    a(f"s_mul_i32 s{W1O}, s{T+8}, {5*2752}")
    a(f"s_lshl_b32 s{T+6}, s{S_T0F}, 6")
    a(f"s_add_u32 s{W1O}, s{W1O}, s{T+6}")
    a(f"s_mul_i32 s{W1M}, s{T+8}, 960")
    NW1 = 15
    def w1_dma(p):
        if p < 14:
            a(f"s_add_u32 m0, s{W1M}, {T_W1 + p*7*960}")
            a(f"s_add_u32 s{T+7}, s{W1O}, {p*7*5*2752}")
            a(f"buffer_load_dwordx4 v47, s[{S_W1}:{S_W1+3}], s{T+7} offen lds")
        else:
            a(f"s_cmp_ge_u32 s{S_W}, 6")
            a(f"s_mov_b32 s{T+8}, {14*7*960}")
            a(f"s_mov_b32 s{T+7}, {14*7*5*2752}")
            a(f"s_cselect_b32 s{T+8}, {13*7*960}, s{T+8}")
            a(f"s_cselect_b32 s{T+7}, {13*7*5*2752}, s{T+7}")
            a(f"s_add_u32 m0, s{W1M}, s{T+8}")
            a(f"s_add_u32 s{T+7}, s{T+7}, s{W1O}")
            a(f"s_cmp_eq_u32 s{S_W}, 5")
            a(f"s_cselect_b32 exec_lo, 0xffffff, -1")
            a(f"s_cselect_b32 exec_hi, 0, -1")
            a(f"buffer_load_dwordx4 v47, s[{S_W1}:{S_W1+3}], s{T+7} offen lds")
            a("s_mov_b64 exec, -1")
    a(f"s_lshl_b32 s{T+5}, s{ROW}, 10")
    a(f"s_lshl_b32 s{T+6}, s{COL}, 1")
    a(f"s_add_u32 s{XO}, s{T+5}, s{T+6}")
    a("s_waitcnt vmcnt(8)")
    a("s_barrier")
    a(f"s_cmp_lg_u32 s{S_W}, 0")
    a("s_cbranch_scc1 L_o_nf")
    a(f"s_lshl_b32 s{T+4}, s{S_J}, 7")
    a(f"s_add_u32 s{T+4}, s{T+4}, {WS_TFLAG + 2*1024}")
    a(f"s_lshl_b32 s{T+5}, s{S_H}, 2")
    a(f"s_add_u32 s{T+5}, s{T+5}, s{T+4}")
    team_flag(a, cfg, T+5, "o")
    a.label("L_o_nf")
    a(f"v_lshrrev_b32 v9, 5, v{L}")
    a(f"v_bfe_u32 v11, v{L}, 2, 2")
    a(f"v_lshl_add_u32 v9, v9, 2, v11")
    a(f"v_lshlrev_b32 v10, 7, v9")
    a(f"v_bfe_u32 v9, v{L}, 4, 1")
    a(f"s_lshl_b32 s{T+5}, s{FT}, 1")
    a(f"v_or_b32 v9, s{T+5}, v9")
    a(f"v_bfe_u32 v11, v{L}, 3, 1")
    a(f"v_lshlrev_b32 v11, 1, v11")
    a(f"v_xor_b32 v9, v9, v11")
    a(f"v_lshl_add_u32 v10, v9, 5, v10")
    a(f"v_and_b32 v9, 3, v{L}")
    a(f"v_lshl_add_u32 v10, v9, 3, v10")
    a(f"s_lshl_b32 s{T+6}, s{HF}, 15")
    a(f"s_add_u32 s{T+6}, s{T+6}, {WO1}")
    a(f"v_add_u32 v10, s{T+6}, v10")
    a("s_waitcnt vmcnt(1)")
    a(f"s_cmp_eq_u32 s{S_W}, 0")
    a("s_cbranch_scc1 L_o_w0")
    a("s_waitcnt vmcnt(0)")
    a.label("L_o_w0")
    a("s_barrier")
    NA = 8
    for ks in range(16):
        if ks in (7, 14): a("s_waitcnt lgkmcnt(0)")
        a(f"ds_read_b64_tr_b16 v[{80+4*ks}:{81+4*ks}], v10 offset:{ks*2048}")
        a(f"ds_read_b64_tr_b16 v[{82+4*ks}:{83+4*ks}], v10 offset:{ks*2048+1024}")
    OG, OM = T+9, T+10
    a(f"s_lshr_b32 s{T+5}, s{ROW}, 5")
    a(f"s_lshl_b32 s{T+5}, s{T+5}, 5")
    a(f"s_lshl_b32 s{T+6}, s{HF}, 4")
    a(f"s_lshl_b32 s{T+7}, s{FT}, 3")
    a(f"s_add_u32 s{T+6}, s{T+6}, s{T+7}")
    a(f"s_add_u32 s{T+5}, s{T+5}, s{T+6}")
    a(f"s_lshl_b32 s{T+5}, s{T+5}, 10")
    a(f"s_add_u32 s{OG}, s{T+5}, {WS_OF}")
    a(f"s_lshl_b32 s{T+7}, s{TT}, 5")
    a(f"s_add_u32 s{T+6}, s{T+6}, s{T+7}")
    a(f"s_lshl_b32 s{T+6}, s{T+6}, 10")
    a(f"s_add_u32 s{OM}, s{T+6}, {OST}")
    a(f"s_lshl_b32 s{T+6}, s{TT}, 5")
    a(f"s_lshl_b32 s{T+7}, s{HF}, 4")
    a(f"s_add_u32 s{T+6}, s{T+6}, s{T+7}")
    a(f"s_lshl_b32 s{T+6}, s{T+6}, 10")
    a(f"s_add_u32 s{T+6}, s{T+6}, {OST}")
    a(f"v_add_u32 v8, s{T+6}, v{V_L16}")
    a(f"s_cmp_lg_u32 s{S_W}, 0")
    a("s_cbranch_scc1 L_o_np")
    a(f"s_lshl_b32 s{T+4}, s{S_J}, 7")
    a(f"s_add_u32 s{T+4}, s{T+4}, {WS_TFLAG + 2*1024}")
    a(f"v_and_b32 v2, 31, v{L}")
    a("v_lshlrev_b32 v2, 2, v2")
    poll(a, 2, 3, T+4, "o")
    a("s_branch L_o_c0")
    a.label("L_o_np")
    for p in range(NA): w1_dma(p)
    a.label("L_o_c0")
    a("s_waitcnt lgkmcnt(0)")
    a("s_barrier")
    stamp(a, cfg, 16)
    for i in range(8):
        a(f"s_add_u32 m0, s{OM}, {i*1024}")
        a(f"s_add_u32 s{T+7}, s{OG}, {i*1024}")
        a(f"buffer_load_dwordx4 v{V_L16}, {WS}, s{T+7} offen sc1 lds")
    order = [0, 1, 2, 3, 8, 9, 10, 11, 4, 5, 6, 7, 12, 13, 14, 15]
    np_ = NA
    nskip = 0
    def w1_more():
        nonlocal np_, nskip
        a(f"s_cmp_eq_u32 s{S_W}, 0")
        a(f"s_cbranch_scc1 L_o_sk{nskip}")
        w1_dma(np_)
        a.label(f"L_o_sk{nskip}")
        np_ += 1; nskip += 1
    for st in range(2):
        if st == 0: a("s_waitcnt vmcnt(4)")
        else:
            a(f"s_waitcnt vmcnt({np_ - NA})")
            a(f"s_cmp_lg_u32 s{S_W}, 0")
            a("s_cbranch_scc1 L_o_st1")
            a("s_waitcnt vmcnt(0)")
            a.label("L_o_st1")
        a("s_barrier")
        ksl = order[8*st:8*st+8]
        for q in range(2): a(f"ds_read_b128 v[{16+4*q}:{19+4*q}], v8 offset:{ksl[q]*1024}")
        for q, ks in enumerate(ksl):
            if q + 2 < 8: a(f"ds_read_b128 v[{16+4*((q+2)%4)}:{19+4*((q+2)%4)}], v8 offset:{ksl[q+2]*1024}")
            a(f"s_waitcnt lgkmcnt({min(2, 7-q)})")
            b = 16 + 4*(q % 4)
            a(f"v_mfma_f32_32x32x16_bf16 v[48:63], v[{80+4*ks}:{83+4*ks}], v[{b}:{b+3}], " + ("0" if (st == 0 and q == 0) else "v[48:63]"))
            if q % 2 == 1 and np_ < NW1 and (st == 1 or q >= 5):
                w1_more()
    stamp(a, cfg, 17)
    XCH = 0 + OST
    a(f"s_lshl_b32 s{T+5}, s{S_W}, 11")
    a(f"s_add_u32 s{T+5}, s{T+5}, {XCH}")
    a(f"v_add_u32 v8, s{T+5}, v{V_L16}")
    a(f"s_xor_b32 s{T+5}, s{T+5}, 2048")
    a(f"v_add_u32 v9, s{T+5}, v{V_L16}")
    while np_ < NW1:
        w1_more()
    a("s_nop 1")
    a("s_barrier")
    a(f"s_cmp_eq_u32 s{HF}, 0")
    a("s_cbranch_scc0 L_op_k1")
    for kh in range(2):
        if kh == 1: a.label("L_op_k1")
        send = 56 if kh == 0 else 48
        keep = 48 if kh == 0 else 56
        a(f"ds_write_b128 v8, v[{send}:{send+3}]")
        a(f"ds_write_b128 v8, v[{send+4}:{send+7}] offset:1024")
        for n in range(4):
            a(f"v_lshlrev_b32 v{24+2*n}, 16, v{V_XR+n}")
            a(f"v_and_b32 v{25+2*n}, 0xffff0000, v{V_XR+n}")
        for n in range(4): pk_add(a, V_H+2*n, keep+2*n, 24+2*n)
        if kh == 0: a("s_branch L_op_j")
    a.label("L_op_j")
    a("s_waitcnt lgkmcnt(0)")
    a("s_barrier")
    a("ds_read_b128 v[16:19], v9")
    a("ds_read_b128 v[20:23], v9 offset:1024")
    a(f"s_lshr_b32 s{T+5}, s{ROW}, 5")
    a(f"s_lshl_b32 s{T+6}, s{T+5}, 5")
    a(f"s_lshr_b32 s{T+7}, s{COL}, 4")
    a(f"s_add_u32 s{T+8}, s{T+6}, s{T+7}")
    a(f"s_lshl_b32 s{T+6}, s{T+8}, 10")
    a(f"s_add_u32 s{T+6}, s{T+6}, {WS_HF}")
    a(f"s_lshl_b32 s{T+8}, s{T+8}, 8")
    a(f"s_add_u32 s{T+8}, s{T+8}, {WS_HST}")
    a("s_waitcnt lgkmcnt(0)")
    for n in range(4): pk_add(a, V_H+2*n, V_H+2*n, 16+2*n)
    for n in range(4):
        a(f"v_cvt_pk_bf16_f32 v{32+n}, v{V_H+2*n}, v{V_H+2*n+1}")
    mode_store(a, [f"buffer_store_dwordx4 v[32:35], v{V_L16}, {WS}, s{T+6} offen {{sc}}"], "h")
    for n in range(4):
        a(f"v_lshlrev_b32 v{24+2*n}, 16, v{32+n}")
        a(f"v_and_b32 v{25+2*n}, 0xffff0000, v{32+n}")
    a("v_pk_mul_f32 v[16:17], v[24:25], v[24:25]")
    pk_add(a, 18, 24, 26)
    for n in range(1, 4):
        a(f"v_pk_fma_f32 v[16:17], v[{24+2*n}:{25+2*n}], v[{24+2*n}:{25+2*n}], v[16:17]")
    pk_add(a, 20, 28, 30)
    pk_add(a, 18, 18, 20)
    a("v_add_f32 v40, v18, v19")
    a("v_add_f32 v41, v16, v17")
    a(f"v_and_b32 v8, 31, v{L}")
    a("v_mov_b32 v42, v40")
    a("v_mov_b32 v43, v41")
    a("v_lshlrev_b32 v8, 3, v8")
    a("s_nop 0")
    a("v_permlane32_swap_b32 v40, v42")
    a("v_permlane32_swap_b32 v41, v43")
    a("s_nop 0")
    pk_add(a, 40, 40, 42)
    a("s_mov_b64 exec, 0xffffffff")
    mode_store(a, [f"buffer_store_dwordx2 v[40:41], v8, {WS}, s{T+8} offen {{sc}}"], "hs")
    a("s_mov_b64 exec, -1")
    CS1 = OST + 32768
    B1F = CS1 + 384
    a("s_waitcnt vmcnt(0) lgkmcnt(0)")
    a("s_barrier")
    stamp(a, cfg, 18)
    TT4, KH, TILE, HO, SO = T+11, T+12, T+13, T+17, T+18
    def f1_setup():
        a(f"s_lshr_b32 s{TT4}, s{S_W}, 1")
        a(f"s_and_b32 s{KH}, s{S_W}, 1")
        a(f"s_lshl_b32 s{TILE}, s{S_J}, 3")
        a(f"s_lshl_b32 s{T+5}, s{S_RB2}, 2")
        a(f"s_add_u32 s{TILE}, s{TILE}, s{T+5}")
        a(f"s_add_u32 s{TILE}, s{TILE}, s{TT4}")
        a(f"s_lshl_b32 s{T+5}, s{TILE}, 5")
        a(f"s_lshl_b32 s{T+6}, s{KH}, 4")
        a(f"s_add_u32 s{T+5}, s{T+5}, s{T+6}")
        a(f"s_lshl_b32 s{T+5}, s{T+5}, 10")
        a(f"s_add_u32 s{HO}, s{T+5}, {WS_HF}")
        a(f"s_lshl_b32 s{SO}, s{TILE}, 13")
        a(f"s_add_u32 s{SO}, s{SO}, {WS_HST}")
        a(f"v_and_b32 v12, 31, v{L}")
        a("v_lshlrev_b32 v12, 3, v12")
        a(f"v_lshrrev_b32 v14, 5, v{L}")
        a("v_lshl_add_u32 v12, v14, 12, v12")
        tr_addr192(a, 13, 14, 15)
        a(f"s_mul_i32 s{T+5}, s{KH}, {16*3072}")
        a(f"v_add_u32 v13, s{T+5}, v13")
    barrier_team(a, cfg, 3, 16, True, "h", f1_setup)
    a(f"s_sub_u32 s{T+5}, s{S_W}, 1")
    a(f"s_cmp_ge_u32 s{T+5}, 3")
    a("s_cbranch_scc1 L_f1_nocs")
    tr_addr192(a, 10, 11, 9)
    a(f"s_lshl_b32 s{T+6}, s{T+5}, 6")
    a(f"v_add_u32 v10, s{T+6}, v10")
    a(f"v_add_u32 v11, {16*3072}, v10")
    def csrd(ks):
        b = 16 + 4 * (ks % 16)
        va = 10 if ks < 16 else 11
        a(f"ds_read_b64_tr_b16 v[{b}:{b+1}], v{va} offset:{(ks%16)*3072}")
        a(f"ds_read_b64_tr_b16 v[{b+2}:{b+3}], v{va} offset:{(ks%16)*3072+1536}")
    for r in range(4): a(f"v_mov_b32 v{4+r}, 0x3f803f80")
    for ks in range(7): csrd(ks)
    for ks in range(32):
        if ks + 7 < 32: a(f"s_waitcnt lgkmcnt(12)")
        else: a(f"s_waitcnt lgkmcnt({2*(31-ks)})")
        b = 16 + 4 * (ks % 16)
        a(f"v_mfma_f32_32x32x16_bf16 v[80:95], v[{b}:{b+3}], v[4:7], " + ("0" if ks == 0 else "v[80:95]"))
        if ks + 7 < 32: csrd(ks + 7)
    a(f"s_lshl_b32 s{T+6}, s{T+5}, 7")
    a(f"s_add_u32 s{T+6}, s{T+6}, {CS1}")
    a(f"v_lshrrev_b32 v9, 5, v{L}")
    a("v_lshlrev_b32 v9, 4, v9")
    a(f"v_add_u32 v9, s{T+6}, v9")
    a(f"s_mov_b32 exec_lo, 1")
    a(f"s_mov_b32 exec_hi, 1")
    a("s_nop 7")
    for jj in range(4):
        a(f"ds_write_b128 v9, v[{80+4*jj}:{83+4*jj}] offset:{jj*32}")
    a("s_mov_b64 exec, -1")
    a.label("L_f1_nocs")
    a(f"s_cmp_lg_u32 s{S_W}, 7")
    a("s_cbranch_scc1 L_f1_nob1")
    a(f"v_lshlrev_b32 v8, 3, v{L}")
    a(f"v_add_u32 v8, {B1F}, v8")
    a(f"v_lshlrev_b32 v74, 16, v{V_B1K}")
    a(f"v_and_b32 v75, 0xffff0000, v{V_B1K}")
    a(f"v_cmp_gt_u32 vcc, 48, v{L}")
    a(f"s_and_saveexec_b64 s[{T+6}:{T+7}], vcc")
    a("ds_write_b64 v8, v[74:75]")
    a("s_mov_b64 exec, -1")
    a.label("L_f1_nob1")
    a("s_waitcnt lgkmcnt(0)")
    a("s_barrier")
    stamp(a, cfg, 19)
    def h_load(ks):
        if ks and ks % 4 == 0: a(f"s_add_u32 s{HO}, s{HO}, 4096")
        a(f"buffer_load_dwordx4 v[{16+4*ks}:{19+4*ks}], v{V_L16}, {WS}, s{HO} offen offset:{(ks%4)*1024} sc1")
    PD = 6
    for ks in range(PD): h_load(ks)
    W1B = [128, 140]
    SP = 0
    def w1_reads_l(ks):
        b = W1B[ks % 2]
        L_ = []
        for ft in range(3):
            L_.append(f"ds_read_b64_tr_b16 v[{b+4*ft}:{b+4*ft+1}], v13 offset:{ks*3072 + ft*64}")
            L_.append(f"ds_read_b64_tr_b16 v[{b+4*ft+2}:{b+4*ft+3}], v13 offset:{ks*3072 + ft*64 + 1536}")
        return L_
    for i_ in w1_reads_l(0): a(i_)
    F0, GO_ = T+14, T+15
    def xaddr(dst, wreg):
        a(f"s_mul_i32 s{T+5}, s{wreg}, 6144")
        a(f"s_add_u32 s{T+6}, s{T+5}, {OST}")
        a(f"s_add_u32 s{T+5}, s{T+5}, {OST + 32768 + 1536 - 5*6144}")
        a(f"s_cmp_lt_u32 s{wreg}, 5")
        a(f"s_cselect_b32 s{T+5}, s{T+6}, s{T+5}")
        a(f"v_add_u32 v{dst}, s{T+5}, v{V_L16}")
    xaddr(10, S_W)
    a(f"s_xor_b32 s{T+7}, s{S_W}, 1")
    xaddr(11, T+7)
    a(f"s_mul_i32 s{T+5}, s{KH}, 48")
    a(f"s_lshl_b32 s{T+6}, s{S_T0F}, 5")
    a(f"s_add_u32 s{F0}, s{T+5}, s{T+6}")
    a(f"v_lshrrev_b32 v9, 5, v{L}")
    a("v_lshlrev_b32 v9, 4, v9")
    a(f"s_mul_i32 s{T+5}, s{KH}, 192")
    a(f"s_add_u32 s{T+5}, s{T+5}, {CS1}")
    a(f"v_add_u32 v9, s{T+5}, v9")
    a(f"s_mul_i32 s{T+5}, s{TILE}, 86")
    a(f"s_lshr_b32 s{T+6}, s{F0}, 4")
    a(f"s_add_u32 s{T+5}, s{T+5}, s{T+6}")
    a(f"s_lshl_b32 s{T+5}, s{T+5}, 10")
    a(f"s_add_u32 s{GO_}, s{T+5}, {WS_GF}")
    issued = [("h", k) for k in range(PD)]
    def pend_after(item):
        return len(issued) - 1 - issued.index(item)
    for ks in range(16):
        a(f"s_waitcnt vmcnt({pend_after(('h', ks))}) lgkmcnt(0)")
        b = W1B[ks % 2]
        fill = w1_reads_l(ks + 1) if ks < 15 else []
        for ft in range(3):
            a(f"v_mfma_f32_32x32x16_bf16 v[{80+16*ft}:{95+16*ft}], v[{b+4*ft}:{b+4*ft+3}], v[{16+4*ks}:{19+4*ks}], " + ("0" if ks == 0 else f"v[{80+16*ft}:{95+16*ft}]"))
            if ft == 0:
                for i_ in fill: a(i_)
            if ft == 1:
                if ks + PD < 16:
                    h_load(ks + PD); issued.append(("h", ks + PD))
                elif 11 <= ks < 15:
                    for q in range(4*(ks-11), 4*(ks-11)+4):
                        a(f"buffer_load_dwordx2 v[{16+2*q}:{17+2*q}], v12, {WS}, s{SO} offen offset:{q*256} sc1")
                        issued.append(("s", q))
    stamp(a, cfg, 20)
    for n in range(3):
        for jp in range(2):
            a(f"ds_read_b128 v[{48+8*n+4*jp}:{51+8*n+4*jp}], v9 offset:{n*64 + jp*32}")
    a("s_waitcnt vmcnt(0)")
    for n in range(8): a(f"v_pk_add_f32 v[{16+2*n}:{17+2*n}], v[{16+2*n}:{17+2*n}], v[{32+2*n}:{33+2*n}]")
    for n in range(4): a(f"v_pk_add_f32 v[{16+2*n}:{17+2*n}], v[{16+2*n}:{17+2*n}], v[{24+2*n}:{25+2*n}]")
    for n in range(2): a(f"v_pk_add_f32 v[{16+2*n}:{17+2*n}], v[{16+2*n}:{17+2*n}], v[{20+2*n}:{21+2*n}]")
    a("v_pk_add_f32 v[16:17], v[16:17], v[18:19]")
    a(f"s_cmp_eq_u32 s{KH}, 0")
    a("s_cbranch_scc0 L_f1_k1")
    for kh in range(2):
        if kh == 1: a.label("L_f1_k1")
        send = 80 + (24 if kh == 0 else 0)
        keep = 80 + (0 if kh == 0 else 24)
        for n in range(6):
            a(f"ds_write_b128 v10, v[{send+4*n}:{send+4*n+3}] offset:{n*1024}")
        a("v_mov_b32 v18, v16")
        a("v_mov_b32 v19, v17")
        a("s_nop 1")
        a("v_permlane32_swap_b32 v16, v18")
        a("v_permlane32_swap_b32 v17, v19")
        a("s_nop 0")
        a("v_pk_add_f32 v[16:17], v[16:17], v[18:19]")
        a("v_mul_f32 v16, 0x3b000000, v16")
        a("v_mul_f32 v17, 0x3b000000, v17")
        a("v_fma_f32 v17, -v16, v16, v17")
        a("v_add_f32 v17, 0x3727c5ac, v17")
        a("v_rsq_f32 v18, v17")
        a("s_waitcnt lgkmcnt(6)")
        for n in range(3):
            for jp in range(2):
                a(f"ds_read_b128 v[{24+8*n+4*jp}:{27+8*n+4*jp}], v9 offset:{384 + n*64 + jp*32}")
        a("v_mul_f32 v20, v16, v18")
        a("s_waitcnt lgkmcnt(6)")
        a("s_barrier")
        for n in range(6):
            a(f"ds_read_b128 v[{128+4*n}:{131+4*n}], v11 offset:{n*1024}")
        a("s_waitcnt lgkmcnt(6)")
        for n in range(12):
            a(f"v_pk_fma_f32 v[{24+2*n}:{25+2*n}], v[{48+2*n}:{49+2*n}], v[20:21], v[{24+2*n}:{25+2*n}] op_sel_hi:[1,0,1] neg_lo:[0,1,0] neg_hi:[0,1,0]")
        a("s_waitcnt lgkmcnt(0)")
        for part in range(3):
            r0 = 4 * part
            for n in range(r0, r0+4): pk_add(a, keep+2*n, keep+2*n, 128+2*n)
            for n in range(r0, r0+4):
                a(f"v_pk_fma_f32 v[{keep+2*n}:{keep+2*n+1}], v[{keep+2*n}:{keep+2*n+1}], v[18:19], v[{24+2*n}:{25+2*n}] op_sel_hi:[1,0,1]")
            for i in range(2*r0, 2*r0+8):
                a(f"v_max_f32 v{48+i}, 0, v{keep+i}")
            for n in range(r0, r0+4):
                a(f"v_pk_mul_f32 v[{48+2*n}:{49+2*n}], v[{48+2*n}:{49+2*n}], v[{48+2*n}:{49+2*n}]")
            for n in range(r0, r0+4):
                a(f"v_cvt_pk_bf16_f32 v{4+n if False else 72+n-r0+ (0)}, v{48+2*n}, v{49+2*n}") if False else a(f"v_cvt_pk_bf16_f32 v{128+n}, v{48+2*n}, v{49+2*n}")
            mode_store(a, [f"buffer_store_dwordx4 v[{128+r0}:{131+r0}], v{V_L16}, {WS}, s{GO_} offen offset:{part*1024} {{sc}}"], f"g{kh}{part}")
        if kh == 0: a("s_branch L_f1_j")
    a.label("L_f1_j")
    a("s_waitcnt vmcnt(0)")
    a("s_barrier")
    stamp(a, cfg, 21)
    ffn2(a, cfg)

def ffn2(a, cfg):
    L = V_LANE
    T = S_A
    WS = f"s[{S_WS}:{S_WS+3}]"
    FT, KQ = T+11, T+12
    a(f"s_lshr_b32 s{FT}, s{S_W}, 2")
    a(f"s_and_b32 s{KQ}, s{S_W}, 3")
    gbar(a, cfg)
    TILE0 = T+13
    a(f"s_lshl_b32 s{TILE0}, s{S_J}, 3")
    a(f"s_lshl_b32 s{T+5}, s{S_RB}, 1")
    a(f"s_add_u32 s{TILE0}, s{TILE0}, s{T+5}")
    GO, GM = T+17, T+18
    a(f"s_add_u32 s{T+5}, s{TILE0}, s{FT}")
    a(f"s_mul_i32 s{T+5}, s{T+5}, 86")
    a(f"s_mul_i32 s{T+6}, s{KQ}, 22")
    a(f"s_add_u32 s{T+5}, s{T+5}, s{T+6}")
    a(f"s_lshl_b32 s{T+5}, s{T+5}, 10")
    a(f"s_add_u32 s{GO}, s{T+5}, {WS_GF}")
    a(f"s_mul_i32 s{T+6}, s{KQ}, 40960")
    a(f"v_add_u32 v8, s{T+6}, v{V_L16}")
    a(f"s_lshl_b32 s{T+7}, s{FT}, 10")
    a(f"s_add_u32 s{GM}, s{T+6}, s{T+7}")
    D0, D1 = T+9, T+10
    a(f"s_mul_i32 s{T+5}, s{TILE0}, 86")
    a(f"s_mul_i32 s{T+7}, s{KQ}, 22")
    a(f"s_add_u32 s{T+5}, s{T+5}, s{T+7}")
    a(f"s_add_u32 s{T+5}, s{T+5}, 20")
    a(f"s_lshl_b32 s{T+5}, s{T+5}, 10")
    a(f"s_add_u32 s{D0}, s{T+5}, {WS_GF}")
    a(f"s_add_u32 s{D1}, s{D0}, {86*1024}")
    a(f"s_cmp_eq_u32 s{KQ}, 3")
    a(f"s_cselect_b32 s{D0}, 0x40000000, s{D0}")
    a(f"s_cselect_b32 s{D1}, 0x40000000, s{D1}")
    for r in range(80, 112): a(f"v_mov_b32 v{r}, 0")
    a("s_barrier")
    stamp(a, cfg, 22)
    def g_dma(ks):
        a(f"s_add_u32 m0, s{GM}, {ks*2048}")
        a(f"s_add_u32 s{T+7}, s{GO}, {ks*1024}")
        a(f"buffer_load_dwordx4 v{V_L16}, {WS}, s{T+7} offen sc1 lds")
    def g_reads(ks):
        b = 16 + 8 * (ks % 4)
        a(f"ds_read_b128 v[{b}:{b+3}], v8 offset:{ks*2048}")
        a(f"ds_read_b128 v[{b+4}:{b+7}], v8 offset:{ks*2048+1024}")
    NS = 4
    nst = 20 // NS
    for ks in range(2 * NS): g_dma(ks)
    nis = 2 * NS
    for si in range(nst):
        k0, k1 = si * NS, (si + 1) * NS
        a(f"s_waitcnt vmcnt({nis - k1})")
        if cfg.f2_detail: stamp(a, cfg, 0 + si)
        a("s_barrier")
        if cfg.f2_detail: stamp(a, cfg, 5 + si)
        g_reads(k0); g_reads(k0 + 1)
        for ks in range(k0, k1):
            if ks + 2 < k1: g_reads(ks + 2)
            left = min(k1 - 1, ks + 2) - ks
            a(f"s_waitcnt lgkmcnt({2*left})")
            b = 16 + 8 * (ks % 4)
            a(f"v_mfma_f32_32x32x16_bf16 v[80:95], v[{V_W2+4*ks}:{V_W2+4*ks+3}], v[{b}:{b+3}], v[80:95]")
            if nis < 20: g_dma(nis); nis += 1
            elif nis < 24:
                q = nis - 20; nis += 1
                a(f"buffer_load_dwordx4 v[{48+4*q}:{51+4*q}], v{V_L16}, {WS}, s{D0 if q % 2 == 0 else D1} offen offset:{(q//2)*1024} sc1")
            a(f"v_mfma_f32_32x32x16_bf16 v[96:111], v[{V_W2+4*ks}:{V_W2+4*ks+3}], v[{b+4}:{b+7}], v[96:111]")
    a("s_waitcnt vmcnt(0)")
    for q in range(2):
        ks = 20 + q
        for tt in range(2):
            a(f"v_mfma_f32_32x32x16_bf16 v[{80+16*tt}:{95+16*tt}], v[{V_W2+4*ks}:{V_W2+4*ks+3}], v[{48+8*q+4*tt}:{48+8*q+4*tt+3}], v[{80+16*tt}:{95+16*tt}]")
    stamp(a, cfg, 23)
    a(f"s_lshl_b32 s{T+5}, s{FT}, 15")
    a(f"s_lshl_b32 s{T+6}, s{KQ}, 11")
    a(f"s_add_u32 s{T+5}, s{T+5}, s{T+6}")
    a(f"v_add_u32 v8, s{T+5}, v{V_L16}")
    a(f"s_lshl_b32 s{T+5}, s{S_W}, 13")
    a(f"v_add_u32 v9, s{T+5}, v{V_L16}")
    for n in range(4):
        a(f"v_lshlrev_b32 v{56+2*n}, 16, v{V_B2+n}")
        a(f"v_and_b32 v{57+2*n}, 0xffff0000, v{V_B2+n}")
    for n in range(4): pk_add(a, 56+2*n, 56+2*n, V_H+2*n)
    a("s_barrier")
    for ttp in range(2):
        for hp in range(2):
            off = (2*ttp + hp) * 8192
            r = 80 + 16*ttp + 8*hp
            a(f"ds_write_b128 v8, v[{r}:{r+3}] offset:{off}")
            a(f"ds_write_b128 v8, v[{r+4}:{r+7}] offset:{off+1024}")
    a("s_waitcnt lgkmcnt(0)")
    a("s_barrier")
    for q in range(4):
        a(f"ds_read_b128 v[{16+8*q}:{19+8*q}], v9 offset:{q*2048}")
        a(f"ds_read_b128 v[{20+8*q}:{23+8*q}], v9 offset:{q*2048+1024}")
    a(f"v_and_b32 v8, 31, v{L}")
    a("v_lshlrev_b32 v8, 10, v8")
    a(f"v_lshrrev_b32 v9, 5, v{L}")
    a("v_lshl_add_u32 v8, v9, 4, v8")
    a("s_waitcnt lgkmcnt(0)")
    for n in range(4):
        pk_add(a, 16+2*n, 16+2*n, 24+2*n)
        pk_add(a, 32+2*n, 32+2*n, 40+2*n)
    for n in range(4): pk_add(a, 16+2*n, 16+2*n, 56+2*n)
    for n in range(4): pk_add(a, 16+2*n, 16+2*n, 32+2*n)
    for n in range(4):
        a(f"v_cvt_pk_bf16_f32 v{24+n}, v{16+2*n}, v{17+2*n}")
    a("s_nop 1")
    a("v_permlane32_swap_b32 v24, v26")
    a("v_permlane32_swap_b32 v25, v27")
    a("s_nop 0")
    a(f"buffer_store_dwordx4 v[24:27], v8, s[{S_OUT}:{S_OUT+3}], s{S_A+16} offen")
    stamp(a, cfg, 24)

def gbar(a, cfg):
    T = S_A
    barrier_team(a, cfg, 4, 16, True, "g")
```

```python
import sys
from asmlib import *

NAME = "sequential_preLN__mha_block__dense_activation_squared_relu__prompt"
KNAME = NAME + "_kernel"

WS_EPOCH = 0x0
WS_KVFLAG = 0x1000
WS_TFLAG = 0x10000
WS_KV = 0x100000
WS_OF = 0x500000
WS_HF = 0x700000
WS_GF = 0x900000
WS_QF = 0x1000000
WS_KVL = 0x1200000
WS_HST = 0xE80000
WS_STAMP = 0xF00000
WS_SIZE = 0x1600000

S_X, S_WQKV, S_WS, S_WO, S_W1, S_W2, S_OUT, S_B1, S_B2 = 4, 8, 12, 16, 20, 24, 28, 32, 36
S_DBG = 40
S_J, S_H, S_W, S_TAG, S_FAST = 42, 43, 44, 45, 46
S_RERUN = 47
S_VMASK = 48
S_T0 = 50
S_KA = 52
S_BLK = 74
S_XCC = 75
S_MODE = 99
S_A = 76
S_STAMP = 96
S_STB = 98

LDS_SIZE = 163840

class Cfg:
    stamps = False
    stop_after = None
    p1_prefetch = False
    p1_detail = False
    force_slow = False
    f2_detail = False
    at_detail = False
    dbgt = False
    rt = False
    exp = 'rotj_nowl2_late23_S3'
    skip_p1 = False
    attn_variant = 1
    prio = 0

DBG_MAP = {40: 11, 41: 12, 0: 13, 4: 14, 18: 15, 1: 1, 2: 2, 14: 3, 12: 4, 8: 5, 16: 6, 19: 7, 21: 8, 22: 9, 24: 10}
def stamp(a, cfg, idx):
    if cfg.dbgt and idx in DBG_MAP:
        lab = f"L_dbg{idx}_{len(a.lines)}"
        a(f"s_lshl_b32 s{S_STAMP}, s{S_W}, 8")
        a(f"s_or_b32 s{S_STAMP}, s{S_STAMP}, s2")
        a(f"s_cmp_lg_u32 s{S_STAMP}, 41")
        a(f"s_cbranch_scc1 {lab}")
        a(f"s_memrealtime s[{S_STAMP}:{S_STAMP+1}]")
        a("s_waitcnt lgkmcnt(0)")
        if idx == 29: a(f"s_not_b32 s{S_STAMP}, s{S_STAMP}")
        a(f"v_mov_b32 v254, s{S_STAMP}")
        a(f"v_mov_b32 v255, {DBG_MAP[idx]*4}")
        a("s_mov_b64 exec, 1")
        a(f"global_atomic_umax v255, v254, s[{S_KA+18}:{S_KA+19}]")
        a("s_mov_b64 exec, -1")
        a.label(lab)
        return
    if not cfg.stamps: return
    a(f"{'s_memrealtime' if cfg.rt else 's_memtime'} s[{S_STAMP}:{S_STAMP+1}]")
    a("s_waitcnt lgkmcnt(0)")
    a(f"v_writelane_b32 v255, s{S_STAMP}, {idx}")

def stamp_flush(a, cfg):
    if not cfg.stamps: return
    a(f"s_memrealtime s[{S_STAMP}:{S_STAMP+1}]")
    a("s_waitcnt lgkmcnt(0)")
    a(f"v_writelane_b32 v255, s{S_STAMP}, 31")
    a(f"s_lshl_b32 s{S_STB}, s2, 3")
    a(f"s_add_u32 s{S_STB}, s{S_STB}, s{S_W}")
    a(f"s_lshl_b32 s{S_STB}, s{S_STB}, 7")
    a(f"s_add_u32 s{S_STB}, s{S_STB}, {WS_STAMP}")
    a(f"v_lshlrev_b32 v254, 2, v{V_LANE}")
    a("s_mov_b64 exec, 0xffffffff")
    a(f"buffer_store_dword v255, v254, s[{S_WS}:{S_WS+3}], s{S_STB} offen")
    a("s_mov_b64 exec, -1")

V_Q = 240
V_XRES = 244
V_B2 = 248
V_L16 = 252
V_LANE = 253

def srd(a, s, lo, hi, size):
    a(f"s_mov_b32 s{s}, s{lo}")
    a(f"s_mov_b32 s{s+1}, s{hi}")
    a(f"s_mov_b32 s{s+2}, {size}")
    a(f"s_mov_b32 s{s+3}, 0x00020000")

def prologue(a, cfg):
    a("s_cmp_ge_u32 s2, 256")
    a("s_cbranch_scc1 L_end")
    a(f"s_load_dwordx16 s[{S_KA}:{S_KA+15}], s[0:1], 0")
    a(f"s_load_dwordx4 s[{S_KA+16}:{S_KA+19}], s[0:1], 64")
    a(f"s_load_dwordx2 s[{S_KA+20}:{S_KA+21}], s[0:1], 80")
    a(f"v_and_b32 v{V_LANE}, 63, v0")
    a("v_lshrrev_b32 v2, 6, v0")
    a(f"v_lshlrev_b32 v{V_L16}, 4, v{V_LANE}")
    a(f"v_readfirstlane_b32 s{S_W}, v2")
    a(f"s_and_b32 s{S_J}, s2, 7")
    a(f"s_lshr_b32 s{S_H}, s2, 3")
    a(f"s_mov_b32 s{S_VMASK}, 0x0000ffff")
    a(f"s_mov_b32 s{S_VMASK+1}, 0x0000ffff")
    a(f"s_getreg_b32 s{S_XCC}, hwreg(HW_REG_XCC_ID, 0, 4)")
    a(f"s_mov_b32 s{S_RERUN}, 0")
    if cfg.dbgt: a(f"s_memrealtime s[90:91]")
    if cfg.stamps:
        a(f"s_memrealtime s[{S_STAMP}:{S_STAMP+1}]")
        a("s_waitcnt lgkmcnt(0)")
        a(f"v_writelane_b32 v255, s{S_STAMP}, 30")
        stamp(a, cfg, 29)

P1_SLOT = 32768
P1_MISC = 131072
P1_CS = P1_MISC
P1_ST = P1_MISC + 4096
P1_PR = P1_MISC + 1024
P1_CSV = P1_MISC + 512
S_G, S_Q4, S_AH, S_TT = 100, 101, 3, 51

def phase1(a, cfg):
    L = V_LANE
    T = S_A
    TMP, TMP2, XO, WO_, M0B = T+9, T+10, T+4, T+1, T+2
    a(f"s_lshr_b32 s{S_G}, s{S_H}, 2")
    a(f"s_and_b32 s{S_Q4}, s{S_H}, 3")
    a(f"s_and_b32 s{S_AH}, s{S_W}, 3")
    a(f"s_lshr_b32 s{S_TT}, s{S_W}, 2")
    a(f"v_lshrrev_b32 v10, 3, v{L}")
    a(f"v_and_b32 v11, 7, v{L}")
    a(f"v_lshrrev_b32 v12, 4, v{L}")
    a(f"s_and_b32 s{TMP}, s{S_W}, 1")
    a(f"s_lshl_b32 s{TMP}, s{TMP}, 2")
    a(f"v_add_u32 v13, s{TMP}, v12")
    a(f"v_xor_b32 v13, v11, v13")
    a(f"v_lshlrev_b32 v13, 4, v13")
    a(f"v_lshl_add_u32 v2, v10, 10, v13")
    a(f"v_mul_u32_u24 v10, 3072, v10")
    a(f"v_and_b32 v12, 1, v12")
    a(f"v_lshrrev_b32 v13, 1, v11")
    a(f"v_and_b32 v14, 1, v11")
    a(f"v_lshl_add_u32 v10, v14, 4, v10")
    a(f"v_xor_b32 v14, v13, v12")
    a(f"v_lshl_add_u32 v3, v14, 5, v10")
    a(f"v_xor_b32 v14, 2, v14")
    a(f"v_lshl_add_u32 v4, v14, 5, v10")
    a(f"v_add_u32 v4, 1024, v4")
    a(f"v_lshlrev_b32 v12, 1, v12")
    a(f"v_xor_b32 v14, v13, v12")
    a(f"v_lshl_add_u32 v5, v14, 5, v10")
    a(f"v_add_u32 v5, 2048, v5")
    a(f"s_lshl_b32 s{XO}, s{S_J}, 8")
    a(f"s_lshl_b32 s{TMP}, s{S_Q4}, 6")
    a(f"s_add_u32 s{XO}, s{XO}, s{TMP}")
    a(f"s_lshl_b32 s{TMP}, s{S_W}, 3")
    a(f"s_add_u32 s{XO}, s{XO}, s{TMP}")
    a(f"s_lshl_b32 s{XO}, s{XO}, 10")
    a(f"s_mul_i32 s{WO_}, s{TMP}, 3072")
    a(f"s_lshl_b32 s{TMP}, s{S_G}, 7")
    a(f"s_add_u32 s{WO_}, s{WO_}, s{TMP}")
    a(f"s_lshl_b32 s{M0B}, s{S_W}, 10")
    a("s_waitcnt lgkmcnt(0)")
    k = S_KA
    srd(a, S_X, k, k+1, 2097152)
    srd(a, S_WQKV, k+2, k+3, 1572864)
    srd(a, S_WS, k+20, k+21, WS_SIZE)
    if cfg.dbgt:
        a(f"s_lshl_b32 s{S_STAMP}, s{S_W}, 8")
        a(f"s_or_b32 s{S_STAMP}, s{S_STAMP}, s2")
        a(f"s_cmp_lg_u32 s{S_STAMP}, 41")
        a("s_cbranch_scc1 L_dbgstart")
        a("s_not_b32 s90, s90")
        a("v_mov_b32 v254, s90")
        a("v_mov_b32 v255, 0")
        a("s_mov_b64 exec, 1")
        a(f"global_atomic_umax v255, v254, s[{S_KA+18}:{S_KA+19}]")
        a("s_mov_b64 exec, -1")
        a.label("L_dbgstart")
        stamp(a, cfg, 40)
    C0 = T+12
    if 'rotg' in cfg.exp: a(f"s_mov_b32 s{C0}, s{S_G}")
    elif 'rot0' in cfg.exp: a(f"s_mov_b32 s{C0}, 0")
    elif 'rotj' in cfg.exp: a(f"s_mov_b32 s{C0}, s{S_J}")
    elif 'rotk' in cfg.exp:
        a(f"s_add_u32 s{C0}, s{S_J}, s{S_G}")
    else:
        a(f"s_lshl_b32 s{C0}, s{S_Q4}, 1")
        a(f"s_add_u32 s{C0}, s{C0}, s{S_G}")
    NT = 'nt ' if 'nt1' in cfg.exp else ''
    def group(c):
        base = (c % 4) * P1_SLOT
        a(f"s_add_u32 s{TMP2}, s{C0}, {c}")
        a(f"s_and_b32 s{TMP2}, s{TMP2}, 7")
        a(f"s_lshl_b32 s{TMP}, s{TMP2}, 7")
        a(f"s_add_u32 s{TMP}, s{TMP}, s{XO}")
        a(f"s_add_u32 m0, s{M0B}, {base}")
        a(f"s_mul_i32 s{TMP2}, s{TMP2}, {64*3072}")
        a(f"buffer_load_dwordx4 v2, s[{S_X}:{S_X+3}], s{TMP} offen {NT}lds")
        a(f"s_add_u32 m0, s{M0B}, {base+8192}")
        a(f"s_add_u32 s{TMP}, s{WO_}, s{TMP2}")
        a(f"buffer_load_dwordx4 v3, s[{S_WQKV}:{S_WQKV+3}], s{TMP} offen {NT}lds")
        a(f"s_add_u32 m0, s{M0B}, {base+16384}")
        a("s_nop 0")
        a(f"buffer_load_dwordx4 v4, s[{S_WQKV}:{S_WQKV+3}], s{TMP} offen {NT}lds")
        a(f"s_add_u32 m0, s{M0B}, {base+24576}")
        a("s_nop 0")
        a(f"buffer_load_dwordx4 v5, s[{S_WQKV}:{S_WQKV+3}], s{TMP} offen {NT}lds")
    a("v_mov_b32 v30, 0")
    a(f"buffer_load_dword v31, v30, s[{S_WS}:{S_WS+3}], 0 offen")
    group(0)
    if 'g0only' in cfg.exp:
        stamp(a, cfg, 0)
        a("s_waitcnt vmcnt(3)"); stamp(a, cfg, 2)
        a("s_waitcnt vmcnt(2)"); stamp(a, cfg, 3)
        a("s_waitcnt vmcnt(0)"); stamp(a, cfg, 4)
        a("s_barrier"); stamp(a, cfg, 1)
        return
    if cfg.p1_prefetch:
        a(f"s_cmp_ge_u32 s{S_W}, 6")
        a("s_cbranch_scc1 L_p1_pfx")
        a(f"s_and_b32 s{TMP}, s{S_W}, 1")
        a(f"s_lshl_b32 s{TMP}, s{TMP}, 6")
        a(f"s_lshl_b32 s{TMP2}, s{S_Q4}, 7")
        a(f"s_add_u32 s{TMP}, s{TMP}, s{TMP2}")
        a(f"s_mul_i32 s{TMP}, s{TMP}, 3072")
        a(f"s_lshr_b32 s{TMP2}, s{S_W}, 1")
        a(f"s_lshl_b32 s{TMP2}, s{TMP2}, 10")
        a(f"s_add_u32 s{TMP}, s{TMP}, s{TMP2}")
        a(f"s_lshl_b32 s{TMP2}, s{S_G}, 7")
        a(f"s_add_u32 s{TMP}, s{TMP}, s{TMP2}")
        a(f"v_mul_u32_u24 v40, 3072, v{L}")
        a(f"buffer_load_dword v41, v40, s[{S_WQKV}:{S_WQKV+3}], s{TMP} offen")
        a(f"buffer_load_dword v42, v40, s[{S_WQKV}:{S_WQKV+3}], s{TMP} offen offset:64")
        a("s_branch L_p1_pfd")
        a.label("L_p1_pfx")
        a(f"s_lshl_b32 s{TMP}, s{S_J}, 8")
        a(f"s_lshl_b32 s{TMP2}, s{S_Q4}, 6")
        a(f"s_add_u32 s{TMP}, s{TMP}, s{TMP2}")
        a(f"s_lshl_b32 s{TMP2}, s{S_G}, 3")
        a(f"s_add_u32 s{TMP}, s{TMP}, s{TMP2}")
        a(f"s_lshl_b32 s{TMP}, s{TMP}, 10")
        a(f"v_lshlrev_b32 v40, 7, v{L}")
        a(f"buffer_load_dword v41, v40, s[{S_X}:{S_X+3}], s{TMP} offen")
        a(f"buffer_load_dword v42, v40, s[{S_X}:{S_X+3}], s{TMP} offen offset:64")
        a.label("L_p1_pfd")
    if 'nowl2' not in cfg.exp:
        a(f"s_lshl_b32 s{TMP}, s{S_H}, 3")
        a(f"s_add_u32 s{TMP}, s{TMP}, s{S_W}")
        a(f"s_mul_i32 s{TMP}, s{TMP}, 6144")
        for i in range(4):
            a(f"buffer_load_dwordx4 v[40:43], v{V_L16}, s[{S_WQKV}:{S_WQKV+3}], s{TMP} offen offset:{i*1024}")
        a(f"s_add_u32 s{TMP}, s{TMP}, 4096")
        for i in range(2):
            a(f"buffer_load_dwordx4 v[40:43], v{V_L16}, s[{S_WQKV}:{S_WQKV+3}], s{TMP} offen offset:{i*1024}")
        a(f"s_lshl_b32 s{TMP}, s{S_J}, 8")
        a(f"s_lshl_b32 s{TMP2}, s{S_Q4}, 6")
        a(f"s_add_u32 s{TMP}, s{TMP}, s{TMP2}")
        a(f"s_lshl_b32 s{TMP2}, s{S_G}, 3")
        a(f"s_add_u32 s{TMP}, s{TMP}, s{TMP2}")
        a(f"s_add_u32 s{TMP}, s{TMP}, s{S_W}")
        a(f"s_lshl_b32 s{TMP}, s{TMP}, 10")
        a(f"buffer_load_dwordx4 v[40:43], v{V_L16}, s[{S_X}:{S_X+3}], s{TMP} offen")
    a("s_barrier")
    if cfg.dbgt: stamp(a, cfg, 41)
    if 'nowl2' in cfg.exp: group(1)
    if 'sibpf' in cfg.exp:
        a(f"s_add_u32 s{TMP2}, s{C0}, s{S_Q4}")
        a(f"s_add_u32 s{TMP2}, s{TMP2}, 4")
        a(f"s_and_b32 s{TMP2}, s{TMP2}, 7")
        a(f"s_mul_i32 s{TMP2}, s{TMP2}, {64*3072}")
        a(f"s_add_u32 s{TMP}, s{WO_}, s{TMP2}")
        for vv in (3, 4, 5):
            a(f"buffer_load_dwordx4 v[40:43], v{vv}, s[{S_WQKV}:{S_WQKV+3}], s{TMP} offen")
        a(f"s_add_u32 s{TMP2}, s{C0}, s{S_G}")
        a(f"s_and_b32 s{TMP2}, s{TMP2}, 7")
        a(f"s_lshl_b32 s{TMP}, s{TMP2}, 7")
        a(f"s_add_u32 s{TMP}, s{TMP}, s{XO}")
        a(f"buffer_load_dwordx4 v[40:43], v2, s[{S_X}:{S_X+3}], s{TMP} offen")
    a(f"v_and_b32 v20, 31, v{L}")
    a(f"v_lshrrev_b32 v21, 5, v{L}")
    a(f"v_bfe_u32 v22, v{L}, 1, 3")
    a(f"v_xor_b32 v22, v21, v22")
    a(f"v_lshlrev_b32 v22, 4, v22")
    a(f"v_lshl_add_u32 v22, v20, 7, v22")
    a(f"s_lshl_b32 s{TMP}, s{S_TT}, 12")
    a(f"v_add_u32 v8, s{TMP}, v22")
    a(f"v_xor_b32 v9, 32, v8")
    a(f"v_xor_b32 v10, 64, v8")
    a(f"v_xor_b32 v11, 96, v8")
    a(f"s_lshl_b32 s{TMP}, s{S_AH}, 5")
    a(f"v_xor_b32 v7, s{TMP}, v8")
    a(f"v_bfe_u32 v20, v{L}, 2, 2")
    a(f"v_lshl_add_u32 v23, v21, 3, v20")
    a(f"v_lshlrev_b32 v23, 7, v23")
    a(f"v_and_b32 v22, 3, v{L}")
    a(f"v_lshl_add_u32 v23, v22, 3, v23")
    a(f"v_bfe_u32 v24, v{L}, 3, 1")
    a(f"v_bfe_u32 v25, v{L}, 4, 1")
    a(f"v_lshlrev_b32 v26, 1, v25")
    a(f"v_xor_b32 v26, v26, v24")
    a(f"v_xor_b32 v26, s{S_AH}, v26")
    a(f"v_lshl_add_u32 v12, v26, 5, v23")
    a(f"v_lshl_add_u32 v12, v25, 13, v12")
    a(f"v_add_u32 v12, 8192, v12")
    a(f"s_and_b32 s{TMP}, s{S_AH}, 2")
    a(f"v_lshlrev_b32 v26, 1, v24")
    a(f"v_or_b32 v25, s{TMP}, v25")
    a(f"v_xor_b32 v26, v26, v25")
    a(f"v_lshl_add_u32 v13, v26, 5, v23")
    a(f"v_add_u32 v13, 24576, v13")
    a("v_mov_b32 v18, 0x3f803f80")
    for r in (14, 15, 16, 17, 22, 23): a(f"v_mov_b32 v{r}, 0")
    for r in range(48, 80): a(f"v_mov_b32 v{r}, 0")
    if 'nowl2' in cfg.exp and 'late23' not in cfg.exp:
        a("s_barrier")
        group(2); group(3)
    if 'tlb' in cfg.exp:
        a(f"s_cmp_lg_u32 s{S_W}, 7")
        a("s_cbranch_scc1 L_p1_notlb")
        a(f"v_lshlrev_b32 v40, 14, v{L}")
        a(f"s_lshl_b32 s{TMP}, s{S_H}, 20")
        a(f"buffer_load_dword v42, v40, s[{S_WS}:{S_WS+3}], s{TMP} offen")
        a(f"v_lshlrev_b32 v40, 10, v{L}")
        a(f"s_lshl_b32 s{TMP}, s{S_H}, 16")
        a(f"buffer_load_dword v43, v40, s[{S_KA+16}:{S_KA+19}], s{TMP} offen") if False else None
        a.label("L_p1_notlb")
    NPT = 5 if 'ptkv' in cfg.exp else 3
    a(f"s_cmp_ge_u32 s{S_W}, {NPT}")
    a("s_cbranch_scc1 L_p1_nopt")
    a(f"s_lshl_b32 s{TMP}, s{S_H}, 3")
    a(f"s_add_u32 s{TMP}, s{TMP}, s{S_J}")
    a(f"s_lshl_b32 s{TMP2}, s{TMP}, 14")
    a(f"s_lshl_b32 s{TMP}, s{TMP}, 13")
    a(f"s_add_u32 s{TMP}, s{TMP}, {WS_QF}")
    a(f"s_cmp_eq_u32 s{S_W}, 0")
    a("s_cbranch_scc1 L_p1_ptgo")
    a(f"s_sub_u32 s{TMP}, s{S_W}, 1")
    a(f"s_and_b32 s{T+13}, s{TMP}, 1")
    a(f"s_lshl_b32 s{T+13}, s{T+13}, 13")
    a(f"s_add_u32 s{TMP2}, s{TMP2}, s{T+13}")
    a(f"s_cmp_lt_u32 s{TMP}, 2")
    a(f"s_mov_b32 s{TMP}, {WS_KV}")
    a(f"s_cselect_b32 s{TMP}, {WS_KVL}, s{TMP}")
    a(f"s_add_u32 s{TMP}, s{TMP}, s{TMP2}")
    a.label("L_p1_ptgo")
    a(f"v_lshlrev_b32 v44, 7, v{L}")
    a(f"buffer_load_dword v45, v44, s[{S_WS}:{S_WS+3}], s{TMP} offen")
    a.label("L_p1_nopt")
    a(f"s_lshl_b32 s92, s{S_G}, 2")
    a(f"s_add_u32 s92, s92, s{S_AH}")
    a(f"s_lshl_b32 s92, s92, 3")
    a(f"s_add_u32 s92, s92, s{S_J}")
    a(f"s_lshl_b32 s93, s{S_Q4}, 1")
    a(f"s_add_u32 s93, s93, s{S_TT}")
    a(f"s_lshl_b32 s93, s93, 10")
    a(f"s_lshl_b32 s94, s92, 14")
    a(f"s_add_u32 s94, s94, s93")
    a(f"s_lshl_b32 s92, s92, 13")
    a(f"s_add_u32 s92, s92, s93")
    a(f"s_add_u32 s92, s92, {WS_QF}")
    a(f"s_add_u32 s93, s94, {WS_KVL}")
    a(f"s_add_u32 s94, s94, {WS_KV}")
    srd(a, S_WO, k+4, k+5, 524288)
    srd(a, S_W1, k+8, k+9, 1409024)
    srd(a, S_B1, k+10, k+11, 2752)
    srd(a, S_W2, k+12, k+13, 1409024)
    srd(a, S_B2, k+14, k+15, 1024)
    srd(a, S_OUT, k+16, k+17, 2097152)
    a(f"s_mov_b32 s{S_DBG}, s{k+18}")
    a(f"s_mov_b32 s{S_DBG+1}, s{k+19}")
    if 'tlb' in cfg.exp:
        a(f"s_cmp_lg_u32 s{S_W}, 6")
        a("s_cbranch_scc1 L_p1_notlb2")
        a(f"v_lshlrev_b32 v40, 10, v{L}")
        a(f"s_lshl_b32 s{TMP}, s{S_H}, 16")
        for srd_, dst in ((S_OUT, 42), (S_W1, 43), (S_W2, 44), (S_WO, 45)):
            a(f"buffer_load_dword v{dst}, v40, s[{srd_}:{srd_+3}], s{TMP} offen")
        a.label("L_p1_notlb2")
    stamp(a, cfg, 0)
    a(f"s_waitcnt vmcnt({((4 if 'late23' in cfg.exp else 12) + (4 if 'sibpf' in cfg.exp else 0)) if 'nowl2' in cfg.exp else 7})")
    a(f"v_readfirstlane_b32 s{S_TAG}, v31")
    a("s_waitcnt lgkmcnt(0)")
    a(f"s_mul_i32 s{S_TAG}, s{S_TAG}, 1664525")
    a(f"s_add_u32 s{S_TAG}, s{S_TAG}, 1013904223")
    a("s_barrier")
    stamp(a, cfg, 1)
    XB = [80 + 4*i for i in range(4)]
    XS = 96
    WQ = [112 + 8*i for i in range(4)]; WVr = [116 + 8*i for i in range(4)]
    def reads_l(c, ks, owner):
        o = (c % 4) * P1_SLOT
        L_ = []
        L_.append(f"ds_read_b128 v[{XB[ks]}:{XB[ks]+3}], v{8+ks} offset:{o % 65536}" if o < 65536 else f"ds_read_b128 v[{XB[ks]}:{XB[ks]+3}], v{148+ks} offset:{o-65536}")
        qa = 12 if o < 65536 else 152
        oo = (o % 65536) + ks*2048
        L_.append(f"ds_read_b64_tr_b16 v[{WQ[ks]}:{WQ[ks]+1}], v{qa} offset:{oo}")
        L_.append(f"ds_read_b64_tr_b16 v[{WQ[ks]+2}:{WQ[ks]+3}], v{qa} offset:{oo+512}")
        if owner:
            va = 13 if o < 65536 else 153
            L_.append(f"ds_read_b64_tr_b16 v[{WVr[ks]}:{WVr[ks]+1}], v{va} offset:{oo}")
            L_.append(f"ds_read_b64_tr_b16 v[{WVr[ks]+2}:{WVr[ks]+3}], v{va} offset:{oo+512}")
        return L_
    def reads(c, ks, owner):
        for i_ in reads_l(c, ks, owner): a(i_)
    ONES = 156; CSV = 160
    def sread_l(c, owner):
        o = (c % 4) * P1_SLOT
        xs = XS + 4 * (c % 2)
        L_ = [f"ds_read_b128 v[{xs}:{xs+3}], v{7 if o < 65536 else 154} offset:{o % 65536}"]
        if not owner:
            va = 6 if o < 65536 else 155
            for q in range(2):
                b = 176 + 8 * (c % 2) + 4 * q
                L_.append(f"ds_read_b64_tr_b16 v[{b}:{b+1}], v{va} offset:{(o % 65536) + q*2048}")
                L_.append(f"ds_read_b64_tr_b16 v[{b+2}:{b+3}], v{va} offset:{(o % 65536) + q*2048 + 512}")
        return L_
    def sread(c, owner):
        for i_ in sread_l(c, owner): a(i_)
    def stats_l(c, r):
        t = 36 + 2 * (r & 1)
        xs = XS + 4 * (c % 2)
        return [f"v_lshlrev_b32 v{t}, 16, v{xs+r}", f"v_and_b32 v{t+1}, 0xffff0000, v{xs+r}", f"v_fmac_f32 v14, v{t}, v{t}",
                f"v_add_f32 v22, v22, v{t}", f"v_fmac_f32 v15, v{t+1}, v{t+1}", f"v_add_f32 v23, v23, v{t+1}"]
    def compute(c, ks, owner, fill):
        x = XB[ks]
        M = [f"v_mfma_f32_32x32x16_bf16 v[48:63], v[{WQ[ks]}:{WQ[ks]+3}], v[{x}:{x+3}], v[48:63]"]
        if owner:
            M.append(f"v_mfma_f32_32x32x16_bf16 v[64:79], v[{x}:{x+3}], v[{WVr[ks]}:{WVr[ks]+3}], v[64:79]")
        else:
            M.append(f"v_mfma_f32_32x32x16_bf16 v[64:79], v[{WQ[ks]}:{WQ[ks]+3}], v[{ONES}:{ONES+3}], v[64:79]")
            if ks < 2:
                b = 176 + 8 * (c % 2) + 4 * ks
                M.append(f"v_mfma_f32_32x32x16_bf16 v[{CSV}:{CSV+15}], v[{ONES}:{ONES+3}], v[{b}:{b+3}], v[{CSV}:{CSV+15}]")
        F = list(fill) + stats_l(c, ks)
        k_ = len(M)
        per = (len(F) + k_ - 1) // k_
        for i_, m_ in enumerate(M):
            a(m_)
            for f_ in F[i_*per:(i_+1)*per]:
                if callable(f_): f_()
                else: a(f_)
    a(f"s_and_b32 s{TMP}, s{S_AH}, 1")
    a(f"s_lshl_b32 s{TMP}, s{TMP}, 12")
    a(f"v_add_u32 v6, s{TMP}, v13")
    for i in range(4): a(f"v_add_u32 v{148+i}, 0x10000, v{8+i}")
    a("v_add_u32 v152, 0x10000, v12")
    a("v_add_u32 v153, 0x10000, v13")
    a("v_add_u32 v154, 0x10000, v7")
    a("v_add_u32 v155, 0x10000, v6")
    for r in range(4): a(f"v_mov_b32 v{ONES+r}, 0x3f803f80")
    for r in range(16): a(f"v_mov_b32 v{CSV+r}, 0")
    a(f"s_cmp_lg_u32 s{S_W}, 0")
    a("s_cbranch_scc1 L_p1_nohello")
    a(f"s_lshl_b32 s{TMP}, s{S_J}, 7")
    a(f"s_lshl_b32 s{TMP2}, s{S_H}, 2")
    a(f"s_add_u32 s{TMP}, s{TMP}, s{TMP2}")
    a(f"s_add_u32 s{TMP}, s{TMP}, {WS_TFLAG}")
    a(f"s_add_u32 s{TMP2}, s{S_TAG}, s{S_XCC}")
    a(f"s_add_u32 s{TMP2}, s{TMP2}, 1")
    a(f"v_mov_b32 v28, s{TMP2}")
    a("v_mov_b32 v29, 0")
    a("s_mov_b64 exec, 1")
    a(f"buffer_store_dword v28, v29, s[{S_WS}:{S_WS+3}], s{TMP} offen sc1")
    a("s_mov_b64 exec, -1")
    a.label("L_p1_nohello")
    a(f"s_and_b32 s{TMP}, s{S_AH}, 1")
    a(f"s_cmp_eq_u32 s{TMP}, s{S_TT}")
    a("s_cbranch_scc0 L_p1_nonowner")
    for owner in (True, False):
        n = 5 if owner else 3
        m = 1 if owner else 5
        if not owner: a.label("L_p1_nonowner")
        sread(0, owner); reads(0, 0, owner); reads(0, 1, owner)
        for c in range(8):
            last = c == 7
            if cfg.p1_detail: stamp(a, cfg, 16 + c)
            a(f"s_waitcnt lgkmcnt({n})")
            early = c == 0 and 'nowl2' not in cfg.exp
            l23 = c == 0 and 'late23' in cfg.exp
            compute(c, 0, owner, ([lambda: group(1), lambda: group(2)] if early else []) + ([lambda: group(2)] if l23 else []) + reads_l(c, 2, owner))
            a(f"s_waitcnt lgkmcnt({n})")
            compute(c, 1, owner, ([lambda: group(3)] if early or l23 else []) + reads_l(c, 3, owner))
            if not last:
                a(f"s_waitcnt vmcnt({[8,4,4,4,4,5,1][c]}) lgkmcnt({n})")
                if 'nobar' not in cfg.exp: a("s_barrier")
                compute(c, 2, owner, sread_l(c + 1, owner) + reads_l(c + 1, 0, owner))
                a(f"s_waitcnt lgkmcnt({m+n})")
                fill = reads_l(c + 1, 1, owner)
                if c >= 1 and c + 3 <= 7 and 'nodma' not in cfg.exp:
                    fill = fill + [(lambda cc: (lambda: group(cc)))(c + 3)]
                if c == 4:
                    def hello_load():
                        a(f"s_lshl_b32 s{TMP}, s{S_J}, 7")
                        a(f"s_add_u32 s{TMP}, s{TMP}, {WS_TFLAG}")
                        a(f"v_and_b32 v28, 31, v{L}")
                        a("v_lshlrev_b32 v28, 2, v28")
                        a(f"buffer_load_dword v29, v28, s[{S_WS}:{S_WS+3}], s{TMP} offen sc1")
                    fill = fill + [hello_load]
                compute(c, 3, owner, fill)
            else:
                a(f"s_waitcnt lgkmcnt({n})")
                compute(c, 2, owner, [])
                a("s_waitcnt lgkmcnt(0)")
                compute(c, 3, owner, [])
        if owner: a("s_branch L_p1_joined")
    a.label("L_p1_joined")
    stamp(a, cfg, 2)
    p1_epilogue(a, cfg)

def p1_epilogue(a, cfg):
    L = V_LANE
    T = S_A
    TMP, TMP2 = T+9, T+10
    a(f"v_lshrrev_b32 v21, 5, v{L}")
    a("v_add_f32 v22, v22, v23")
    a("v_add_f32 v16, v14, v15")
    a(f"v_and_b32 v25, 31, v{L}")
    a("v_mov_b32 v23, v22")
    a("v_mov_b32 v17, v16")
    a(f"v_lshlrev_b32 v25, 2, v25")
    a(f"s_lshl_b32 s{TMP}, s{S_TT}, 10")
    a("v_permlane32_swap_b32 v22, v23")
    a("v_permlane32_swap_b32 v16, v17")
    a(f"s_add_u32 s{TMP}, s{TMP}, {P1_ST}")
    a(f"v_lshl_add_u32 v26, v25, 1, s{TMP}")
    a(f"s_lshl_b32 s{TMP2}, s{S_AH}, 8")
    a(f"v_add_u32 v27, s{TMP2}, v26")
    a("v_add_f32 v22, v22, v23")
    a("v_add_f32 v23, v16, v17")
    a("s_mov_b64 exec, 0xffffffff")
    a("ds_write_b64 v27, v[22:23]")
    a(f"s_and_b32 s{TMP2}, s{S_AH}, 1")
    a(f"s_cmp_eq_u32 s{TMP2}, s{S_TT}")
    a("s_cbranch_scc1 L_p1_e1")
    a(f"s_lshl_b32 s{TMP}, s{S_AH}, 7")
    a(f"s_add_u32 s{TMP}, s{TMP}, {P1_CSV}")
    a(f"v_add_u32 v27, s{TMP}, v25")
    a("ds_write_b32 v27, v160")
    a(f"s_lshl_b32 s{TMP}, s{S_AH}, 7")
    a(f"s_add_u32 s{TMP}, s{TMP}, {P1_CS}")
    a("s_mov_b64 exec, -1")
    a(f"v_lshlrev_b32 v27, 4, v21")
    a(f"v_add_u32 v27, s{TMP}, v27")
    a("s_mov_b32 exec_lo, 1")
    a("s_mov_b32 exec_hi, 1")
    for jj in range(4):
        a(f"ds_write_b128 v27, v[{64+4*jj}:{67+4*jj}] offset:{jj*32}")
    a.label("L_p1_e1")
    a("s_mov_b64 exec, -1")
    a(f"s_lshl_b32 s{TMP}, s{S_J}, 7")
    a(f"s_add_u32 s{TMP}, s{TMP}, {WS_TFLAG}")
    a(f"s_add_u32 s{TMP2}, s{S_TAG}, 1")
    a(f"s_mov_b32 s{T+11}, 0")
    a("s_waitcnt vmcnt(0)")
    a.label("L_p1_hchk")
    a(f"v_subrev_u32 v29, s{TMP2}, v29")
    a("v_cmp_lt_u32 vcc, 15, v29")
    a("s_cbranch_vccz L_p1_hok")
    a(f"s_add_u32 s{T+11}, s{T+11}, 1")
    a(f"s_cmp_gt_u32 s{T+11}, 0x100000")
    a("s_cbranch_scc1 L_p1_hok")
    a(f"buffer_load_dword v29, v28, s[{S_WS}:{S_WS+3}], s{TMP} offen sc1")
    a("s_waitcnt vmcnt(0)")
    a("s_branch L_p1_hchk")
    a.label("L_p1_hok")
    a(f"v_cmp_ne_u32 vcc, s{S_XCC}, v29")
    a(f"s_cmp_eq_u64 vcc, 0")
    a(f"s_cselect_b32 s{S_FAST}, 1, 0")
    if cfg.force_slow: a(f"s_mov_b32 s{S_FAST}, 0")
    a("s_waitcnt lgkmcnt(0)")
    a("s_barrier")
    stamp(a, cfg, 3)
    for q in range(4):
        a(f"ds_read_b64 v[{36+2*q}:{37+2*q}], v26 offset:{q*256}")
    a(f"s_lshl_b32 s{TMP}, s{S_AH}, 7")
    a(f"s_add_u32 s{TMP}, s{TMP}, {P1_CS}")
    a(f"v_lshlrev_b32 v20, 4, v21")
    a(f"v_add_u32 v20, s{TMP}, v20")
    for jj in range(4):
        a(f"ds_read_b128 v[{80+4*jj}:{83+4*jj}], v20 offset:{jj*32}")
    a(f"s_and_b32 s{TMP}, s{S_AH}, 2")
    a(f"s_lshl_b32 s{TMP}, s{TMP}, 7")
    a(f"s_add_u32 s{TMP}, s{TMP}, {P1_CSV}")
    a(f"v_add_u32 v27, s{TMP}, v25")
    a("ds_read_b32 v19, v27")
    a("ds_read_b32 v18, v27 offset:128")
    QO, KL, KR = 92, 93, 94
    a("s_waitcnt lgkmcnt(6)")
    a("v_pk_add_f32 v[36:37], v[36:37], v[38:39]")
    a("v_pk_add_f32 v[40:41], v[40:41], v[42:43]")
    a("v_pk_add_f32 v[36:37], v[36:37], v[40:41]")
    a("v_mul_f32 v14, 0x3b000000, v36")
    a("v_mul_f32 v16, 0x3b000000, v37")
    a("v_fma_f32 v16, -v14, v14, v16")
    a("v_add_f32 v16, 0x3727c5ac, v16")
    a("v_rsq_f32 v16, v16")
    a(f"s_lshl_b32 s{TMP}, s{S_W}, 8")
    a(f"s_add_u32 s{TMP}, s{TMP}, {P1_PR}")
    a(f"v_add_u32 v25, s{TMP}, v25")
    a("v_mul_f32 v17, v14, v16")
    a("v_mul_f32 v15, 0x3eb8aa3b, v16")
    a(f"v_lshlrev_b32 v23, 4, v21")
    a(f"v_add_u32 v23, s{TMP}, v23")
    a("ds_write_b32 v25, v16")
    a("ds_write_b32 v25, v17 offset:128")
    a("s_waitcnt lgkmcnt(2)")
    a("v_add_f32 v19, v19, v18")
    for i in range(8, 16, 2):
        a(f"v_pk_fma_f32 v[{48+i}:{49+i}], v[{80+i}:{81+i}], v[14:15], v[{48+i}:{49+i}] op_sel_hi:[1,0,1] neg_lo:[0,1,0] neg_hi:[0,1,0]")
    for i in range(8, 16, 2):
        a(f"v_pk_mul_f32 v[{48+i}:{49+i}], v[{48+i}:{49+i}], v[16:17] op_sel_hi:[1,0]")
    for n in range(4):
        a(f"v_cvt_pk_bf16_f32 v{28+n}, v{56+2*n}, v{57+2*n}")
    a("s_waitcnt lgkmcnt(0)")
    for jj in range(4):
        a(f"ds_read_b128 v[{96+4*jj}:{99+4*jj}], v23 offset:{jj*32}")
        a(f"ds_read_b128 v[{112+4*jj}:{115+4*jj}], v23 offset:{128+jj*32}")
    for i in range(0, 8, 2):
        a(f"v_pk_fma_f32 v[{48+i}:{49+i}], v[{80+i}:{81+i}], v[14:15], v[{48+i}:{49+i}] op_sel_hi:[1,0,1] neg_lo:[0,1,0] neg_hi:[0,1,0]")
    for i in range(0, 8, 2):
        a(f"v_pk_mul_f32 v[{48+i}:{49+i}], v[{48+i}:{49+i}], v[14:15] op_sel:[0,1] op_sel_hi:[1,1]")
    for n in range(4):
        a(f"v_cvt_pk_bf16_f32 v{32+n}, v{48+2*n}, v{49+2*n}")
    a(f"s_and_b32 s{TMP2}, s{S_AH}, 1")
    a(f"s_cmp_eq_u32 s{TMP2}, s{S_TT}")
    a("s_cbranch_scc0 L_p1_st_n")
    a("s_waitcnt lgkmcnt(0)")
    for i in range(0, 16, 2):
        a(f"v_pk_mul_f32 v[{112+i}:{113+i}], v[{112+i}:{113+i}], v[18:19] op_sel:[0,1] op_sel_hi:[1,1]")
    for i in range(0, 16, 2):
        a(f"v_pk_fma_f32 v[{64+i}:{65+i}], v[{64+i}:{65+i}], v[{96+i}:{97+i}], v[{112+i}:{113+i}] neg_lo:[0,0,1] neg_hi:[0,0,1]")
    for n in range(8):
        a(f"v_cvt_pk_bf16_f32 v{40+n}, v{64+2*n}, v{65+2*n}")
    a(f"v_bfe_u32 v24, v{L}, 4, 1")
    a(f"s_and_b32 s{TMP2}, s{S_AH}, 1")
    a(f"v_subrev_u32 v24, s{TMP2}, v24")
    a(f"v_lshlrev_b32 v24, 17, v24")
    a(f"v_and_b32 v22, 15, v{L}")
    a(f"v_lshlrev_b32 v22, 4, v22")
    a(f"v_lshl_add_u32 v22, v21, 8, v22")
    a(f"v_add_u32 v22, v24, v22")
    a(f"v_add_u32 v22, {8192 + 0x20000}, v22")
    a(f"s_sub_u32 s{T+13}, s{KL}, 0x20000")
    a(f"s_sub_u32 s{T+14}, s{KR}, 0x20000")
    def stores(owner):
        W = f"s[{S_WS}:{S_WS+3}]"
        for mode in ("fast", "slow"):
            sc = "" if mode == "fast" else "sc1"
            tg = ("o" if owner else "n") + mode[0]
            if mode == "fast":
                a(f"s_cmp_eq_u32 s{S_FAST}, 0")
                a(f"s_cbranch_scc1 L_p1_st_{('o' if owner else 'n')}s")
            else:
                a.label(f"L_p1_st_{tg}")
            a(f"buffer_store_dwordx4 v[32:35], v{V_L16}, {W}, s{QO} offen {sc}")
            a(f"buffer_store_dwordx4 v[28:31], v{V_L16}, {W}, s{KL} offen {sc}")
            if owner:
                a(f"buffer_store_dwordx4 v[40:43], v22, {W}, s{T+13} offen {sc}")
                a(f"buffer_store_dwordx4 v[44:47], v22, {W}, s{T+13} offen offset:512 {sc}")
            if mode == "fast": a(f"s_branch L_p1_st_{('o' if owner else 'n')}r")
        a.label(f"L_p1_st_{('o' if owner else 'n')}r")
        a(f"buffer_store_dwordx4 v[28:31], v{V_L16}, {W}, s{KR} offen sc1")
        if owner:
            a(f"buffer_store_dwordx4 v[40:43], v22, {W}, s{T+14} offen sc1")
            a(f"buffer_store_dwordx4 v[44:47], v22, {W}, s{T+14} offen offset:512 sc1")
        a(f"s_waitcnt vmcnt({3 if owner else 1})")
    stores(True)
    a("s_branch L_p1_st_done")
    a.label("L_p1_st_n")
    a("s_waitcnt lgkmcnt(0)")
    stores(False)
    a.label("L_p1_st_done")
    a("s_barrier")
    stamp(a, cfg, 4)
    a(f"s_lshl_b32 s{TMP}, s{S_J}, 7")
    a(f"s_add_u32 s{TMP}, s{TMP}, {WS_TFLAG + 1024}")
    a(f"s_cmp_lg_u32 s{S_W}, 0")
    a("s_cbranch_scc1 L_p1_lwait")
    a(f"s_lshl_b32 s{TMP2}, s{S_H}, 2")
    a(f"s_add_u32 s{TMP2}, s{TMP2}, s{TMP}")
    team_flag(a, cfg, TMP2, "p1")
    a(f"s_lshl_b32 s{TMP2}, s{S_G}, 4")
    a(f"s_add_u32 s{TMP}, s{TMP}, s{TMP2}")
    a(f"v_and_b32 v2, 3, v{L}")
    a("v_lshlrev_b32 v2, 2, v2")
    poll(a, 2, 3, TMP, "p1l")
    a.label("L_p1_lwait")
    a("s_waitcnt vmcnt(0)")
    a("s_barrier")
    stamp(a, cfg, 13)
    a(f"s_cmp_lg_u32 s{S_W}, 0")
    a("s_cbranch_scc1 L_p1_norf")
    a(f"s_lshl_b32 s{TMP}, s{S_H}, 7")
    a(f"s_lshl_b32 s{TMP2}, s{S_J}, 2")
    a(f"s_add_u32 s{TMP}, s{TMP}, s{TMP2}")
    a(f"s_add_u32 s{TMP}, s{TMP}, {WS_KVFLAG}")
    flag_store(a, S_TAG, TMP, "sc1")
    a.label("L_p1_norf")
    a(f"s_lshl_b32 s{TMP}, s{S_H}, 3")
    a(f"s_add_u32 s{TMP}, s{TMP}, s{S_J}")
    a(f"s_lshl_b32 s{TMP2}, s{TMP}, 13")
    a(f"s_lshl_b32 s{TMP}, s{TMP}, 14")
    a(f"s_lshl_b32 s{T+11}, s{S_W}, 10")
    a(f"s_and_b32 s{T+12}, s{S_W}, 6")
    a(f"s_lshl_b32 s{T+12}, s{T+12}, 10")
    a(f"s_add_u32 s{TMP2}, s{TMP2}, s{T+12}")
    a(f"s_add_u32 s{TMP2}, s{TMP2}, {WS_QF}")
    a(f"s_add_u32 s{TMP}, s{TMP}, s{T+11}")
    a(f"s_add_u32 s{TMP}, s{TMP}, {WS_KVL}")
    a(f"s_mov_b32 m0, s{T+11}")
    a(f"buffer_load_dwordx4 v[{V_Q}:{V_Q+3}], v{V_L16}, s[{S_WS}:{S_WS+3}], s{TMP2} offen sc1")
    a(f"buffer_load_dwordx4 v[244:247], v{V_L16}, s[{S_WS}:{S_WS+3}], s{TMP2} offen offset:1024 sc1")
    a(f"buffer_load_dwordx4 v{V_L16}, s[{S_WS}:{S_WS+3}], s{TMP} offen sc1 lds")
    a(f"s_add_u32 m0, m0, 8192")
    a(f"s_add_u32 s{TMP}, s{TMP}, 8192")
    a(f"buffer_load_dwordx4 v{V_L16}, s[{S_WS}:{S_WS+3}], s{TMP} offen sc1 lds")
    a("s_waitcnt vmcnt(0)")
    a("s_barrier")
    stamp(a, cfg, 14)

def team_flag(a, cfg, off_s, uniq):
    a(f"v_mov_b32 v2, s{S_TAG}")
    a("v_mov_b32 v3, 0")
    a("s_mov_b64 exec, 1")
    a(f"s_cmp_eq_u32 s{S_FAST}, 0")
    a(f"s_cbranch_scc1 L_tf_{uniq}_s")
    a(f"buffer_store_dword v2, v3, s[{S_WS}:{S_WS+3}], s{off_s} offen")
    a(f"s_branch L_tf_{uniq}_d")
    a.label(f"L_tf_{uniq}_s")
    a(f"buffer_store_dword v2, v3, s[{S_WS}:{S_WS+3}], s{off_s} offen sc1")
    a.label(f"L_tf_{uniq}_d")
    a("s_mov_b64 exec, -1")

def poll(a, vaddr, vtmp, off_s, uniq):
    C = S_A + 19
    a(f"s_mov_b32 s{C}, 0")
    a.label(f"L_poll_{uniq}")
    a(f"buffer_load_dword v{vtmp}, v{vaddr}, s[{S_WS}:{S_WS+3}], s{off_s} offen sc1")
    a(f"s_add_u32 s{C}, s{C}, 1")
    a("s_waitcnt vmcnt(0)")
    a(f"v_cmp_ne_u32 vcc, s{S_TAG}, v{vtmp}")
    a(f"s_cmp_gt_u32 s{C}, 0x100000")
    a(f"s_cbranch_scc1 L_poll_{uniq}_x")
    a(f"s_cbranch_vccnz L_poll_{uniq}")
    a.label(f"L_poll_{uniq}_x")

A_S = [16, 32]; A_C = [48, 64]; A_O = [80, 96]; A_P = 112; A_KF = [120, 124]; A_VF = [128, 136]
A_VK = [144, 145]; A_VV = [146, 147]
V_QB = 244
V_W2V, V_W2T, V_DUM = 148, 149, 150
def mfma32(a, d, x, y, c):
    cs = c if isinstance(c, str) else f"v[{c}:{c+15}]"
    a(f"v_mfma_f32_32x32x16_bf16 v[{d}:{d+15}], v[{x}:{x+3}], v[{y}:{y+3}], {cs}")

def maxtree(a, src, dst):
    a(f"v_max3_f32 v{dst}, v{src}, v{src+1}, v{src+2}")
    for i in range(3, 15, 2):
        a(f"v_max3_f32 v{dst}, v{dst}, v{src+i}, v{src+i+1}")
    a(f"v_max_f32 v{dst}, v{dst}, v{src+15}")

def halfmax(a, r, t):
    a(f"v_mov_b32 v{t}, v{r}")
    a("s_nop 1")
    a(f"v_permlane32_swap_b32 v{r}, v{t}")
    a("s_nop 0")
    a(f"v_max_f32 v{r}, v{r}, v{t}")

def attention(a, cfg):
    L = V_LANE
    T = S_A
    Q = [V_Q, V_QB]
    act = make_act(a, cfg)
    if cfg.skip_p1:
        keepu = set()
        if 'bar' in cfg.exp: keepu |= {6, 14, 22, 30}
        if 'w2h' in cfg.exp: keepu |= {24, 32, 38, 44, 50, 55, 60, 61}
        if 'wrm' in cfg.exp: keepu |= {33, 34, 35, 39, 40, 41, 45, 46, 47}
        if 'kvd' in cfg.exp: keepu |= {2, 4, 7, 10, 13, 16}
        act = {k: v for k, v in act.items() if k[0]*8 + k[1] in keepu}
    a(f"s_and_b32 s{T+4}, s{S_W}, 1")
    a(f"s_lshl_b32 s{T+4}, s{T+4}, 12")
    a(f"v_add_u32 v{A_VK[0]}, s{T+4}, v{V_L16}")
    a(f"v_and_b32 v2, 15, v{L}")
    a(f"v_lshlrev_b32 v2, 4, v2")
    a(f"v_lshrrev_b32 v3, 5, v{L}")
    a(f"v_lshl_add_u32 v2, v3, 8, v2")
    a(f"v_add_u32 v2, 8192, v2")
    a(f"v_add_u32 v{A_VV[0]}, s{T+4}, v2")
    a(f"v_add_u32 v{A_VK[1]}, 0x10000, v{A_VK[0]}")
    a(f"v_add_u32 v{A_VV[1]}, 0x10000, v{A_VV[0]}")
    a(f"ds_read_b128 v[{A_KF[0]}:{A_KF[0]+3}], v{V_L16}")
    a(f"v_and_b32 v3, 31, v{L}")
    a(f"v_cmp_eq_u32 vcc, 16, v3")
    a(f"v_mov_b32 v4, 0x3f803f80")
    a(f"s_lshl_b32 s{T}, s{S_H}, 17")
    a(f"v_cndmask_b32 v{A_VF[0]}, 0, v4, vcc")
    a(f"s_add_u32 s{T}, s{T}, {WS_KV}")
    a(f"s_lshl_b32 s{T+1}, s{S_W}, 10")
    a(f"s_add_u32 s{T}, s{T}, s{T+1}")
    a(f"s_add_u32 s{T+2}, s{T+1}, 0")
    for r in range(1, 16):
        a(f"v_mov_b32 v{A_VF[0]+r}, v{A_VF[0]}")
    a("s_waitcnt lgkmcnt(0)")
    mfma32(a, A_S[0], A_KF[0], Q[0], "0")
    mfma32(a, A_S[1], A_KF[0], Q[1], "0")
    for x in range(2):
        for r in range(16): a(f"v_mov_b32 v{A_O[x]+r}, 0")
    maxtree(a, A_S[0], 2)
    maxtree(a, A_S[1], 3)
    halfmax(a, 2, 4)
    halfmax(a, 3, 4)
    for x in range(2):
        a(f"v_sub_f32 v{A_C[x]}, 0, v{2+x}")
        for r in range(1, 16): a(f"v_mov_b32 v{A_C[x]+r}, v{A_C[x]}")
    for r in range(8): a(f"v_mov_b32 v{A_P+r}, 0")
    a(f"ds_read_b128 v[{A_KF[0]}:{A_KF[0]+3}], v{A_VK[0]}")
    a(f"s_mov_b64 exec, s[{S_VMASK}:{S_VMASK+1}]")
    a(f"ds_read_b128 v[{A_VF[0]}:{A_VF[0]+3}], v{A_VV[0]}")
    a(f"ds_read_b128 v[{A_VF[0]+4}:{A_VF[0]+7}], v{A_VV[0]} offset:512")
    a("s_mov_b64 exec, -1")
    a("s_waitcnt lgkmcnt(0)")
    mfma32(a, A_S[0], A_KF[0], Q[0], A_C[0])
    a("s_nop 7")
    a("s_nop 3")
    P = A_P
    def kv_off(n):
        s_, i = n >> 2, n & 3
        hi = 1 if s_ >= 4 else 0
        return hi, (s_ - 4*hi) * 16384 + i * 1024
    for u in range(64):
        n, x = u >> 1, u & 1
        cur = A_S[u % 2]; nxt = A_S[(u + 1) % 2]
        e = lambda i: a(f"v_exp_f32 v{cur+i}, v{cur+i}")
        c = lambda m: a(f"v_cvt_pk_bf16_f32 v{P+m}, v{cur+2*m}, v{cur+2*m+1}")
        for fn in act.get((u >> 3, u & 7), []): fn()
        if cfg.stamps and cfg.at_detail and u % 8 == 0 and u: stamp(a, cfg, 15 + u // 8)
        e(0); e(1)
        if u > 0:
            pn, px = (u - 1) >> 1, (u - 1) & 1
            mfma32(a, A_O[px], A_VF[pn % 2] + 4, P + 4, A_O[px])
        e(2); c(0); e(3); e(4); c(1)
        if u < 63:
            n1, x1 = (u + 1) >> 1, (u + 1) & 1
            if x == 1: a("s_waitcnt lgkmcnt(0)")
            mfma32(a, nxt, A_KF[n1 % 2], Q[x1], A_C[x1])
        if x == 0 and n + 1 < 32:
            hi, off = kv_off(n + 1)
            kb, vb = A_KF[(n + 1) % 2], A_VF[(n + 1) % 2]
            a(f"ds_read_b128 v[{kb}:{kb+3}], v{A_VK[hi]} offset:{off}")
            a(f"s_mov_b64 exec, s[{S_VMASK}:{S_VMASK+1}]")
            a(f"ds_read_b128 v[{vb}:{vb+3}], v{A_VV[hi]} offset:{off}")
            a(f"ds_read_b128 v[{vb+4}:{vb+7}], v{A_VV[hi]} offset:{off+512}")
            a("s_mov_b64 exec, -1")
        e(5); e(6); c(2); e(7); e(8); c(3); e(9); e(10)
        mfma32(a, A_O[x], A_VF[n % 2], P, A_O[x])
        c(4); e(11); e(12); c(5); e(13); e(14); e(15); c(6); c(7)
    a("s_nop 1")
    mfma32(a, A_O[1], A_VF[1] + 4, P + 4, A_O[1])
    stamp(a, cfg, 8)
    a.label("L_at_chk")
    a("s_nop 7")
    a("s_nop 3")
    for x in range(2):
        a(f"v_mov_b32 v{2+x}, v{A_O[x]+8}")
        a(f"v_mov_b32 v{4+x}, v{A_O[x]+8}")
    a("s_nop 1")
    a("v_permlane32_swap_b32 v2, v4")
    a("v_permlane32_swap_b32 v3, v5")
    a("v_mov_b32 v4, 0x5d800000")
    a("v_max_f32 v5, v2, v3")
    a("v_cmp_nle_f32 vcc, v2, v4")
    a(f"s_mov_b64 s[{T+4}:{T+5}], vcc")
    a("v_cmp_nle_f32 vcc, v3, v4")
    a(f"s_or_b64 vcc, vcc, s[{T+4}:{T+5}]")
    a(f"s_cmp_lg_u32 s{S_RERUN}, 0")
    a("s_cbranch_scc1 L_at_ok")
    a("s_cbranch_vccz L_at_ok")
    a(f"s_mov_b32 s{S_RERUN}, 1")
    a("v_mov_b32 v2, 0xff800000")
    a("v_mov_b32 v3, 0xff800000")
    for ps in range(2):
        a(f"v_mov_b32 v6, v{A_VK[0]}")
        a(f"v_mov_b32 v7, v{A_VV[0]}")
        a(f"s_mov_b32 s{S_BLK}, 0")
        a.label(f"L_at_re{ps}")
        for i in range(4):
            a(f"ds_read_b128 v[{A_KF[0]}:{A_KF[0]+3}], v6 offset:{i*1024}")
            if ps == 1:
                a(f"s_mov_b64 exec, s[{S_VMASK}:{S_VMASK+1}]")
                a(f"ds_read_b128 v[{A_VF[0]}:{A_VF[0]+3}], v7 offset:{i*1024}")
                a(f"ds_read_b128 v[{A_VF[0]+4}:{A_VF[0]+7}], v7 offset:{i*1024+512}")
                a("s_mov_b64 exec, -1")
            a("s_waitcnt lgkmcnt(0)")
            for x in range(2):
                mfma32(a, A_S[x], A_KF[0], Q[x], "0" if ps == 0 else A_C[x])
            a("s_nop 7")
            a("s_nop 3")
            for x in range(2):
                if ps == 0:
                    for k in range(0, 16, 2):
                        a(f"v_max3_f32 v{2+x}, v{2+x}, v{A_S[x]+k}, v{A_S[x]+k+1}")
                else:
                    for k in range(16): a(f"v_exp_f32 v{A_S[x]+k}, v{A_S[x]+k}")
                    a("s_nop 0")
                    for m in range(8): a(f"v_cvt_pk_bf16_f32 v{P+m}, v{A_S[x]+2*m}, v{A_S[x]+2*m+1}")
                    a("s_nop 1")
                    mfma32(a, A_O[x], A_VF[0], P, A_O[x])
                    mfma32(a, A_O[x], A_VF[0] + 4, P + 4, A_O[x])
        a("v_add_u32 v6, 16384, v6")
        a("v_add_u32 v7, 16384, v7")
        a(f"s_add_u32 s{S_BLK}, s{S_BLK}, 1")
        a(f"s_cmp_lt_u32 s{S_BLK}, 8")
        a(f"s_cbranch_scc1 L_at_re{ps}")
        if ps == 0:
            halfmax(a, 2, 4)
            halfmax(a, 3, 4)
            for x in range(2):
                a(f"v_sub_f32 v{A_C[x]}, 0, v{2+x}")
                for r in range(1, 16): a(f"v_mov_b32 v{A_C[x]+r}, v{A_C[x]}")
                for r in range(16): a(f"v_mov_b32 v{A_O[x]+r}, 0")
    a("s_branch L_at_chk")
    a.label("L_at_ok")
    a("s_barrier")
    a(f"s_mul_i32 s{T+4}, s{S_W}, 3072")
    a(f"v_add_u32 v8, s{T+4}, v{V_L16}")
    a(f"s_xor_b32 s{T+5}, s{S_W}, 1")
    a(f"s_mul_i32 s{T+5}, s{T+5}, 3072")
    a(f"v_add_u32 v9, s{T+5}, v{V_L16}")
    a(f"s_bitcmp1_b32 s{S_W}, 0")
    a("s_cbranch_scc1 L_at_m1")
    for kh in range(2):
        if kh == 1: a.label("L_at_m1")
        keep, send = kh, 1 - kh
        a(f"v_mov_b32 v4, v{2+send}")
        a(f"v_mov_b32 v5, v{A_C[send]}")
        a(f"ds_write_b128 v8, v[{A_O[send]}:{A_O[send]+3}]")
        a(f"ds_write_b128 v8, v[{A_O[send]+4}:{A_O[send]+7}] offset:1024")
        a(f"ds_write_b64 v8, v[4:5] offset:2048")
        for r in range(8): a(f"v_mov_b32 v{16+r}, v{A_O[keep]+r}")
        a(f"v_mov_b32 v24, v{2+keep}")
        a(f"v_mov_b32 v25, v{A_C[keep]}")
        if kh == 0: a("s_branch L_at_m2")
    a.label("L_at_m2")
    a("s_waitcnt lgkmcnt(0)")
    a("s_barrier")
    a("ds_read_b128 v[32:35], v9")
    a("ds_read_b128 v[36:39], v9 offset:1024")
    a("ds_read_b64 v[40:41], v9 offset:2048")
    a("s_waitcnt lgkmcnt(0)")
    a("v_min_f32 v26, v25, v41")
    a("v_sub_f32 v27, v26, v25")
    a("v_sub_f32 v28, v26, v41")
    a("v_exp_f32 v27, v27")
    a("v_exp_f32 v28, v28")
    a("s_nop 0")
    a("v_mul_f32 v24, v24, v27")
    a("v_fmac_f32 v24, v40, v28")
    a("v_rcp_f32 v24, v24")
    a("s_nop 0")
    a("v_mul_f32 v27, v27, v24")
    a("v_mul_f32 v28, v28, v24")
    for r in range(8): a(f"v_mul_f32 v{16+r}, v{16+r}, v27")
    for r in range(8): a(f"v_fmac_f32 v{16+r}, v{32+r}, v28")
    for m in range(4):
        a(f"v_cvt_pk_bf16_f32 v{4+m}, v{16+2*m}, v{17+2*m}")

def flag_store(a, val_s, off_s, sc):
    a(f"v_mov_b32 v2, s{val_s}")
    a("v_mov_b32 v3, 0")
    a("s_mov_b64 exec, 1")
    a(f"buffer_store_dword v2, v3, s[{S_WS}:{S_WS+3}], s{off_s} offen {sc}")
    a("s_mov_b64 exec, -1")

def kv_dma(a, blk):
    T = S_A
    a(f"s_add_u32 s{T+4}, s{S_J}, {blk}")
    a(f"s_and_b32 s{T+4}, s{T+4}, 7")
    a(f"s_lshl_b32 s{T+4}, s{T+4}, 14")
    a(f"s_add_u32 s{T+4}, s{T+4}, s{T}")
    a(f"s_add_u32 m0, s{T+2}, {blk*16384}")
    a(f"s_add_u32 s{T+6}, s{T+4}, 8192")
    a(f"buffer_load_dwordx4 v{V_L16}, s[{S_WS}:{S_WS+3}], s{T+4} offen sc1 lds")
    a(f"s_add_u32 m0, m0, 8192")
    a("s_nop 0")
    a(f"buffer_load_dwordx4 v{V_L16}, s[{S_WS}:{S_WS+3}], s{T+6} offen sc1 lds")

V_W2 = 152
W2_STAGE = 131072
HOOKS = {}

def w2_setup(a):
    T = S_A; L = V_LANE
    a(f"s_and_b32 s{T+10}, s{S_W}, 3")
    a(f"s_mul_i32 s{T+10}, s{T+10}, {22*16*1024}")
    a(f"s_and_b32 s{T+11}, s{S_H}, 7")
    a(f"s_lshl_b32 s{T+11}, s{T+11}, 7")
    a(f"s_add_u32 s{T+10}, s{T+10}, s{T+11}")
    a(f"s_lshr_b32 s{T+11}, s{S_W}, 2")
    a(f"s_lshl_b32 s{T+11}, s{T+11}, 6")
    a(f"s_add_u32 s{T+10}, s{T+10}, s{T+11}")
    a(f"s_lshl_b32 s{T+11}, s{S_W}, 12")
    a(f"s_add_u32 s{T+11}, s{T+11}, {W2_STAGE}")
    a(f"v_lshrrev_b32 v149, 2, v{L}")
    a(f"v_lshlrev_b32 v148, 10, v149")
    a(f"v_and_b32 v149, 3, v{L}")
    a(f"v_lshl_add_u32 v148, v149, 4, v148")
    a(f"v_lshrrev_b32 v149, 5, v{L}")
    a(f"v_bfe_u32 v151, v{L}, 2, 2")
    a(f"v_lshl_add_u32 v149, v149, 2, v151")
    a(f"v_lshlrev_b32 v149, 6, v149")
    a(f"v_bfe_u32 v151, v{L}, 4, 1")
    a(f"v_lshl_add_u32 v149, v151, 5, v149")
    a(f"v_and_b32 v151, 3, v{L}")
    a(f"v_lshl_add_u32 v149, v151, 3, v149")
    a(f"v_add_u32 v149, s{T+11}, v149")

NOW2 = False
def w2_issue(a, r):
    T = S_A
    n = 4 if r < 5 else 2
    if NOW2: return
    for i in range(n):
        a(f"s_add_u32 m0, s{T+11}, {i*1024}")
        a(f"s_add_u32 s{T+4}, s{T+10}, {(r*4+i)*16*1024}")
        a(f"buffer_load_dwordx4 v148, s[{S_W2}:{S_W2+3}], s{T+4} offen lds")

def w2_read(a, r, younger=0):
    n = 4 if r < 5 else 2
    if NOW2: return
    a(f"s_waitcnt vmcnt({younger})")
    for i in range(n):
        d = V_W2 + 4*(r*4+i)
        a(f"ds_read_b64_tr_b16 v[{d}:{d+1}], v149 offset:{i*1024}")
        a(f"ds_read_b64_tr_b16 v[{d+2}:{d+3}], v149 offset:{i*1024+512}")
    a("s_waitcnt lgkmcnt(0)")

def warm(a, srd, piece_bytes, nlanes, vdst):
    T = S_A
    a(f"v_lshlrev_b32 v2, 7, v{V_LANE}")
    a(f"s_lshl_b32 s{T+4}, s{S_H}, 3")
    a(f"s_add_u32 s{T+4}, s{T+4}, s{S_W}")
    a(f"s_mul_i32 s{T+5}, s{T+4}, {piece_bytes}")
    a(f"s_and_b32 s{T+5}, s{T+5}, 0xffffff80")
    if nlanes > 32: a(f"s_mov_b32 exec_hi, {hex((1 << (nlanes-32)) - 1)}")
    else: a(f"s_mov_b64 exec, {hex((1 << nlanes) - 1)}")
    a(f"buffer_load_dword v{vdst}, v2, s[{srd}:{srd+3}], s{T+5} offen")
    a("s_mov_b64 exec, -1")

V_XR = 12
V_B1R = 11
def small_loads(a):
    T = S_A; L = V_LANE
    a(f"s_and_b32 s{T+4}, s{S_H}, 7")
    a(f"s_lshl_b32 s{T+4}, s{T+4}, 6")
    a(f"s_lshr_b32 s{T+5}, s{S_W}, 2")
    a(f"s_lshl_b32 s{T+5}, s{T+5}, 5")
    a(f"s_add_u32 s{T+4}, s{T+4}, s{T+5}")
    a(f"s_and_b32 s{T+5}, s{S_W}, 1")
    a(f"s_lshl_b32 s{T+5}, s{T+5}, 4")
    a(f"s_add_u32 s{T+4}, s{T+4}, s{T+5}")
    a(f"s_lshl_b32 s{T+5}, s{S_J}, 8")
    a(f"s_lshr_b32 s{T+6}, s{S_H}, 3")
    a(f"s_lshl_b32 s{T+6}, s{T+6}, 6")
    a(f"s_add_u32 s{T+5}, s{T+5}, s{T+6}")
    a(f"s_bfe_u32 s{T+6}, s{S_W}, 0x10001")
    a(f"s_lshl_b32 s{T+6}, s{T+6}, 5")
    a(f"s_add_u32 s{T+5}, s{T+5}, s{T+6}")
    a(f"s_lshl_b32 s{T+5}, s{T+5}, 10")
    a(f"s_lshl_b32 s{T+4}, s{T+4}, 1")
    a(f"s_add_u32 s{T+5}, s{T+5}, s{T+4}")
    a(f"v_and_b32 v2, 31, v{L}")
    a(f"v_lshlrev_b32 v2, 10, v2")
    a(f"v_lshrrev_b32 v3, 5, v{L}")
    a(f"v_lshlrev_b32 v3, 3, v3")
    a(f"v_add_u32 v2, v2, v3")
    a(f"buffer_load_dwordx2 v[{V_XR}:{V_XR+1}], v2, s[{S_X}:{S_X+3}], s{T+5} offen")
    a(f"buffer_load_dwordx2 v[{V_XR+2}:{V_XR+3}], v2, s[{S_X}:{S_X+3}], s{T+5} offen offset:16")
    a(f"buffer_load_dwordx2 v[{V_B2}:{V_B2+1}], v3, s[{S_B2}:{S_B2+3}], s{T+4} offen")
    a(f"buffer_load_dwordx2 v[{V_B2+2}:{V_B2+3}], v3, s[{S_B2}:{S_B2+3}], s{T+4} offen offset:16")
    a(f"s_and_b32 s{T+4}, s{S_H}, 15")
    a(f"s_mul_i32 s{T+4}, s{T+4}, {8*21846}")
    a(f"s_lshr_b32 s{T+4}, s{T+4}, 16")
    a(f"s_lshl_b32 s{T+4}, s{T+4}, 6")
    a(f"v_lshlrev_b32 v2, 2, v{L}")
    a(f"buffer_load_dword v{V_B1R}, v2, s[{S_B1}:{S_B1+3}], s{T+4} offen")

NOPT = False
def pretouch_tail(a):
    if NOPT:
        a(f"s_mov_b32 s{S_A+5}, 0x40000000"); a(f"buffer_load_dword v150, v{V_L16}, s[{S_W1}:{S_W1+3}], s{S_A+5} offen"); return
    _pretouch_tail(a)
def _pretouch_tail(a):
    T = S_A; L = V_LANE
    a(f"s_lshl_b32 s{T+4}, s{S_H}, 3")
    a(f"s_add_u32 s{T+4}, s{T+4}, s{S_W}")
    a(f"s_lshl_b32 s{T+5}, s{S_J}, 18")
    a(f"s_lshl_b32 s{T+6}, s{T+4}, 10")
    a(f"s_add_u32 s{T+5}, s{T+5}, s{T+6}")
    a(f"v_and_b32 v2, 7, v{L}")
    a(f"v_lshlrev_b32 v2, 7, v2")
    a(f"v_add_u32 v2, s{T+5}, v2")
    a(f"v_add_u32 v3, {WS_HF}, v2")
    a(f"v_add_u32 v2, {WS_OF}, v2")
    a(f"v_cmp_gt_u32 vcc, 8, v{L}")
    a("s_nop 1")
    a(f"v_cndmask_b32 v2, v3, v2, vcc")
    a(f"s_lshl_b32 s{T+5}, s{S_J}, 16")
    a(f"s_lshl_b32 s{T+6}, s{T+4}, 8")
    a(f"s_add_u32 s{T+5}, s{T+5}, s{T+6}")
    a(f"s_add_u32 s{T+5}, s{T+5}, {WS_HST - 16*128}")
    a(f"v_lshlrev_b32 v3, 7, v{L}")
    a(f"v_add_u32 v4, s{T+5}, v3")
    a(f"v_cmp_gt_u32 vcc, 16, v{L}")
    a(f"s_mul_i32 s{T+5}, s{S_J}, {8*86*1024}")
    a("s_nop 0")
    a(f"v_cndmask_b32 v2, v4, v2, vcc")
    a(f"s_mul_i32 s{T+6}, s{T+4}, 2752")
    a(f"s_and_b32 s{T+6}, s{T+6}, 0xffffff80")
    a(f"s_add_u32 s{T+5}, s{T+5}, s{T+6}")
    a(f"s_add_u32 s{T+5}, s{T+5}, {WS_GF - 18*128}")
    a(f"v_add_u32 v4, s{T+5}, v3")
    a(f"v_cmp_gt_u32 vcc, 18, v{L}")
    a("s_nop 1")
    a(f"v_cndmask_b32 v2, v4, v2, vcc")
    a("v_mov_b32 v3, 0") if False else None
    a("s_mov_b32 exec_hi, 0x1ff")
    a(f"buffer_load_dword v150, v2, s[{S_WS}:{S_WS+3}], 0 offen")
    a("s_mov_b64 exec, -1")

NOWARM = False
def warm_dma(a, mat, n):
    if NOWARM:
        a(f"s_mov_b32 s{S_A+5}, 0x40000000"); a(f"buffer_load_dword v150, v{V_L16}, s[{S_W1}:{S_W1+3}], s{S_A+5} offen"); return
    _warm_dma(a, mat, n)
def _warm_dma(a, mat, n):
    T = S_A
    a(f"s_lshl_b32 s{T+4}, s{S_H}, 3")
    a(f"s_add_u32 s{T+4}, s{T+4}, s{S_W}")
    if mat in ("w1", "w2"):
        srd_ = S_W1 if mat == "w1" else S_W2
        a(f"s_mul_i32 s{T+5}, s{T+4}, 5504")
        a(f"s_and_b32 s{T+5}, s{T+5}, 0xffffff80")
        a(f"s_add_u32 s{T+5}, s{T+5}, {n*1024}")
    else:
        srd_ = S_WO
        a(f"s_lshl_b32 s{T+5}, s{T+4}, 11")
        a(f"s_add_u32 s{T+5}, s{T+5}, {n*1024}")
    a(f"buffer_load_dwordx4 v[6:9], v{V_L16}, s[{srd_}:{srd_+3}], s{T+5} offen")

def make_act(a, cfg):
    T = S_A
    act = {}
    def add(b, t, fn): act.setdefault((b, t), []).append(fn)
    def poll_kv():
        stamp(a, cfg, 5)
        a(f"s_and_b32 s{T+4}, s{S_H}, 28")
        a(f"s_lshr_b32 s{T+5}, s{S_W}, 1")
        a(f"s_add_u32 s{T+4}, s{T+4}, s{T+5}")
        a(f"s_lshl_b32 s{T+4}, s{T+4}, 7")
        a(f"s_add_u32 s{T+3}, s{T+4}, {WS_KVFLAG}")
        a(f"v_and_b32 v2, 7, v{V_LANE}")
        a("v_lshlrev_b32 v2, 2, v2")
        poll(a, 2, 3, T+3, "kv")
        stamp(a, cfg, 6)
    def sync(n, st):
        def f():
            a(f"s_waitcnt vmcnt({n})"); a("s_barrier"); stamp(a, cfg, st)
        return f
    sched = []
    def I(u, name, nvm, fn): sched.append((u, 'i', name, nvm, fn))
    def Wt(u, target, fn): sched.append((u, 'w', target, 0, fn))
    def syncw(st):
        def f(n):
            a(f"s_waitcnt vmcnt({n})"); a("s_barrier"); stamp(a, cfg, st)
        return f
    def rd(r):
        def f(younger):
            n = 4 if r < 5 else 2
            a(f"s_waitcnt vmcnt({younger})")
            for i in range(n):
                d = V_W2 + 4*(r*4+i)
                a(f"ds_read_b64_tr_b16 v[{d}:{d+1}], v149 offset:{i*1024}")
                a(f"ds_read_b64_tr_b16 v[{d+2}:{d+3}], v149 offset:{i*1024+512}")
        return f
    wseq = [("w1", i) for i in range(6)] + [("wo", i) for i in range(2)]
    I(1, 'poll', 0, poll_kv)
    kvu = {1: 1, 2: 2, 3: 4, 4: 7, 5: 10, 6: 13, 7: 16}
    for b_, u_ in kvu.items(): I(u_, f'kv{b_}', 2, (lambda bb: (lambda: kv_dma(a, bb)))(b_))
    Wt(6, 'kv1', syncw(10)); Wt(14, 'kv2', syncw(11)); Wt(22, 'kv3', syncw(9)); Wt(30, 'kv7', syncw(12))
    I(17, 'small', 5, lambda: small_loads(a))
    if 'S2' in cfg.exp:
        for i_ in range(6): I(18 + i_ + (1 if 18 + i_ >= 22 else 0), f'w2w{i_}', 1, (lambda ii: (lambda: warm_dma(a, 'w2', ii)))(i_))
        iss = [26, 34, 42, 48, 54, 60]; rdu = [32, 40, 46, 52, 58, 63]
        wmu = [35, 36, 37, 43, 44, 45, 49, 50]; ptu = 51
    elif 'S3' in cfg.exp:
        iss = [24, 32, 40, 48, 54, 60]; rdu = [30, 38, 46, 52, 58, 63]
        wmu = [33, 34, 35, 41, 42, 43, 49, 50]; ptu = 51
    elif 'S4' in cfg.exp:
        iss = [24, 34, 42, 48, 54, 60]; rdu = [32, 40, 46, 52, 58, 63]
        wmu = []; ptu = 51
    else:
        iss = [24, 34, 42, 48, 54, 60]; rdu = [32, 40, 46, 52, 58, 63]
        wmu = [35, 36, 37, 43, 44, 45, 49, 50]; ptu = 51
    I(iss[0], 'setup', 0, lambda: w2_setup(a))
    for r in range(6):
        I(iss[r], f'R{r}', 4 if r < 5 else 2, (lambda rr: (lambda: w2_issue(a, rr)))(r))
        Wt(rdu[r], f'R{r}', rd(r))
    for i_, u_ in enumerate(wmu): I(u_, f'wm{i_}', 1, (lambda ii: (lambda: warm_dma(a, *wseq[ii])))(i_))
    I(ptu, 'pt', 1, lambda: pretouch_tail(a))
    sched.sort(key=lambda e: (e[0], 0 if e[1] == 'w' else 1))
    issued = []
    for e in sched:
        u_, kind, name, nvm, fn = e
        if kind == 'i':
            issued += [name] * nvm
            add(u_ >> 3, u_ & 7, fn)
        else:
            last = max(i for i, nm in enumerate(issued) if nm == name)
            add(u_ >> 3, u_ & 7, (lambda ff, yy: (lambda: ff(yy)))(fn, len(issued) - 1 - last))
    def wo0():
        a(f"s_lshl_b32 s{T+5}, s{S_W}, 16")
        a(f"s_and_b32 s{T+6}, s{S_H}, 7")
        a(f"s_lshl_b32 s{T+6}, s{T+6}, 7")
        a(f"s_add_u32 s{T+5}, s{T+5}, s{T+6}")
        a(f"s_lshl_b32 s{T+6}, s{S_W}, 12")
        for i in range(4):
            a(f"s_add_u32 m0, s{T+6}, {131072 + i*1024}")
            a(f"s_add_u32 s{T+7}, s{T+5}, {i*16*1024}")
            a(f"buffer_load_dwordx4 v148, s[{S_WO}:{S_WO+3}], s{T+7} offen lds")
    return act

def attn_out(a, cfg, sc):
    T = S_A
    a(f"s_lshl_b32 s{T+4}, s{S_J}, 3")
    a(f"s_add_u32 s{T+4}, s{T+4}, s{S_W}")
    a(f"s_lshl_b32 s{T+4}, s{T+4}, 5")
    a(f"s_add_u32 s{T+4}, s{T+4}, s{S_H}")
    a(f"s_lshl_b32 s{T+4}, s{T+4}, 10")
    a(f"s_add_u32 s{T+4}, s{T+4}, {WS_OF}")
    a(f"buffer_store_dwordx4 v[4:7], v{V_L16}, s[{S_WS}:{S_WS+3}], s{T+4} offen {sc}")

def finish(a, cfg):
    T = S_A
    a(f"s_or_b32 s{T+4}, s2, s{S_W}")
    a(f"s_cmp_lg_u32 s{T+4}, 0")
    a("s_cbranch_scc1 L_fin")
    a(f"s_mov_b32 s{T+4}, {WS_EPOCH}")
    flag_store(a, S_TAG, T+4, "sc1")
    a.label("L_fin")
    stamp_flush(a, cfg)
    a("s_waitcnt vmcnt(0)")
    a.label("L_end")
    a("s_endpgm")

def build(cfg):
    global NOW2
    NOW2 = 'now2' in cfg.exp
    global NOWARM, NOPT
    NOWARM = 'nowarm' in cfg.exp
    NOPT = 'nopt' in cfg.exp
    a = Asm()
    prologue(a, cfg)
    if cfg.skip_p1:
        a("s_waitcnt lgkmcnt(0)")
        srd(a, S_WS, S_KA+20, S_KA+21, WS_SIZE)
        k = S_KA
        srd(a, S_X, k, k+1, 2097152); srd(a, S_WO, k+4, k+5, 524288); srd(a, S_W1, k+8, k+9, 1409024); srd(a, S_B1, k+10, k+11, 2752); srd(a, S_W2, k+12, k+13, 1409024); srd(a, S_B2, k+14, k+15, 1024)
        a(f"s_mov_b32 s{S_RERUN}, 1")
        for r in range(8): a(f"v_mov_b32 v{V_Q+r}, 0x3c003c00")
        a("s_barrier")
        stamp(a, cfg, 4)
    else:
        phase1(a, cfg)
    if cfg.stop_after != "p1":
        attention(a, cfg)
        if cfg.stop_after == "attn":
            attn_out(a, cfg, "sc1")
            stamp(a, cfg, 9)
        else:
            import tail
            tail.tail(a, cfg)
    finish(a, cfg)
    errs = check_hazards(a.lines) + check_waits(a.lines)
    errs = [e for e in errs if e.count("buffer_load_dwordx4 v[6:9]") < 2 and e.count("buffer_load_dwordx4 v[40:43]") < 2]
    for e in errs[:8]: print("!!", e, file=sys.stderr)
    hdr = open("cdna_kernels/" + NAME + ".s.ref").read().split("; Override")[0]
    out = hdr
    out += f"; @launch kernel={KNAME} grid=(256,1,1) block=(512,1,1) lds={LDS_SIZE}\n"
    out += '.amdgcn_target "amdgcn-amd-amdhsa--gfx950"\n.text\n'
    out += f".globl {KNAME}\n.p2align 8\n.type {KNAME},@function\n{KNAME}:\n"
    out += a.text()
    out += f""".section .rodata,"a"
.p2align 6
.amdhsa_kernel {KNAME}
  .amdhsa_next_free_vgpr 256
  .amdhsa_next_free_sgpr 102
  .amdhsa_accum_offset 256
  .amdhsa_group_segment_fixed_size 0
  .amdhsa_kernarg_size 88
  .amdhsa_user_sgpr_count 2
  .amdhsa_user_sgpr_kernarg_segment_ptr 1
  .amdhsa_system_sgpr_workgroup_id_x 1
.end_amdhsa_kernel
"""
    return out, errs

if __name__ == "__main__":
    cfg = Cfg()
    outp = "cdna_kernels/" + NAME + ".s"
    for arg in sys.argv[1:]:
        if arg == "stamps": cfg.stamps = True
        elif arg.startswith("stop="): cfg.stop_after = arg[5:]
        elif arg.startswith("out="): outp = arg[4:]
        elif arg == "pf": cfg.p1_prefetch = True
        elif arg == "p1d": cfg.p1_detail = True
        elif arg == "slow": cfg.force_slow = True
        elif arg == "f2d": cfg.f2_detail = True
        elif arg == "atd": cfg.at_detail = True
        elif arg == "dbgt": cfg.dbgt = True
        elif arg == "rt": cfg.rt = True
        elif arg.startswith("exp="): cfg.exp = cfg.exp + "_" + arg[4:]
        elif arg.startswith("EXP="): cfg.exp = arg[4:]
        elif arg == "skip_p1": cfg.skip_p1 = True
        elif arg.startswith("av="): cfg.attn_variant = int(arg[3:])
        elif arg.startswith("prio="): cfg.prio = int(arg[5:])
    txt, errs = build(cfg)
    open(outp, "w").write(txt)
    print("wrote", outp, len(txt), "bytes;", len(errs), "checker findings")
```

```python
from asmlib import *
import gen as G
from gen import *

T_W1 = 0
T_WO = 98304
T_RX = 98304
T_MISC = 98304 + 49152
T_CS1 = T_MISC
T_HST = 0
V_H = 240
V_B1K = 11+135

S_RB, S_CB, S_RB2, S_T0F = 100, 101, 3, 51

def tr_addr(a, dst, base, t1, t2):
    L = V_LANE
    a(f"v_lshrrev_b32 v{t1}, 5, v{L}")
    a(f"v_bfe_u32 v{t2}, v{L}, 2, 2")
    a(f"v_lshl_add_u32 v{t1}, v{t1}, 2, v{t2}")
    a(f"v_lshlrev_b32 v{dst}, 6, v{t1}")
    a(f"v_bfe_u32 v{t2}, v{L}, 4, 1")
    a(f"v_lshl_add_u32 v{dst}, v{t2}, 5, v{dst}")
    a(f"v_and_b32 v{t2}, 3, v{L}")
    a(f"v_lshl_add_u32 v{dst}, v{t2}, 3, v{dst}")
    if base: a(f"v_add_u32 v{dst}, {base}, v{dst}")

def tr_addr192(a, dst, t1, t2):
    L = V_LANE
    a(f"v_lshrrev_b32 v{t1}, 5, v{L}")
    a(f"v_bfe_u32 v{t2}, v{L}, 2, 2")
    a(f"v_lshl_add_u32 v{t1}, v{t1}, 2, v{t2}")
    a(f"v_mul_u32_u24 v{dst}, 192, v{t1}")
    a(f"v_bfe_u32 v{t2}, v{L}, 4, 1")
    a(f"v_lshl_add_u32 v{dst}, v{t2}, 5, v{dst}")
    a(f"v_and_b32 v{t2}, 3, v{L}")
    a(f"v_lshl_add_u32 v{dst}, v{t2}, 3, v{dst}")

def wtile_voff(a, dst, stride, t1):
    L = V_LANE
    a(f"v_lshrrev_b32 v{t1}, 2, v{L}")
    a(f"v_mul_u32_u24 v{dst}, {stride}, v{t1}")
    a(f"v_and_b32 v{t1}, 3, v{L}")
    a(f"v_lshl_add_u32 v{dst}, v{t1}, 4, v{dst}")

def barrier_team(a, cfg, bidx, nflags, first_s, uniq, work=None):
    T = S_A
    a(f"s_cmp_lg_u32 s{S_W}, 0")
    a(f"s_cbranch_scc1 L_tbo_{uniq}")
    a(f"s_lshl_b32 s{T+4}, s{S_J}, 7")
    a(f"s_add_u32 s{T+4}, s{T+4}, {WS_TFLAG + bidx*1024}")
    a(f"s_lshl_b32 s{T+5}, s{S_H}, 2")
    a(f"s_add_u32 s{T+5}, s{T+5}, s{T+4}")
    team_flag(a, cfg, T+5, uniq)
    if work: work()
    a(f"s_lshl_b32 s{T+4}, s{S_J}, 7")
    a(f"s_add_u32 s{T+4}, s{T+4}, {WS_TFLAG + bidx*1024}")
    if first_s is not None:
        a(f"s_lshl_b32 s{T+5}, s{S_RB2}, 6")
        a(f"s_add_u32 s{T+4}, s{T+4}, s{T+5}")
    a(f"v_and_b32 v2, {nflags-1}, v{V_LANE}")
    a("v_lshlrev_b32 v2, 2, v2")
    poll(a, 2, 3, T+4, uniq)
    a(f"s_branch L_tb_{uniq}")
    a.label(f"L_tbo_{uniq}")
    if work: work()
    a.label(f"L_tb_{uniq}")

FASTSC = ""
def mode_store(a, instr_fmt, uniq):
    a(f"s_cmp_eq_u32 s{S_FAST}, 0")
    a(f"s_cbranch_scc1 L_ms_{uniq}_s")
    for i in instr_fmt: a(i.format(sc=FASTSC))
    a(f"s_branch L_ms_{uniq}_d")
    a.label(f"L_ms_{uniq}_s")
    for i in instr_fmt: a(i.format(sc="sc1"))
    a.label(f"L_ms_{uniq}_d")

def reduce4(a, acc, uniq, wsrc_slot):
    pass

def pk_add(a, d, x, y): a(f"v_pk_add_f32 v[{d}:{d+1}], v[{x}:{x+1}], v[{y}:{y+1}]")

def tail(a, cfg):
    global FASTSC
    FASTSC = 'nt' if 'ntst' in cfg.exp else ''
    L = V_LANE
    T = S_A
    WS = f"s[{S_WS}:{S_WS+3}]"
    WO1, WO0 = 98304, 131072
    OST = 98304
    a(f"s_lshr_b32 s{S_RB}, s{S_H}, 3")
    a(f"s_and_b32 s{S_CB}, s{S_H}, 7")
    a(f"s_lshr_b32 s{S_RB2}, s{S_H}, 4")
    a(f"s_and_b32 s{T+4}, s{S_H}, 15")
    a(f"s_mul_i32 s{T+4}, s{T+4}, {8*21846}")
    a(f"s_lshr_b32 s{S_T0F}, s{T+4}, 16")
    a(f"s_lshl_b32 s{T+4}, s{S_J}, 3")
    a(f"s_add_u32 s{T+4}, s{T+4}, s{S_W}")
    a(f"s_lshl_b32 s{T+4}, s{T+4}, 5")
    a(f"s_add_u32 s{T+4}, s{T+4}, s{S_H}")
    a(f"s_lshl_b32 s{T+4}, s{T+4}, 10")
    a(f"s_add_u32 s{T+4}, s{T+4}, {WS_OF}")
    mode_store(a, [f"buffer_store_dwordx4 v[4:7], v{V_L16}, {WS}, s{T+4} offen {{sc}}"], "o")
    FT, TT, HF = T+11, T+12, T+13
    a(f"s_lshr_b32 s{FT}, s{S_W}, 2")
    a(f"s_bfe_u32 s{TT}, s{S_W}, 0x10001")
    a(f"s_and_b32 s{HF}, s{S_W}, 1")
    COL, ROW, XO = T+14, T+15, T+16
    a(f"s_lshl_b32 s{COL}, s{S_CB}, 6")
    a(f"s_lshl_b32 s{T+5}, s{FT}, 5")
    a(f"s_add_u32 s{COL}, s{COL}, s{T+5}")
    a(f"s_lshl_b32 s{T+5}, s{HF}, 4")
    a(f"s_add_u32 s{COL}, s{COL}, s{T+5}")
    a(f"s_lshl_b32 s{ROW}, s{S_J}, 8")
    a(f"s_lshl_b32 s{T+5}, s{S_RB}, 6")
    a(f"s_add_u32 s{ROW}, s{ROW}, s{T+5}")
    a(f"s_lshl_b32 s{T+5}, s{TT}, 5")
    a(f"s_add_u32 s{ROW}, s{ROW}, s{T+5}")
    a(f"v_mov_b32 v{V_B1K}, v{V_B1R}")
    stamp(a, cfg, 15)
    a(f"v_lshrrev_b32 v10, 3, v{L}")
    a(f"v_lshlrev_b32 v10, 10, v10")
    a(f"v_bfe_u32 v11, v{L}, 4, 1")
    a(f"v_lshlrev_b32 v11, 1, v11")
    a(f"v_bfe_u32 v9, v{L}, 1, 2")
    a(f"v_xor_b32 v9, v9, v11")
    a(f"v_lshl_add_u32 v10, v9, 5, v10")
    a(f"v_and_b32 v9, 1, v{L}")
    a(f"v_lshl_add_u32 v10, v9, 4, v10")
    a(f"s_lshl_b32 s{T+5}, s{S_W}, 16")
    a(f"s_lshl_b32 s{T+6}, s{S_CB}, 7")
    a(f"s_add_u32 s{T+5}, s{T+5}, s{T+6}")
    a(f"s_lshl_b32 s{T+6}, s{S_W}, 13")
    for i in range(8):
        a(f"s_add_u32 m0, s{T+6}, {WO1 + i*1024}")
        a(f"s_add_u32 s{T+7}, s{T+5}, {i*8*1024}")
        a(f"buffer_load_dwordx4 v10, s[{S_WO}:{S_WO+3}], s{T+7} offen lds")
    a(f"s_mov_b32 s{T+7}, 0x1556")
    a(f"v_mul_u32_u24 v47, s{T+7}, v{L}")
    a(f"v_lshrrev_b32 v47, 16, v47")
    a(f"v_mul_u32_u24 v46, 12, v47")
    a(f"v_sub_u32 v46, v{L}, v46")
    a(f"v_mul_u32_u24 v47, 2752, v47")
    a(f"v_lshl_add_u32 v47, v46, 4, v47")
    W1O, W1M = T+17, T+18
    a(f"s_sub_u32 s{T+8}, s{S_W}, 1")
    a(f"s_mul_i32 s{W1O}, s{T+8}, {5*2752}")
    a(f"s_lshl_b32 s{T+6}, s{S_T0F}, 6")
    a(f"s_add_u32 s{W1O}, s{W1O}, s{T+6}")
    a(f"s_mul_i32 s{W1M}, s{T+8}, 960")
    NW1 = 15
    def w1_dma(p):
        if p < 14:
            a(f"s_add_u32 m0, s{W1M}, {T_W1 + p*7*960}")
            a(f"s_add_u32 s{T+7}, s{W1O}, {p*7*5*2752}")
            a(f"buffer_load_dwordx4 v47, s[{S_W1}:{S_W1+3}], s{T+7} offen lds")
        else:
            a(f"s_cmp_ge_u32 s{S_W}, 6")
            a(f"s_mov_b32 s{T+8}, {14*7*960}")
            a(f"s_mov_b32 s{T+7}, {14*7*5*2752}")
            a(f"s_cselect_b32 s{T+8}, {13*7*960}, s{T+8}")
            a(f"s_cselect_b32 s{T+7}, {13*7*5*2752}, s{T+7}")
            a(f"s_add_u32 m0, s{W1M}, s{T+8}")
            a(f"s_add_u32 s{T+7}, s{T+7}, s{W1O}")
            a(f"s_cmp_eq_u32 s{S_W}, 5")
            a(f"s_cselect_b32 exec_lo, 0xffffff, -1")
            a(f"s_cselect_b32 exec_hi, 0, -1")
            a(f"buffer_load_dwordx4 v47, s[{S_W1}:{S_W1+3}], s{T+7} offen lds")
            a("s_mov_b64 exec, -1")
    a(f"s_lshl_b32 s{T+5}, s{ROW}, 10")
    a(f"s_lshl_b32 s{T+6}, s{COL}, 1")
    a(f"s_add_u32 s{XO}, s{T+5}, s{T+6}")
    a("s_waitcnt vmcnt(8)")
    a("s_barrier")
    a(f"s_cmp_lg_u32 s{S_W}, 0")
    a("s_cbranch_scc1 L_o_nf")
    a(f"s_lshl_b32 s{T+4}, s{S_J}, 7")
    a(f"s_add_u32 s{T+4}, s{T+4}, {WS_TFLAG + 2*1024}")
    a(f"s_lshl_b32 s{T+5}, s{S_H}, 2")
    a(f"s_add_u32 s{T+5}, s{T+5}, s{T+4}")
    team_flag(a, cfg, T+5, "o")
    a.label("L_o_nf")
    a(f"v_lshrrev_b32 v9, 5, v{L}")
    a(f"v_bfe_u32 v11, v{L}, 2, 2")
    a(f"v_lshl_add_u32 v9, v9, 2, v11")
    a(f"v_lshlrev_b32 v10, 7, v9")
    a(f"v_bfe_u32 v9, v{L}, 4, 1")
    a(f"s_lshl_b32 s{T+5}, s{FT}, 1")
    a(f"v_or_b32 v9, s{T+5}, v9")
    a(f"v_bfe_u32 v11, v{L}, 3, 1")
    a(f"v_lshlrev_b32 v11, 1, v11")
    a(f"v_xor_b32 v9, v9, v11")
    a(f"v_lshl_add_u32 v10, v9, 5, v10")
    a(f"v_and_b32 v9, 3, v{L}")
    a(f"v_lshl_add_u32 v10, v9, 3, v10")
    a(f"s_lshl_b32 s{T+6}, s{HF}, 15")
    a(f"s_add_u32 s{T+6}, s{T+6}, {WO1}")
    a(f"v_add_u32 v10, s{T+6}, v10")
    a("s_waitcnt vmcnt(1)")
    a(f"s_cmp_eq_u32 s{S_W}, 0")
    a("s_cbranch_scc1 L_o_w0")
    a("s_waitcnt vmcnt(0)")
    a.label("L_o_w0")
    a("s_barrier")
    NA = 8
    for ks in range(16):
        if ks in (7, 14): a("s_waitcnt lgkmcnt(0)")
        a(f"ds_read_b64_tr_b16 v[{80+4*ks}:{81+4*ks}], v10 offset:{ks*2048}")
        a(f"ds_read_b64_tr_b16 v[{82+4*ks}:{83+4*ks}], v10 offset:{ks*2048+1024}")
    OG, OM = T+9, T+10
    a(f"s_lshr_b32 s{T+5}, s{ROW}, 5")
    a(f"s_lshl_b32 s{T+5}, s{T+5}, 5")
    a(f"s_lshl_b32 s{T+6}, s{HF}, 4")
    a(f"s_lshl_b32 s{T+7}, s{FT}, 3")
    a(f"s_add_u32 s{T+6}, s{T+6}, s{T+7}")
    a(f"s_add_u32 s{T+5}, s{T+5}, s{T+6}")
    a(f"s_lshl_b32 s{T+5}, s{T+5}, 10")
    a(f"s_add_u32 s{OG}, s{T+5}, {WS_OF}")
    a(f"s_lshl_b32 s{T+7}, s{TT}, 5")
    a(f"s_add_u32 s{T+6}, s{T+6}, s{T+7}")
    a(f"s_lshl_b32 s{T+6}, s{T+6}, 10")
    a(f"s_add_u32 s{OM}, s{T+6}, {OST}")
    a(f"s_lshl_b32 s{T+6}, s{TT}, 5")
    a(f"s_lshl_b32 s{T+7}, s{HF}, 4")
    a(f"s_add_u32 s{T+6}, s{T+6}, s{T+7}")
    a(f"s_lshl_b32 s{T+6}, s{T+6}, 10")
    a(f"s_add_u32 s{T+6}, s{T+6}, {OST}")
    a(f"v_add_u32 v8, s{T+6}, v{V_L16}")
    a(f"s_cmp_lg_u32 s{S_W}, 0")
    a("s_cbranch_scc1 L_o_np")
    a(f"s_lshl_b32 s{T+4}, s{S_J}, 7")
    a(f"s_add_u32 s{T+4}, s{T+4}, {WS_TFLAG + 2*1024}")
    a(f"v_and_b32 v2, 31, v{L}")
    a("v_lshlrev_b32 v2, 2, v2")
    poll(a, 2, 3, T+4, "o")
    a("s_branch L_o_c0")
    a.label("L_o_np")
    for p in range(NA): w1_dma(p)
    a.label("L_o_c0")
    a("s_waitcnt lgkmcnt(0)")
    a("s_barrier")
    stamp(a, cfg, 16)
    for i in range(8):
        a(f"s_add_u32 m0, s{OM}, {i*1024}")
        a(f"s_add_u32 s{T+7}, s{OG}, {i*1024}")
        a(f"buffer_load_dwordx4 v{V_L16}, {WS}, s{T+7} offen sc1 lds")
    order = [0, 1, 2, 3, 8, 9, 10, 11, 4, 5, 6, 7, 12, 13, 14, 15]
    np_ = NA
    nskip = 0
    def w1_more():
        nonlocal np_, nskip
        a(f"s_cmp_eq_u32 s{S_W}, 0")
        a(f"s_cbranch_scc1 L_o_sk{nskip}")
        w1_dma(np_)
        a.label(f"L_o_sk{nskip}")
        np_ += 1; nskip += 1
    for st in range(2):
        if st == 0: a("s_waitcnt vmcnt(4)")
        else:
            a(f"s_waitcnt vmcnt({np_ - NA})")
            a(f"s_cmp_lg_u32 s{S_W}, 0")
            a("s_cbranch_scc1 L_o_st1")
            a("s_waitcnt vmcnt(0)")
            a.label("L_o_st1")
        a("s_barrier")
        ksl = order[8*st:8*st+8]
        for q in range(2): a(f"ds_read_b128 v[{16+4*q}:{19+4*q}], v8 offset:{ksl[q]*1024}")
        for q, ks in enumerate(ksl):
            if q + 2 < 8: a(f"ds_read_b128 v[{16+4*((q+2)%4)}:{19+4*((q+2)%4)}], v8 offset:{ksl[q+2]*1024}")
            a(f"s_waitcnt lgkmcnt({min(2, 7-q)})")
            b = 16 + 4*(q % 4)
            a(f"v_mfma_f32_32x32x16_bf16 v[48:63], v[{80+4*ks}:{83+4*ks}], v[{b}:{b+3}], " + ("0" if (st == 0 and q == 0) else "v[48:63]"))
            if q % 2 == 1 and np_ < NW1 and (st == 1 or q >= 5):
                w1_more()
    stamp(a, cfg, 17)
    XCH = 0 + OST
    a(f"s_lshl_b32 s{T+5}, s{S_W}, 11")
    a(f"s_add_u32 s{T+5}, s{T+5}, {XCH}")
    a(f"v_add_u32 v8, s{T+5}, v{V_L16}")
    a(f"s_xor_b32 s{T+5}, s{T+5}, 2048")
    a(f"v_add_u32 v9, s{T+5}, v{V_L16}")
    while np_ < NW1:
        w1_more()
    a("s_nop 1")
    a("s_barrier")
    a(f"s_cmp_eq_u32 s{HF}, 0")
    a("s_cbranch_scc0 L_op_k1")
    for kh in range(2):
        if kh == 1: a.label("L_op_k1")
        send = 56 if kh == 0 else 48
        keep = 48 if kh == 0 else 56
        a(f"ds_write_b128 v8, v[{send}:{send+3}]")
        a(f"ds_write_b128 v8, v[{send+4}:{send+7}] offset:1024")
        for n in range(4):
            a(f"v_lshlrev_b32 v{24+2*n}, 16, v{V_XR+n}")
            a(f"v_and_b32 v{25+2*n}, 0xffff0000, v{V_XR+n}")
        for n in range(4): pk_add(a, V_H+2*n, keep+2*n, 24+2*n)
        if kh == 0: a("s_branch L_op_j")
    a.label("L_op_j")
    a("s_waitcnt lgkmcnt(0)")
    a("s_barrier")
    a("ds_read_b128 v[16:19], v9")
    a("ds_read_b128 v[20:23], v9 offset:1024")
    a(f"s_lshr_b32 s{T+5}, s{ROW}, 5")
    a(f"s_lshl_b32 s{T+6}, s{T+5}, 5")
    a(f"s_lshr_b32 s{T+7}, s{COL}, 4")
    a(f"s_add_u32 s{T+8}, s{T+6}, s{T+7}")
    a(f"s_lshl_b32 s{T+6}, s{T+8}, 10")
    a(f"s_add_u32 s{T+6}, s{T+6}, {WS_HF}")
    a(f"s_lshl_b32 s{T+8}, s{T+8}, 8")
    a(f"s_add_u32 s{T+8}, s{T+8}, {WS_HST}")
    a("s_waitcnt lgkmcnt(0)")
    for n in range(4): pk_add(a, V_H+2*n, V_H+2*n, 16+2*n)
    for n in range(4):
        a(f"v_cvt_pk_bf16_f32 v{32+n}, v{V_H+2*n}, v{V_H+2*n+1}")
    mode_store(a, [f"buffer_store_dwordx4 v[32:35], v{V_L16}, {WS}, s{T+6} offen {{sc}}"], "h")
    for n in range(4):
        a(f"v_lshlrev_b32 v{24+2*n}, 16, v{32+n}")
        a(f"v_and_b32 v{25+2*n}, 0xffff0000, v{32+n}")
    a("v_pk_mul_f32 v[16:17], v[24:25], v[24:25]")
    pk_add(a, 18, 24, 26)
    for n in range(1, 4):
        a(f"v_pk_fma_f32 v[16:17], v[{24+2*n}:{25+2*n}], v[{24+2*n}:{25+2*n}], v[16:17]")
    pk_add(a, 20, 28, 30)
    pk_add(a, 18, 18, 20)
    a("v_add_f32 v40, v18, v19")
    a("v_add_f32 v41, v16, v17")
    a(f"v_and_b32 v8, 31, v{L}")
    a("v_mov_b32 v42, v40")
    a("v_mov_b32 v43, v41")
    a("v_lshlrev_b32 v8, 3, v8")
    a("s_nop 0")
    a("v_permlane32_swap_b32 v40, v42")
    a("v_permlane32_swap_b32 v41, v43")
    a("s_nop 0")
    pk_add(a, 40, 40, 42)
    a("s_mov_b64 exec, 0xffffffff")
    mode_store(a, [f"buffer_store_dwordx2 v[40:41], v8, {WS}, s{T+8} offen {{sc}}"], "hs")
    a("s_mov_b64 exec, -1")
    CS1 = OST + 32768
    B1F = CS1 + 384
    a("s_waitcnt vmcnt(0) lgkmcnt(0)")
    a("s_barrier")
    stamp(a, cfg, 18)
    TT4, KH, TILE, HO, SO = T+11, T+12, T+13, T+17, T+18
    def f1_setup():
        a(f"s_lshr_b32 s{TT4}, s{S_W}, 1")
        a(f"s_and_b32 s{KH}, s{S_W}, 1")
        a(f"s_lshl_b32 s{TILE}, s{S_J}, 3")
        a(f"s_lshl_b32 s{T+5}, s{S_RB2}, 2")
        a(f"s_add_u32 s{TILE}, s{TILE}, s{T+5}")
        a(f"s_add_u32 s{TILE}, s{TILE}, s{TT4}")
        a(f"s_lshl_b32 s{T+5}, s{TILE}, 5")
        a(f"s_lshl_b32 s{T+6}, s{KH}, 4")
        a(f"s_add_u32 s{T+5}, s{T+5}, s{T+6}")
        a(f"s_lshl_b32 s{T+5}, s{T+5}, 10")
        a(f"s_add_u32 s{HO}, s{T+5}, {WS_HF}")
        a(f"s_lshl_b32 s{SO}, s{TILE}, 13")
        a(f"s_add_u32 s{SO}, s{SO}, {WS_HST}")
        a(f"v_and_b32 v12, 31, v{L}")
        a("v_lshlrev_b32 v12, 3, v12")
        a(f"v_lshrrev_b32 v14, 5, v{L}")
        a("v_lshl_add_u32 v12, v14, 12, v12")
        tr_addr192(a, 13, 14, 15)
        a(f"s_mul_i32 s{T+5}, s{KH}, {16*3072}")
        a(f"v_add_u32 v13, s{T+5}, v13")
    barrier_team(a, cfg, 3, 16, True, "h", f1_setup)
    a(f"s_sub_u32 s{T+5}, s{S_W}, 1")
    a(f"s_cmp_ge_u32 s{T+5}, 3")
    a("s_cbranch_scc1 L_f1_nocs")
    tr_addr192(a, 10, 11, 9)
    a(f"s_lshl_b32 s{T+6}, s{T+5}, 6")
    a(f"v_add_u32 v10, s{T+6}, v10")
    a(f"v_add_u32 v11, {16*3072}, v10")
    def csrd(ks):
        b = 16 + 4 * (ks % 16)
        va = 10 if ks < 16 else 11
        a(f"ds_read_b64_tr_b16 v[{b}:{b+1}], v{va} offset:{(ks%16)*3072}")
        a(f"ds_read_b64_tr_b16 v[{b+2}:{b+3}], v{va} offset:{(ks%16)*3072+1536}")
    for r in range(4): a(f"v_mov_b32 v{4+r}, 0x3f803f80")
    for ks in range(7): csrd(ks)
    for ks in range(32):
        if ks + 7 < 32: a(f"s_waitcnt lgkmcnt(12)")
        else: a(f"s_waitcnt lgkmcnt({2*(31-ks)})")
        b = 16 + 4 * (ks % 16)
        a(f"v_mfma_f32_32x32x16_bf16 v[80:95], v[{b}:{b+3}], v[4:7], " + ("0" if ks == 0 else "v[80:95]"))
        if ks + 7 < 32: csrd(ks + 7)
    a(f"s_lshl_b32 s{T+6}, s{T+5}, 7")
    a(f"s_add_u32 s{T+6}, s{T+6}, {CS1}")
    a(f"v_lshrrev_b32 v9, 5, v{L}")
    a("v_lshlrev_b32 v9, 4, v9")
    a(f"v_add_u32 v9, s{T+6}, v9")
    a(f"s_mov_b32 exec_lo, 1")
    a(f"s_mov_b32 exec_hi, 1")
    a("s_nop 7")
    for jj in range(4):
        a(f"ds_write_b128 v9, v[{80+4*jj}:{83+4*jj}] offset:{jj*32}")
    a("s_mov_b64 exec, -1")
    a.label("L_f1_nocs")
    a(f"s_cmp_lg_u32 s{S_W}, 7")
    a("s_cbranch_scc1 L_f1_nob1")
    a(f"v_lshlrev_b32 v8, 3, v{L}")
    a(f"v_add_u32 v8, {B1F}, v8")
    a(f"v_lshlrev_b32 v74, 16, v{V_B1K}")
    a(f"v_and_b32 v75, 0xffff0000, v{V_B1K}")
    a(f"v_cmp_gt_u32 vcc, 48, v{L}")
    a(f"s_and_saveexec_b64 s[{T+6}:{T+7}], vcc")
    a("ds_write_b64 v8, v[74:75]")
    a("s_mov_b64 exec, -1")
    a.label("L_f1_nob1")
    a("s_waitcnt lgkmcnt(0)")
    a("s_barrier")
    stamp(a, cfg, 19)
    def h_load(ks):
        if ks and ks % 4 == 0: a(f"s_add_u32 s{HO}, s{HO}, 4096")
        a(f"buffer_load_dwordx4 v[{16+4*ks}:{19+4*ks}], v{V_L16}, {WS}, s{HO} offen offset:{(ks%4)*1024} sc1")
    PD = 6
    for ks in range(PD): h_load(ks)
    W1B = [128, 140]
    SP = 0
    def w1_reads_l(ks):
        b = W1B[ks % 2]
        L_ = []
        for ft in range(3):
            L_.append(f"ds_read_b64_tr_b16 v[{b+4*ft}:{b+4*ft+1}], v13 offset:{ks*3072 + ft*64}")
            L_.append(f"ds_read_b64_tr_b16 v[{b+4*ft+2}:{b+4*ft+3}], v13 offset:{ks*3072 + ft*64 + 1536}")
        return L_
    for i_ in w1_reads_l(0): a(i_)
    F0, GO_ = T+14, T+15
    def xaddr(dst, wreg):
        a(f"s_mul_i32 s{T+5}, s{wreg}, 6144")
        a(f"s_add_u32 s{T+6}, s{T+5}, {OST}")
        a(f"s_add_u32 s{T+5}, s{T+5}, {OST + 32768 + 1536 - 5*6144}")
        a(f"s_cmp_lt_u32 s{wreg}, 5")
        a(f"s_cselect_b32 s{T+5}, s{T+6}, s{T+5}")
        a(f"v_add_u32 v{dst}, s{T+5}, v{V_L16}")
    xaddr(10, S_W)
    a(f"s_xor_b32 s{T+7}, s{S_W}, 1")
    xaddr(11, T+7)
    a(f"s_mul_i32 s{T+5}, s{KH}, 48")
    a(f"s_lshl_b32 s{T+6}, s{S_T0F}, 5")
    a(f"s_add_u32 s{F0}, s{T+5}, s{T+6}")
    a(f"v_lshrrev_b32 v9, 5, v{L}")
    a("v_lshlrev_b32 v9, 4, v9")
    a(f"s_mul_i32 s{T+5}, s{KH}, 192")
    a(f"s_add_u32 s{T+5}, s{T+5}, {CS1}")
    a(f"v_add_u32 v9, s{T+5}, v9")
    a(f"s_mul_i32 s{T+5}, s{TILE}, 86")
    a(f"s_lshr_b32 s{T+6}, s{F0}, 4")
    a(f"s_add_u32 s{T+5}, s{T+5}, s{T+6}")
    a(f"s_lshl_b32 s{T+5}, s{T+5}, 10")
    a(f"s_add_u32 s{GO_}, s{T+5}, {WS_GF}")
    issued = [("h", k) for k in range(PD)]
    def pend_after(item):
        return len(issued) - 1 - issued.index(item)
    for ks in range(16):
        a(f"s_waitcnt vmcnt({pend_after(('h', ks))}) lgkmcnt(0)")
        b = W1B[ks % 2]
        fill = w1_reads_l(ks + 1) if ks < 15 else []
        for ft in range(3):
            a(f"v_mfma_f32_32x32x16_bf16 v[{80+16*ft}:{95+16*ft}], v[{b+4*ft}:{b+4*ft+3}], v[{16+4*ks}:{19+4*ks}], " + ("0" if ks == 0 else f"v[{80+16*ft}:{95+16*ft}]"))
            if ft == 0:
                for i_ in fill: a(i_)
            if ft == 1:
                if ks + PD < 16:
                    h_load(ks + PD); issued.append(("h", ks + PD))
                elif 11 <= ks < 15:
                    for q in range(4*(ks-11), 4*(ks-11)+4):
                        a(f"buffer_load_dwordx2 v[{16+2*q}:{17+2*q}], v12, {WS}, s{SO} offen offset:{q*256} sc1")
                        issued.append(("s", q))
    stamp(a, cfg, 20)
    for n in range(3):
        for jp in range(2):
            a(f"ds_read_b128 v[{48+8*n+4*jp}:{51+8*n+4*jp}], v9 offset:{n*64 + jp*32}")
    a("s_waitcnt vmcnt(0)")
    for n in range(8): a(f"v_pk_add_f32 v[{16+2*n}:{17+2*n}], v[{16+2*n}:{17+2*n}], v[{32+2*n}:{33+2*n}]")
    for n in range(4): a(f"v_pk_add_f32 v[{16+2*n}:{17+2*n}], v[{16+2*n}:{17+2*n}], v[{24+2*n}:{25+2*n}]")
    for n in range(2): a(f"v_pk_add_f32 v[{16+2*n}:{17+2*n}], v[{16+2*n}:{17+2*n}], v[{20+2*n}:{21+2*n}]")
    a("v_pk_add_f32 v[16:17], v[16:17], v[18:19]")
    a(f"s_cmp_eq_u32 s{KH}, 0")
    a("s_cbranch_scc0 L_f1_k1")
    for kh in range(2):
        if kh == 1: a.label("L_f1_k1")
        send = 80 + (24 if kh == 0 else 0)
        keep = 80 + (0 if kh == 0 else 24)
        for n in range(6):
            a(f"ds_write_b128 v10, v[{send+4*n}:{send+4*n+3}] offset:{n*1024}")
        a("v_mov_b32 v18, v16")
        a("v_mov_b32 v19, v17")
        a("s_nop 1")
        a("v_permlane32_swap_b32 v16, v18")
        a("v_permlane32_swap_b32 v17, v19")
        a("s_nop 0")
        a("v_pk_add_f32 v[16:17], v[16:17], v[18:19]")
        a("v_mul_f32 v16, 0x3b000000, v16")
        a("v_mul_f32 v17, 0x3b000000, v17")
        a("v_fma_f32 v17, -v16, v16, v17")
        a("v_add_f32 v17, 0x3727c5ac, v17")
        a("v_rsq_f32 v18, v17")
        a("s_waitcnt lgkmcnt(6)")
        for n in range(3):
            for jp in range(2):
                a(f"ds_read_b128 v[{24+8*n+4*jp}:{27+8*n+4*jp}], v9 offset:{384 + n*64 + jp*32}")
        a("v_mul_f32 v20, v16, v18")
        a("s_waitcnt lgkmcnt(6)")
        a("s_barrier")
        for n in range(6):
            a(f"ds_read_b128 v[{128+4*n}:{131+4*n}], v11 offset:{n*1024}")
        a("s_waitcnt lgkmcnt(6)")
        for n in range(12):
            a(f"v_pk_fma_f32 v[{24+2*n}:{25+2*n}], v[{48+2*n}:{49+2*n}], v[20:21], v[{24+2*n}:{25+2*n}] op_sel_hi:[1,0,1] neg_lo:[0,1,0] neg_hi:[0,1,0]")
        a("s_waitcnt lgkmcnt(0)")
        for part in range(3):
            r0 = 4 * part
            for n in range(r0, r0+4): pk_add(a, keep+2*n, keep+2*n, 128+2*n)
            for n in range(r0, r0+4):
                a(f"v_pk_fma_f32 v[{keep+2*n}:{keep+2*n+1}], v[{keep+2*n}:{keep+2*n+1}], v[18:19], v[{24+2*n}:{25+2*n}] op_sel_hi:[1,0,1]")
            for i in range(2*r0, 2*r0+8):
                a(f"v_max_f32 v{48+i}, 0, v{keep+i}")
            for n in range(r0, r0+4):
                a(f"v_pk_mul_f32 v[{48+2*n}:{49+2*n}], v[{48+2*n}:{49+2*n}], v[{48+2*n}:{49+2*n}]")
            for n in range(r0, r0+4):
                a(f"v_cvt_pk_bf16_f32 v{4+n if False else 72+n-r0+ (0)}, v{48+2*n}, v{49+2*n}") if False else a(f"v_cvt_pk_bf16_f32 v{128+n}, v{48+2*n}, v{49+2*n}")
            mode_store(a, [f"buffer_store_dwordx4 v[{128+r0}:{131+r0}], v{V_L16}, {WS}, s{GO_} offen offset:{part*1024} {{sc}}"], f"g{kh}{part}")
        if kh == 0: a("s_branch L_f1_j")
    a.label("L_f1_j")
    a("s_waitcnt vmcnt(0)")
    a("s_barrier")
    stamp(a, cfg, 21)
    ffn2(a, cfg)

def ffn2(a, cfg):
    L = V_LANE
    T = S_A
    WS = f"s[{S_WS}:{S_WS+3}]"
    FT, KQ = T+11, T+12
    a(f"s_lshr_b32 s{FT}, s{S_W}, 2")
    a(f"s_and_b32 s{KQ}, s{S_W}, 3")
    gbar(a, cfg)
    TILE0 = T+13
    a(f"s_lshl_b32 s{TILE0}, s{S_J}, 3")
    a(f"s_lshl_b32 s{T+5}, s{S_RB}, 1")
    a(f"s_add_u32 s{TILE0}, s{TILE0}, s{T+5}")
    GO, GM = T+17, T+18
    a(f"s_add_u32 s{T+5}, s{TILE0}, s{FT}")
    a(f"s_mul_i32 s{T+5}, s{T+5}, 86")
    a(f"s_mul_i32 s{T+6}, s{KQ}, 22")
    a(f"s_add_u32 s{T+5}, s{T+5}, s{T+6}")
    a(f"s_lshl_b32 s{T+5}, s{T+5}, 10")
    a(f"s_add_u32 s{GO}, s{T+5}, {WS_GF}")
    a(f"s_mul_i32 s{T+6}, s{KQ}, 40960")
    a(f"v_add_u32 v8, s{T+6}, v{V_L16}")
    a(f"s_lshl_b32 s{T+7}, s{FT}, 10")
    a(f"s_add_u32 s{GM}, s{T+6}, s{T+7}")
    D0, D1 = T+9, T+10
    a(f"s_mul_i32 s{T+5}, s{TILE0}, 86")
    a(f"s_mul_i32 s{T+7}, s{KQ}, 22")
    a(f"s_add_u32 s{T+5}, s{T+5}, s{T+7}")
    a(f"s_add_u32 s{T+5}, s{T+5}, 20")
    a(f"s_lshl_b32 s{T+5}, s{T+5}, 10")
    a(f"s_add_u32 s{D0}, s{T+5}, {WS_GF}")
    a(f"s_add_u32 s{D1}, s{D0}, {86*1024}")
    a(f"s_cmp_eq_u32 s{KQ}, 3")
    a(f"s_cselect_b32 s{D0}, 0x40000000, s{D0}")
    a(f"s_cselect_b32 s{D1}, 0x40000000, s{D1}")
    for r in range(80, 112): a(f"v_mov_b32 v{r}, 0")
    a("s_barrier")
    stamp(a, cfg, 22)
    if 'wbl2' in cfg.exp:
        a(f"s_lshl_b32 s{T+5}, s{S_H}, 3")
        a(f"s_add_u32 s{T+5}, s{T+5}, s{S_W}")
        a(f"s_cmp_lg_u32 s{T+5}, 7")
        a("s_cbranch_scc1 L_f2_nowb")
        a("buffer_wbl2 sc1")
        a.label("L_f2_nowb")
    def g_dma(ks):
        a(f"s_add_u32 m0, s{GM}, {ks*2048}")
        a(f"s_add_u32 s{T+7}, s{GO}, {ks*1024}")
        a(f"buffer_load_dwordx4 v{V_L16}, {WS}, s{T+7} offen sc1 lds")
    def g_reads(ks):
        b = 16 + 8 * (ks % 4)
        a(f"ds_read_b128 v[{b}:{b+3}], v8 offset:{ks*2048}")
        a(f"ds_read_b128 v[{b+4}:{b+7}], v8 offset:{ks*2048+1024}")
    NS = 4
    nst = 20 // NS
    for ks in range(2 * NS): g_dma(ks)
    nis = 2 * NS
    for si in range(nst):
        k0, k1 = si * NS, (si + 1) * NS
        a(f"s_waitcnt vmcnt({nis - k1})")
        if cfg.f2_detail: stamp(a, cfg, 0 + si)
        a("s_barrier")
        if cfg.f2_detail: stamp(a, cfg, 5 + si)
        g_reads(k0); g_reads(k0 + 1)
        for ks in range(k0, k1):
            if ks + 2 < k1: g_reads(ks + 2)
            left = min(k1 - 1, ks + 2) - ks
            a(f"s_waitcnt lgkmcnt({2*left})")
            b = 16 + 8 * (ks % 4)
            a(f"v_mfma_f32_32x32x16_bf16 v[80:95], v[{V_W2+4*ks}:{V_W2+4*ks+3}], v[{b}:{b+3}], v[80:95]")
            if nis < 20: g_dma(nis); nis += 1
            elif nis < 24:
                q = nis - 20; nis += 1
                a(f"buffer_load_dwordx4 v[{48+4*q}:{51+4*q}], v{V_L16}, {WS}, s{D0 if q % 2 == 0 else D1} offen offset:{(q//2)*1024} sc1")
            a(f"v_mfma_f32_32x32x16_bf16 v[96:111], v[{V_W2+4*ks}:{V_W2+4*ks+3}], v[{b+4}:{b+7}], v[96:111]")
    a("s_waitcnt vmcnt(0)")
    for q in range(2):
        ks = 20 + q
        for tt in range(2):
            a(f"v_mfma_f32_32x32x16_bf16 v[{80+16*tt}:{95+16*tt}], v[{V_W2+4*ks}:{V_W2+4*ks+3}], v[{48+8*q+4*tt}:{48+8*q+4*tt+3}], v[{80+16*tt}:{95+16*tt}]")
    stamp(a, cfg, 23)
    a(f"s_lshl_b32 s{T+5}, s{FT}, 15")
    a(f"s_lshl_b32 s{T+6}, s{KQ}, 11")
    a(f"s_add_u32 s{T+5}, s{T+5}, s{T+6}")
    a(f"v_add_u32 v8, s{T+5}, v{V_L16}")
    a(f"s_lshl_b32 s{T+5}, s{S_W}, 13")
    a(f"v_add_u32 v9, s{T+5}, v{V_L16}")
    for n in range(4):
        a(f"v_lshlrev_b32 v{56+2*n}, 16, v{V_B2+n}")
        a(f"v_and_b32 v{57+2*n}, 0xffff0000, v{V_B2+n}")
    for n in range(4): pk_add(a, 56+2*n, 56+2*n, V_H+2*n)
    a("s_barrier")
    for ttp in range(2):
        for hp in range(2):
            off = (2*ttp + hp) * 8192
            r = 80 + 16*ttp + 8*hp
            a(f"ds_write_b128 v8, v[{r}:{r+3}] offset:{off}")
            a(f"ds_write_b128 v8, v[{r+4}:{r+7}] offset:{off+1024}")
    a("s_waitcnt lgkmcnt(0)")
    a("s_barrier")
    for q in range(4):
        a(f"ds_read_b128 v[{16+8*q}:{19+8*q}], v9 offset:{q*2048}")
        a(f"ds_read_b128 v[{20+8*q}:{23+8*q}], v9 offset:{q*2048+1024}")
    a(f"v_and_b32 v8, 31, v{L}")
    a("v_lshlrev_b32 v8, 10, v8")
    a(f"v_lshrrev_b32 v9, 5, v{L}")
    a("v_lshl_add_u32 v8, v9, 4, v8")
    a("s_waitcnt lgkmcnt(0)")
    for n in range(4):
        pk_add(a, 16+2*n, 16+2*n, 24+2*n)
        pk_add(a, 32+2*n, 32+2*n, 40+2*n)
    for n in range(4): pk_add(a, 16+2*n, 16+2*n, 56+2*n)
    for n in range(4): pk_add(a, 16+2*n, 16+2*n, 32+2*n)
    for n in range(4):
        a(f"v_cvt_pk_bf16_f32 v{24+n}, v{16+2*n}, v{17+2*n}")
    a("s_nop 1")
    a("v_permlane32_swap_b32 v24, v26")
    a("v_permlane32_swap_b32 v25, v27")
    a("s_nop 0")
    a(f"buffer_store_dwordx4 v[24:27], v8, s[{S_OUT}:{S_OUT+3}], s{S_A+16} offen")
    stamp(a, cfg, 24)

def gbar(a, cfg):
    T = S_A
    barrier_team(a, cfg, 4, 16, True, "g")
```

```python
from asmlib import *
import gen as G
from gen import *
from tail import tr_addr192, mode_store, pk_add
import v3
from v3 import W2R, B2R, B1R, XR, WS_HS3

T_W1 = 0
WOB = 98304
OST = 98304
CS1 = 131072 + 16384
S_RB, S_CB, S_RB2, S_T0F = 100, 101, 3, 51

def roles(a):
    T = S_A
    a(f"s_lshr_b32 s{S_RB}, s{S_H}, 3")
    a(f"s_and_b32 s{S_CB}, s{S_H}, 7")
    a(f"s_lshr_b32 s{S_RB2}, s{S_H}, 4")
    a(f"s_and_b32 s{T+4}, s{S_H}, 15")
    a(f"s_mul_i32 s{T+4}, s{T+4}, {8*21846}")
    a(f"s_lshr_b32 s{S_T0F}, s{T+4}, 16")

def flag(a, cfg, bidx, uniq):
    T = S_A
    a(f"s_lshl_b32 s{T+4}, s{S_J}, 7")
    a(f"s_add_u32 s{T+4}, s{T+4}, {WS_TFLAG + bidx*1024}")
    a(f"s_lshl_b32 s{T+5}, s{S_H}, 2")
    a(f"s_add_u32 s{T+5}, s{T+5}, s{T+4}")
    team_flag(a, cfg, T+5, uniq)

def wait_flags(a, bidx, n, team16, uniq):
    T = S_A
    a(f"s_lshl_b32 s{T+4}, s{S_J}, 7")
    a(f"s_add_u32 s{T+4}, s{T+4}, {WS_TFLAG + bidx*1024}")
    if team16:
        a(f"s_lshl_b32 s{T+5}, s{S_RB2}, 6")
        a(f"s_add_u32 s{T+4}, s{T+4}, s{T+5}")
    a(f"v_and_b32 v2, {n-1}, v{V_LANE}")
    a("v_lshlrev_b32 v2, 2, v2")
    poll(a, 2, 3, T+4, uniq)

def tail_cw(a, cfg, bar):
    L = V_LANE; T = S_A
    WS = f"s[{S_WS}:{S_WS+3}]"
    roles(a)
    FT, TT = T+11, T+12
    a(f"s_lshr_b32 s{FT}, s{S_W}, 1")
    a(f"s_and_b32 s{TT}, s{S_W}, 1")
    TILE = T+13
    a(f"s_lshl_b32 s{TILE}, s{S_J}, 3")
    a(f"s_lshl_b32 s{T+5}, s{S_RB}, 1")
    a(f"s_add_u32 s{TILE}, s{TILE}, s{T+5}")
    a(f"s_add_u32 s{TILE}, s{TILE}, s{TT}")
    a(f"v_lshrrev_b32 v9, 5, v{L}")
    a(f"v_bfe_u32 v11, v{L}, 2, 2")
    a(f"v_lshl_add_u32 v9, v9, 2, v11")
    a(f"v_lshlrev_b32 v10, 7, v9")
    a(f"v_bfe_u32 v9, v{L}, 4, 1")
    a(f"s_lshl_b32 s{T+5}, s{FT}, 1")
    a(f"v_or_b32 v9, s{T+5}, v9")
    a(f"v_bfe_u32 v11, v{L}, 3, 1")
    a(f"v_lshlrev_b32 v11, 1, v11")
    a(f"v_xor_b32 v9, v9, v11")
    a(f"v_lshl_add_u32 v10, v9, 5, v10")
    a(f"v_and_b32 v9, 3, v{L}")
    a(f"v_lshl_add_u32 v10, v9, 3, v10")
    a(f"v_add_u32 v10, {WOB}, v10")
    a(f"s_lshl_b32 s{T+5}, s{TT}, 15")
    a(f"s_add_u32 s{T+5}, s{T+5}, {OST}")
    a(f"v_add_u32 v8, s{T+5}, v{V_L16}")
    for n in range(8):
        a(f"v_lshlrev_b32 v{64+2*n}, 16, v{XR+n}")
        a(f"v_and_b32 v{65+2*n}, 0xffff0000, v{XR+n}")
    HO, SO = T+14, T+15
    a(f"s_lshl_b32 s{T+5}, s{S_CB}, 1")
    a(f"s_add_u32 s{T+5}, s{T+5}, s{FT}")
    a(f"s_lshl_b32 s{SO}, s{TILE}, 4")
    a(f"s_add_u32 s{SO}, s{SO}, s{T+5}")
    a(f"s_lshl_b32 s{SO}, s{SO}, 8")
    a(f"s_add_u32 s{SO}, s{SO}, {WS_HS3}")
    a(f"s_lshl_b32 s{HO}, s{TILE}, 5")
    a(f"s_lshl_b32 s{T+5}, s{T+5}, 1")
    a(f"s_add_u32 s{HO}, s{HO}, s{T+5}")
    a(f"s_lshl_b32 s{HO}, s{HO}, 10")
    a(f"s_add_u32 s{HO}, s{HO}, {WS_HF}")
    bar(a, "c", "TB")
    WOR = 80
    for ks in range(32):
        if ks and ks % 7 == 0: a("s_waitcnt lgkmcnt(0)")
        a(f"ds_read_b64_tr_b16 v[{WOR+4*ks}:{WOR+4*ks+1}], v10 offset:{ks*2048}")
        a(f"ds_read_b64_tr_b16 v[{WOR+4*ks+2}:{WOR+4*ks+3}], v10 offset:{ks*2048+1024}")
    a("s_waitcnt lgkmcnt(0)")
    bar(a, "c", "TC")
    stamp(a, cfg, 16)
    for st in range(4):
        bar(a, "c", f"TD{st}")
        ksl = list(range(8*st, 8*st+8))
        for q in range(3): a(f"ds_read_b128 v[{16+4*q}:{19+4*q}], v8 offset:{ksl[q]*1024}")
        for q, ks in enumerate(ksl):
            if q + 3 < 8: a(f"ds_read_b128 v[{16+4*((q+3)%4)}:{19+4*((q+3)%4)}], v8 offset:{ksl[q+3]*1024}")
            a(f"s_waitcnt lgkmcnt({min(3, 7-q)})")
            b = 16 + 4*(q % 4)
            a(f"v_mfma_f32_32x32x16_bf16 v[48:63], v[{WOR+4*ks}:{WOR+4*ks+3}], v[{b}:{b+3}], " + ("0" if ks == 0 else "v[48:63]"))
    stamp(a, cfg, 17)
    a(f"v_and_b32 v8, 31, v{L}")
    a("v_lshlrev_b32 v8, 3, v8")
    a("s_nop 7")
    a("s_nop 1")
    for n in range(8): pk_add(a, 48+2*n, 48+2*n, 64+2*n)
    for n in range(8): a(f"v_cvt_pk_bf16_f32 v{32+n}, v{48+2*n}, v{49+2*n}")
    mode_store(a, [f"buffer_store_dwordx4 v[32:35], v{V_L16}, {WS}, s{HO} offen {{sc}}",
                   f"buffer_store_dwordx4 v[36:39], v{V_L16}, {WS}, s{HO} offen offset:1024 {{sc}}"], "h3")
    for n in range(8):
        a(f"v_lshlrev_b32 v{48+2*n}, 16, v{32+n}")
        a(f"v_and_b32 v{49+2*n}, 0xffff0000, v{32+n}")
    a("v_pk_mul_f32 v[16:17], v[48:49], v[48:49]")
    pk_add(a, 18, 48, 50)
    for n in range(1, 8):
        a(f"v_pk_fma_f32 v[16:17], v[{48+2*n}:{49+2*n}], v[{48+2*n}:{49+2*n}], v[16:17]")
    for n in range(2, 8): pk_add(a, 18, 18, 48+2*n)
    a("v_add_f32 v40, v18, v19")
    a("v_add_f32 v41, v16, v17")
    a("s_nop 0")
    a("v_mov_b32 v42, v40")
    a("v_mov_b32 v43, v41")
    a("s_nop 1")
    a("v_permlane32_swap_b32 v40, v42")
    a("v_permlane32_swap_b32 v41, v43")
    a("s_nop 0")
    pk_add(a, 40, 40, 42)
    a("s_mov_b64 exec, 0xffffffff")
    mode_store(a, [f"buffer_store_dwordx2 v[40:41], v8, {WS}, s{SO} offen {{sc}}"], "hs3")
    a("s_mov_b64 exec, -1")
    TILE1, HL, SL, GO = T+13, T+17, T+18, T+16
    a(f"s_lshl_b32 s{TILE1}, s{S_J}, 3")
    a(f"s_lshl_b32 s{T+5}, s{S_RB2}, 2")
    a(f"s_add_u32 s{TILE1}, s{TILE1}, s{T+5}")
    a(f"s_add_u32 s{TILE1}, s{TILE1}, s{S_W}")
    a(f"s_lshl_b32 s{HL}, s{TILE1}, 15")
    a(f"s_add_u32 s{HL}, s{HL}, {WS_HF}")
    a(f"s_lshl_b32 s{SL}, s{TILE1}, 12")
    a(f"s_add_u32 s{SL}, s{SL}, {WS_HS3}")
    a(f"s_mul_i32 s{GO}, s{TILE1}, 86")
    a(f"s_lshl_b32 s{T+5}, s{S_T0F}, 1")
    a(f"s_add_u32 s{GO}, s{GO}, s{T+5}")
    a(f"s_lshl_b32 s{GO}, s{GO}, 10")
    a(f"s_add_u32 s{GO}, s{GO}, {WS_GF}")
    a(f"v_and_b32 v12, 31, v{L}")
    a("v_lshlrev_b32 v12, 3, v12")
    a(f"v_lshrrev_b32 v14, 5, v{L}")
    a("v_lshl_add_u32 v12, v14, 11, v12")
    tr_addr192(a, 13, 14, 15)
    a(f"v_add_u32 v11, {16*3072}, v13")
    a(f"v_lshrrev_b32 v9, 5, v{L}")
    a("v_lshlrev_b32 v9, 4, v9")
    a(f"v_add_u32 v9, {CS1}, v9")
    a("s_waitcnt vmcnt(0)")
    bar(a, "c", "TG")
    stamp(a, cfg, 18)
    bar(a, "c", "TH")
    stamp(a, cfg, 19)
    HF, ACC, WB = 16, 144, [192, 204, 216]
    STR = 228
    def h_load(ks):
        if ks and ks % 4 == 0: a(f"s_add_u32 s{HL}, s{HL}, 4096")
        a(f"buffer_load_dwordx4 v[{HF+4*ks}:{HF+4*ks+3}], v{V_L16}, {WS}, s{HL} offen offset:{(ks%4)*1024} sc1")
    def w1l(ks):
        b = WB[ks % 3]
        va = 13 if ks < 16 else 11
        L_ = []
        for ft in range(3):
            L_.append(f"ds_read_b64_tr_b16 v[{b+4*ft}:{b+4*ft+1}], v{va} offset:{(ks%16)*3072 + ft*64}")
            L_.append(f"ds_read_b64_tr_b16 v[{b+4*ft+2}:{b+4*ft+3}], v{va} offset:{(ks%16)*3072 + ft*64 + 1536}")
        return L_
    PD = 8
    issued = []
    for ks in range(PD): h_load(ks); issued.append(("h", ks))
    for i_ in w1l(0) + w1l(1): a(i_)
    for ks in range(32):
        n_y = len(issued) - 1 - issued.index(("h", ks))
        a(f"s_waitcnt vmcnt({n_y}) lgkmcnt({6 if ks < 31 else 0})")
        b = WB[ks % 3]
        fill = w1l(ks + 2) if ks + 2 < 32 else []
        for ft in range(3):
            a(f"v_mfma_f32_32x32x16_bf16 v[{ACC+16*ft}:{ACC+16*ft+15}], v[{b+4*ft}:{b+4*ft+3}], v[{HF+4*ks}:{HF+4*ks+3}], " + ("0" if ks == 0 else f"v[{ACC+16*ft}:{ACC+16*ft+15}]"))
            for i_ in fill[2*ft:2*ft+2]: a(i_)
            if ft == 0:
                if ks + PD < 32:
                    h_load(ks + PD); issued.append(("h", ks + PD))
                elif ks - (32 - PD) < 8:
                    q = ks - (32 - PD)
                    a(f"buffer_load_dwordx2 v[{STR+2*q}:{STR+2*q+1}], v12, {WS}, s{SL} offen offset:{q*256} sc1")
                    issued.append(("s", q))
    stamp(a, cfg, 20)
    for n in range(12):
        if n == 7: a("s_waitcnt lgkmcnt(4)")
        a(f"ds_read_b128 v[{16+4*n}:{19+4*n}], v9 offset:{n*32}")
    a("s_waitcnt vmcnt(0)")
    for n in range(4): pk_add(a, STR+2*n, STR+2*n, STR+8+2*n)
    for n in range(2): pk_add(a, STR+2*n, STR+2*n, STR+4+2*n)
    pk_add(a, STR, STR, STR+2)
    a("s_waitcnt lgkmcnt(4)")
    for n in range(12):
        if n == 7: a("s_waitcnt lgkmcnt(4)")
        a(f"ds_read_b128 v[{64+4*n}:{67+4*n}], v9 offset:{384 + n*32}")
    a(f"v_mov_b32 v{STR+2}, v{STR}")
    a(f"v_mov_b32 v{STR+3}, v{STR+1}")
    a("s_nop 1")
    a(f"v_permlane32_swap_b32 v{STR}, v{STR+2}")
    a(f"v_permlane32_swap_b32 v{STR+1}, v{STR+3}")
    a("s_nop 0")
    pk_add(a, STR, STR, STR+2)
    a(f"v_mul_f32 v{STR}, 0x3b000000, v{STR}")
    a(f"v_mul_f32 v{STR+1}, 0x3b000000, v{STR+1}")
    a(f"v_fma_f32 v{STR+1}, -v{STR}, v{STR}, v{STR+1}")
    a(f"v_add_f32 v{STR+1}, 0x3727c5ac, v{STR+1}")
    a(f"v_rsq_f32 v{STR+2}, v{STR+1}")
    a("s_nop 0")
    a(f"v_mul_f32 v{STR+4}, v{STR}, v{STR+2}")
    a("s_waitcnt lgkmcnt(0)")
    for part in range(6):
        r0 = 4 * part
        for n in range(r0, r0+4):
            a(f"v_pk_fma_f32 v[{64+2*n}:{65+2*n}], v[{16+2*n}:{17+2*n}], v[{STR+4}:{STR+5}], v[{64+2*n}:{65+2*n}] op_sel_hi:[1,0,1] neg_lo:[0,1,0] neg_hi:[0,1,0]")
        for n in range(r0, r0+4):
            a(f"v_pk_fma_f32 v[{ACC+2*n}:{ACC+2*n+1}], v[{ACC+2*n}:{ACC+2*n+1}], v[{STR+2}:{STR+3}], v[{64+2*n}:{65+2*n}] op_sel_hi:[1,0,1]")
        for i in range(2*r0, 2*r0+8):
            a(f"v_max_f32 v{ACC+i}, 0, v{ACC+i}")
        for n in range(r0, r0+4):
            a(f"v_pk_mul_f32 v[{ACC+2*n}:{ACC+2*n+1}], v[{ACC+2*n}:{ACC+2*n+1}], v[{ACC+2*n}:{ACC+2*n+1}]")
        for n in range(r0, r0+4):
            a(f"v_cvt_pk_bf16_f32 v{112+n}, v{ACC+2*n}, v{ACC+2*n+1}")
        if part == 4: a(f"s_add_u32 s{GO}, s{GO}, 4096")
        mode_store(a, [f"buffer_store_dwordx4 v[{112+r0}:{115+r0}], v{V_L16}, {WS}, s{GO} offen offset:{(part%4)*1024} {{sc}}"], f"g3{part}")
    GS, GM = T+17, T+18
    a(f"s_lshl_b32 s{T+5}, s{S_J}, 3")
    a(f"s_lshl_b32 s{T+6}, s{S_RB}, 1")
    a(f"s_add_u32 s{T+5}, s{T+5}, s{T+6}")
    a(f"s_and_b32 s{T+6}, s{S_W}, 1")
    a(f"s_add_u32 s{T+5}, s{T+5}, s{T+6}")
    a(f"s_mul_i32 s{T+5}, s{T+5}, 86")
    a(f"s_lshr_b32 s{T+7}, s{S_W}, 1")
    a(f"s_mul_i32 s{T+8}, s{T+7}, 43")
    a(f"s_add_u32 s{T+5}, s{T+5}, s{T+8}")
    a(f"s_lshl_b32 s{T+5}, s{T+5}, 10")
    a(f"s_add_u32 s{GS}, s{T+5}, {WS_GF}")
    a(f"s_lshl_b32 s{GM}, s{T+7}, 14")
    a(f"s_lshl_b32 s{T+6}, s{T+6}, 10")
    a(f"s_add_u32 s{GM}, s{GM}, s{T+6}")
    a("s_waitcnt vmcnt(0)")
    bar(a, "c", "TJ")
    stamp(a, cfg, 21)
    bar(a, "c", "TK")
    stamp(a, cfg, 22)
    gi = []
    def g_stage(st):
        n = 8 if st < 5 else 3
        slot = st % 5
        for q in range(n):
            a(f"s_add_u32 m0, s{GM}, {slot*32768 + q*2048}")
            a(f"s_add_u32 s{T+7}, s{GS}, {(8*st+q)*1024}")
            a(f"buffer_load_dwordx4 v{V_L16}, {WS}, s{T+7} offen sc1 lds")
        gi.extend([st] * n)
    def g_wait(st):
        a(f"s_waitcnt vmcnt({len(gi) - 1 - max(i for i, x in enumerate(gi) if x == st)})")
    g_stage(0); g_stage(1); g_stage(2)
    g_wait(0); bar(a, "c", "F0")
    g_stage(3)
    g_wait(1); bar(a, "c", "F1")
    g_stage(4); g_stage(5)
    g_wait(2); bar(a, "c", "F2")
    g_wait(3); bar(a, "c", "F3")
    g_wait(4); bar(a, "c", "F4")
    g_wait(5); bar(a, "c", "F5")

def tail_hw(a, cfg, bar):
    L = V_LANE; T = S_A
    WS = f"s[{S_WS}:{S_WS+3}]"
    HWI = T+1
    roles(a)
    a(f"s_cmp_lg_u32 s{HWI}, 0")
    a("s_cbranch_scc1 L3_nf_o")
    flag(a, cfg, 2, "o3")
    a.label("L3_nf_o")
    a(f"v_lshrrev_b32 v10, 3, v{L}")
    a(f"v_lshlrev_b32 v10, 10, v10")
    a(f"v_bfe_u32 v11, v{L}, 4, 1")
    a(f"v_lshlrev_b32 v11, 1, v11")
    a(f"v_bfe_u32 v9, v{L}, 1, 2")
    a(f"v_xor_b32 v9, v9, v11")
    a(f"v_lshl_add_u32 v10, v9, 5, v10")
    a(f"v_and_b32 v9, 1, v{L}")
    a(f"v_lshl_add_u32 v10, v9, 4, v10")
    a(f"s_lshl_b32 s{T+5}, s{HWI}, 17")
    a(f"s_lshl_b32 s{T+6}, s{S_CB}, 7")
    a(f"s_add_u32 s{T+5}, s{T+5}, s{T+6}")
    a(f"s_lshl_b32 s{T+6}, s{HWI}, 14")
    for i in range(16):
        a(f"s_add_u32 m0, s{T+6}, {WOB + i*1024}")
        a(f"s_add_u32 s{T+7}, s{T+5}, {i*8*1024}")
        a(f"buffer_load_dwordx4 v10, s[{S_WO}:{S_WO+3}], s{T+7} offen lds")
    a(f"s_mov_b32 s{T+7}, 0x1556")
    a(f"v_mul_u32_u24 v47, s{T+7}, v{L}")
    a(f"v_lshrrev_b32 v47, 16, v47")
    a(f"v_mul_u32_u24 v46, 12, v47")
    a(f"v_sub_u32 v46, v{L}, v46")
    a(f"v_mul_u32_u24 v47, 2752, v47")
    a(f"v_lshl_add_u32 v47, v46, 4, v47")
    W1O, W1M = T+17, T+18
    a(f"s_mul_i32 s{W1O}, s{HWI}, {5*2752}")
    a(f"s_lshl_b32 s{T+6}, s{S_T0F}, 6")
    a(f"s_add_u32 s{W1O}, s{W1O}, s{T+6}")
    a(f"s_mul_i32 s{W1M}, s{HWI}, 960")
    NW1 = 26
    def w1_dma(k):
        if k < 25:
            a(f"s_add_u32 m0, s{W1M}, {T_W1 + k*4*960}")
            a(f"s_add_u32 s{T+7}, s{W1O}, {k*4*5*2752}")
            a(f"buffer_load_dwordx4 v47, s[{S_W1}:{S_W1+3}], s{T+7} offen lds")
        else:
            a(f"s_cmp_eq_u32 s{HWI}, 3")
            a(f"s_mov_b32 s{T+8}, {25*4*960}")
            a(f"s_mov_b32 s{T+7}, {25*4*5*2752}")
            a(f"s_cselect_b32 s{T+8}, {24*4*960}, s{T+8}")
            a(f"s_cselect_b32 s{T+7}, {24*4*5*2752}, s{T+7}")
            a(f"s_add_u32 m0, s{W1M}, s{T+8}")
            a(f"s_add_u32 s{T+7}, s{T+7}, s{W1O}")
            a(f"s_cmp_eq_u32 s{HWI}, 2")
            a(f"s_cselect_b32 exec_lo, 0xffffff, -1")
            a(f"s_cselect_b32 exec_hi, 0, -1")
            a(f"buffer_load_dwordx4 v47, s[{S_W1}:{S_W1+3}], s{T+7} offen lds")
            a("s_mov_b64 exec, -1")
    a("s_waitcnt vmcnt(0)")
    bar(a, "h", "TB")
    OG, OM = T+9, T+10
    a(f"s_lshl_b32 s{T+5}, s{S_J}, 3")
    a(f"s_lshl_b32 s{T+6}, s{S_RB}, 1")
    a(f"s_add_u32 s{T+5}, s{T+5}, s{T+6}")
    a(f"s_lshl_b32 s{T+5}, s{T+5}, 5")
    a(f"s_lshl_b32 s{T+6}, s{HWI}, 1")
    a(f"s_add_u32 s{T+5}, s{T+5}, s{T+6}")
    a(f"s_lshl_b32 s{T+5}, s{T+5}, 10")
    a(f"s_add_u32 s{OG}, s{T+5}, {WS_OF}")
    a(f"s_lshl_b32 s{OM}, s{T+6}, 10")
    a(f"s_add_u32 s{OM}, s{OM}, {OST}")
    NA = 8
    a(f"s_cmp_lg_u32 s{HWI}, 0")
    a("s_cbranch_scc1 L3_o_np")
    wait_flags(a, 2, 32, False, "o3")
    a("s_branch L3_o_c")
    a.label("L3_o_np")
    for k in range(NA): w1_dma(k)
    a.label("L3_o_c")
    bar(a, "h", "TC")
    oi = []
    for st in range(4):
        for tt in range(2):
            for e in range(2):
                a(f"s_add_u32 m0, s{OM}, {tt*32768 + (8*st + e)*1024}")
                a(f"s_add_u32 s{T+7}, s{OG}, {tt*32768 + (8*st + e)*1024}")
                a(f"buffer_load_dwordx4 v{V_L16}, {WS}, s{T+7} offen sc1 lds")
                oi.append(st)
    a(f"s_cmp_lg_u32 s{HWI}, 0")
    a("s_cbranch_scc1 L3_o_w1b")
    for k in range(NA): w1_dma(k)
    a("s_branch L3_o_w1c")
    a.label("L3_o_w1b")
    for k in range(NA, 2*NA): w1_dma(k)
    a.label("L3_o_w1c")
    for st in range(4):
        a(f"s_waitcnt vmcnt({15 - (4*st + 3) + NA})")
        bar(a, "h", f"TD{st}")
    a(f"s_cmp_lg_u32 s{HWI}, 0")
    a("s_cbranch_scc1 L3_o_w1d")
    for k in range(NA, NW1): w1_dma(k)
    a("s_branch L3_o_w1e")
    a.label("L3_o_w1d")
    for k in range(2*NA, NW1): w1_dma(k)
    a.label("L3_o_w1e")
    FT, KH = T+11, T+12
    a(f"s_lshr_b32 s{FT}, s{HWI}, 1")
    a(f"s_and_b32 s{KH}, s{HWI}, 1")
    a("s_waitcnt vmcnt(0)")
    bar(a, "h", "TG")
    a(f"s_cmp_lg_u32 s{HWI}, 0")
    a("s_cbranch_scc1 L3_h_cs")
    flag(a, cfg, 3, "h3")
    a(f"v_lshlrev_b32 v8, 3, v{L}")
    a(f"v_add_u32 v8, {CS1 + 384}, v8")
    a(f"v_lshlrev_b32 v4, 16, v{B1R}")
    a(f"v_and_b32 v5, 0xffff0000, v{B1R}")
    a(f"v_cmp_gt_u32 vcc, 48, v{L}")
    a(f"s_and_saveexec_b64 s[{T+6}:{T+7}], vcc")
    a("ds_write_b64 v8, v[4:5]")
    a("s_mov_b64 exec, -1")
    wait_flags(a, 3, 16, True, "h3")
    a("s_branch L3_h_j")
    a.label("L3_h_cs")
    tr_addr192(a, 10, 11, 9)
    a(f"s_sub_u32 s{T+5}, s{HWI}, 1")
    a(f"s_lshl_b32 s{T+6}, s{T+5}, 6")
    a(f"v_add_u32 v10, s{T+6}, v10")
    a(f"v_add_u32 v11, {16*3072}, v10")
    def csrd(ks):
        b = 32 + 4 * (ks % 8)
        va = 10 if ks < 16 else 11
        a(f"ds_read_b64_tr_b16 v[{b}:{b+1}], v{va} offset:{(ks%16)*3072}")
        a(f"ds_read_b64_tr_b16 v[{b+2}:{b+3}], v{va} offset:{(ks%16)*3072+1536}")
    for r in range(4): a(f"v_mov_b32 v{4+r}, 0x3f803f80")
    for ks in range(7): csrd(ks)
    for ks in range(32):
        if ks + 7 < 32: a(f"s_waitcnt lgkmcnt(12)")
        else: a(f"s_waitcnt lgkmcnt({2*(31-ks)})")
        b = 32 + 4 * (ks % 8)
        a(f"v_mfma_f32_32x32x16_bf16 v[16:31], v[{b}:{b+3}], v[4:7], " + ("0" if ks == 0 else "v[16:31]"))
        if ks + 7 < 32: csrd(ks + 7)
    a(f"s_lshl_b32 s{T+6}, s{T+5}, 7")
    a(f"s_add_u32 s{T+6}, s{T+6}, {CS1}")
    a(f"v_lshrrev_b32 v9, 5, v{L}")
    a("v_lshlrev_b32 v9, 4, v9")
    a(f"v_add_u32 v9, s{T+6}, v9")
    a(f"s_mov_b32 exec_lo, 1")
    a(f"s_mov_b32 exec_hi, 1")
    a("s_nop 7")
    for jj in range(4):
        a(f"ds_write_b128 v9, v[{16+4*jj}:{19+4*jj}] offset:{jj*32}")
    a("s_mov_b64 exec, -1")
    a.label("L3_h_j")
    a("s_waitcnt lgkmcnt(0)")
    bar(a, "h", "TH")
    XO = T+16
    a(f"s_lshl_b32 s{T+5}, s{S_J}, 3")
    a(f"s_lshl_b32 s{T+6}, s{S_RB}, 1")
    a(f"s_add_u32 s{T+5}, s{T+5}, s{T+6}")
    a(f"s_add_u32 s{T+5}, s{T+5}, s{KH}")
    a(f"s_lshl_b32 s{T+6}, s{S_CB}, 1")
    a(f"s_add_u32 s{T+6}, s{T+6}, s{FT}")
    a(f"s_lshl_b32 s{T+7}, s{T+5}, 5")
    a(f"s_lshl_b32 s{T+8}, s{T+6}, 1")
    a(f"s_add_u32 s{T+7}, s{T+7}, s{T+8}")
    a(f"s_lshl_b32 s{T+7}, s{T+7}, 10")
    a(f"s_add_u32 s{T+7}, s{T+7}, {WS_HF}")
    a(f"buffer_load_dwordx4 v[60:63], v{V_L16}, {WS}, s{T+7} offen sc1")
    a(f"buffer_load_dwordx4 v[64:67], v{V_L16}, {WS}, s{T+7} offen offset:1024 sc1")
    a(f"s_lshl_b32 s{XO}, s{T+5}, 15")
    a(f"s_lshl_b32 s{T+6}, s{T+6}, 6")
    a(f"s_add_u32 s{XO}, s{XO}, s{T+6}")
    a(f"s_lshl_b32 s{T+5}, s{KH}, 14")
    a(f"v_add_u32 v8, s{T+5}, v{V_L16}")
    a(f"v_add_u32 v9, 0x10000, v8")
    a(f"v_add_u32 v10, 0x20000, v8")
    bar(a, "h", "TJ")
    a(f"s_cmp_lg_u32 s{HWI}, 0")
    a("s_cbranch_scc1 L3_g_np")
    flag(a, cfg, 4, "g3")
    wait_flags(a, 4, 16, True, "g3")
    a.label("L3_g_np")
    a("s_waitcnt vmcnt(0)")
    bar(a, "h", "TK")
    GB = [16+32, 16+32+8]
    ACC = 16
    GBUF = [48, 56]
    GBUF = [48, 4]
    BUF = [[48, 52], [56, 4], [12, 68 - 0]]
    BUF = [[48, 52], [56, 4], [12, 68]]
    def g_reads(i):
        st, q = i // 8, i % 8
        slot = st % 5
        off = slot * 32768 + q * 2048
        va, o = (8, off) if off < 65536 - 2048 else ((9, off - 65536) if off < 131072 - 2048 else (10, off - 131072))
        b = BUF[i % 3]
        a(f"ds_read_b128 v[{b[0]}:{b[0]+3}], v{va} offset:{o}")
        a(f"ds_read_b128 v[{b[1]}:{b[1]+3}], v{va} offset:{o+1024}")
    for st in range(6):
        bar(a, "h", f"F{st}")
        il = list(range(8*st, min(8*st + 8, 43)))
        g_reads(il[0]); g_reads(il[1])
        for q, i in enumerate(il):
            if q + 2 < len(il): g_reads(il[q+2])
            left = min(len(il) - 1, q + 2) - q
            a(f"s_waitcnt lgkmcnt({2*left})")
            b = BUF[i % 3]
            for tt in range(2):
                a(f"v_mfma_f32_32x32x16_bf16 v[{ACC+16*tt}:{ACC+16*tt+15}], v[{W2R+4*i}:{W2R+4*i+3}], v[{b[tt]}:{b[tt]+3}], " + ("0" if i == 0 else f"v[{ACC+16*tt}:{ACC+16*tt+15}]"))
    stamp(a, cfg, 23)
    a(f"s_lshl_b32 s{T+5}, s{HWI}, 12")
    a(f"v_add_u32 v8, s{T+5}, v{V_L16}")
    a(f"s_xor_b32 s{T+5}, s{T+5}, 4096")
    a(f"v_add_u32 v9, s{T+5}, v{V_L16}")
    a("s_nop 4")
    a("s_barrier")
    a(f"s_cmp_eq_u32 s{KH}, 0")
    a("s_cbranch_scc0 L3_f_k1")
    for kh in range(2):
        if kh == 1: a.label("L3_f_k1")
        send = ACC + 16 * (1 - kh); keep = ACC + 16 * kh
        for n in range(4): a(f"ds_write_b128 v8, v[{send+4*n}:{send+4*n+3}] offset:{n*1024}")
        for n in range(8):
            a(f"v_lshlrev_b32 v{128+2*n}, 16, v{B2R+n}")
            a(f"v_and_b32 v{128+2*n+1}, 0xffff0000, v{B2R+n}")
        for n in range(8): pk_add(a, 80+2*n, keep+2*n, 128+2*n)
        for n in range(8):
            a(f"v_lshlrev_b32 v{128+2*n}, 16, v{60+n}")
            a(f"v_and_b32 v{128+2*n+1}, 0xffff0000, v{60+n}")
        for n in range(8): pk_add(a, 80+2*n, 80+2*n, 128+2*n)
        if kh == 0: a("s_branch L3_f_j")
    a.label("L3_f_j")
    a("s_waitcnt lgkmcnt(0)")
    a("s_barrier")
    for n in range(4): a(f"ds_read_b128 v[{96+4*n}:{99+4*n}], v9 offset:{n*1024}")
    a(f"v_and_b32 v8, 31, v{L}")
    a("v_lshlrev_b32 v8, 10, v8")
    a(f"v_lshrrev_b32 v9, 5, v{L}")
    a("v_lshl_add_u32 v8, v9, 4, v8")
    a("s_waitcnt lgkmcnt(0)")
    for n in range(8): pk_add(a, 80+2*n, 80+2*n, 96+2*n)
    for n in range(8): a(f"v_cvt_pk_bf16_f32 v{112+n}, v{80+2*n}, v{81+2*n}")
    a("s_nop 1")
    a("v_permlane32_swap_b32 v112, v114")
    a("v_permlane32_swap_b32 v113, v115")
    a("v_permlane32_swap_b32 v116, v118")
    a("v_permlane32_swap_b32 v117, v119")
    a("s_nop 0")
    a(f"buffer_store_dwordx4 v[112:115], v8, s[{S_OUT}:{S_OUT+3}], s{XO} offen")
    a(f"buffer_store_dwordx4 v[116:119], v8, s[{S_OUT}:{S_OUT+3}], s{XO} offen offset:32")
    stamp(a, cfg, 24)
```

```python
from asmlib import *
import gen as G
from gen import *
from tail import tr_addr, tr_addr192, mode_store, pk_add

ONES = 155648
STG = 131072
S_ = [16, 32]; C_ = [48, 64]; O_ = [80, 96]; P_ = 112; KF = [120, 124]; VF = [128, 136]
VK, VV, VINC = 144, 145, 146
XR = 148
Q_ = [240, 244]
W2R = 80
B2R = 72
B1R = 71
WS_HS3 = WS_HST

class Bar:
    def __init__(self): self.seq = {"c": [], "h": []}
    def __call__(self, a, role, name):
        a("s_barrier"); self.seq[role].append(name)
    def check(self, upto=None):
        c, h = self.seq["c"], self.seq["h"]
        n = len(c)
        assert c == h[:n], (c, h)

def p1_end(a, cfg, bar):
    L = V_LANE; T = S_A; TMP, TMP2 = T+9, T+10
    W = f"s[{S_WS}:{S_WS+3}]"
    a(f"s_lshl_b32 s{TMP2}, s{S_G}, 7")
    a(f"s_add_u32 s{TMP}, s{TMP}, s{TMP2}")
    a(f"s_lshl_b32 s{T+13}, s{S_H}, 3")
    a(f"s_add_u32 s{T+13}, s{T+13}, s{S_J}")
    a(f"s_cmp_ge_u32 s{S_W}, 4")
    a("s_cbranch_scc1 L3_hw_start")
    a(f"s_lshl_b32 s{T+14}, s{T+13}, 13")
    a(f"s_lshl_b32 s{T+12}, s{S_W}, 11")
    a(f"s_add_u32 s{T+14}, s{T+14}, s{T+12}")
    a(f"s_add_u32 s{T+14}, s{T+14}, {WS_QF}")
    a(f"v_mov_b32 v{VK}, v{V_L16}")
    a(f"v_and_b32 v4, 15, v{L}")
    a(f"v_lshlrev_b32 v4, 4, v4")
    a(f"v_lshrrev_b32 v5, 5, v{L}")
    a(f"v_lshl_add_u32 v4, v5, 8, v4")
    a(f"v_add_u32 v4, 8192, v4")
    a(f"v_and_b32 v5, 31, v{L}")
    a(f"v_subrev_u32 v6, 20, v5")
    a(f"v_cmp_gt_u32 vcc, 8, v6")
    a(f"v_mov_b32 v7, {ONES}")
    a(f"v_mov_b32 v6, {ONES + 80}")
    a(f"v_cndmask_b32 v7, v7, v6, vcc")
    a(f"v_cmp_gt_u32 vcc, 16, v5")
    a(f"v_mov_b32 v6, 16384")
    a("s_nop 0")
    a(f"v_cndmask_b32 v{VV}, v7, v4, vcc")
    a(f"v_cndmask_b32 v{VINC}, 0, v6, vcc")
    for x in range(2):
        for r in range(16): a(f"v_mov_b32 v{O_[x]+r}, 0")
    for r in range(8): a(f"v_mov_b32 v{P_+r}, 0")
    for r in range(16): a(f"v_mov_b32 v{VF[0]+r}, 0")
    a(f"v_and_b32 v2, 31, v{L}")
    a("v_lshlrev_b32 v2, 2, v2")
    poll(a, 2, 3, TMP, "p1c")
    stamp(a, cfg, 13)
    a(f"buffer_load_dwordx4 v[240:243], v{V_L16}, {W}, s{T+14} offen sc1")
    a(f"buffer_load_dwordx4 v[244:247], v{V_L16}, {W}, s{T+14} offen offset:1024 sc1")
    a(f"s_lshl_b32 s{T+4}, s{S_J}, 8")
    a(f"s_lshr_b32 s{T+5}, s{S_H}, 3")
    a(f"s_lshl_b32 s{T+5}, s{T+5}, 6")
    a(f"s_add_u32 s{T+4}, s{T+4}, s{T+5}")
    a(f"s_and_b32 s{T+5}, s{S_W}, 1")
    a(f"s_lshl_b32 s{T+5}, s{T+5}, 5")
    a(f"s_add_u32 s{T+4}, s{T+4}, s{T+5}")
    a(f"s_lshl_b32 s{T+4}, s{T+4}, 10")
    a(f"s_and_b32 s{T+5}, s{S_H}, 7")
    a(f"s_lshl_b32 s{T+5}, s{T+5}, 7")
    a(f"s_add_u32 s{T+4}, s{T+4}, s{T+5}")
    a(f"s_lshr_b32 s{T+5}, s{S_W}, 1")
    a(f"s_lshl_b32 s{T+5}, s{T+5}, 6")
    a(f"s_add_u32 s{T+4}, s{T+4}, s{T+5}")
    a(f"v_and_b32 v2, 31, v{L}")
    a(f"v_lshlrev_b32 v2, 10, v2")
    a(f"v_lshrrev_b32 v3, 5, v{L}")
    a(f"v_lshl_add_u32 v2, v3, 3, v2")
    for jp in range(4):
        a(f"buffer_load_dwordx2 v[{XR+2*jp}:{XR+2*jp+1}], v2, s[{S_X}:{S_X+3}], s{T+4} offen offset:{16*jp}")
    remote_flag(a, cfg, "c")
    a("s_waitcnt vmcnt(5)")
    bar(a, "c", "S0")
    stamp(a, cfg, 14)

def remote_flag(a, cfg, uniq):
    T = S_A; TMP, TMP2 = T+9, T+10
    a(f"s_lshl_b32 s{TMP}, s{S_H}, 3")
    a(f"s_add_u32 s{TMP}, s{TMP}, s{S_W}")
    a(f"s_lshl_b32 s{TMP}, s{TMP}, 5")
    a(f"s_lshl_b32 s{TMP2}, s{S_J}, 2")
    a(f"s_add_u32 s{TMP}, s{TMP}, s{TMP2}")
    a(f"s_add_u32 s{TMP}, s{TMP}, {WS_KVFLAG}")
    flag_store(a, S_TAG, TMP, "sc1")

def attn_cw(a, cfg, bar):
    L = V_LANE; T = S_A
    W = f"s[{S_WS}:{S_WS+3}]"
    a(f"ds_read_b128 v[{KF[0]}:{KF[0]+3}], v{VK}")
    a(f"ds_read_b128 v[{VF[0]}:{VF[0]+3}], v{VV}")
    a(f"ds_read_b128 v[{VF[0]+4}:{VF[0]+7}], v{VV} offset:512")
    a("s_waitcnt lgkmcnt(2)")
    mfma32(a, S_[0], KF[0], Q_[0], "0")
    mfma32(a, S_[1], KF[0], Q_[1], "0")
    a(f"s_mov_b32 s{S_BLK}, 0")
    a("s_nop 7")
    a("s_nop 1")
    maxtree(a, S_[0], 2)
    maxtree(a, S_[1], 3)
    halfmax(a, 2, 4)
    halfmax(a, 3, 4)
    for x in range(2):
        a(f"v_sub_f32 v{C_[x]}, 0, v{2+x}")
        for r in range(1, 16): a(f"v_mov_b32 v{C_[x]+r}, v{C_[x]}")
    a("s_waitcnt lgkmcnt(0)")
    mfma32(a, S_[0], KF[0], Q_[0], C_[0])
    a("s_nop 7")
    a("s_nop 3")
    a.label("L3_ca")
    for u in range(16):
        n, x = u >> 1, u & 1
        cur = S_[u % 2]; nxt = S_[(u + 1) % 2]
        e = lambda i: a(f"v_exp_f32 v{cur+i}, v{cur+i}")
        c = lambda m: a(f"v_cvt_pk_bf16_f32 v{P_+m}, v{cur+2*m}, v{cur+2*m+1}")
        if u == 14:
            a("s_barrier")
            a(f"v_add_u32 v{VK}, 16384, v{VK}")
            a(f"v_add_u32 v{VV}, v{VINC}, v{VV}")
        e(0); e(1)
        pn, px = ((u - 1) >> 1) % 2, (u - 1) & 1
        mfma32(a, O_[px], VF[pn] + 4, P_ + 4, O_[px])
        e(2); c(0); e(3); e(4); c(1)
        n1, x1 = (u + 1) >> 1, (u + 1) & 1
        if x == 1: a("s_waitcnt lgkmcnt(0)")
        mfma32(a, nxt, KF[n1 % 2], Q_[x1], C_[x1])
        if x == 0:
            off = ((n + 1) % 8) * 1024
            kb, vb = KF[(n + 1) % 2], VF[(n + 1) % 2]
            a(f"ds_read_b128 v[{kb}:{kb+3}], v{VK} offset:{off}")
            a(f"ds_read_b128 v[{vb}:{vb+3}], v{VV} offset:{off}")
            a(f"ds_read_b128 v[{vb+4}:{vb+7}], v{VV} offset:{off+512}")
        e(5); e(6); c(2); e(7); e(8); c(3); e(9); e(10)
        mfma32(a, O_[x], VF[n % 2], P_, O_[x])
        c(4); e(11); e(12); c(5); e(13); e(14); e(15); c(6); c(7)
    a(f"s_add_u32 s{S_BLK}, s{S_BLK}, 1")
    a(f"s_cmp_lt_u32 s{S_BLK}, 8")
    a("s_cbranch_scc1 L3_ca")
    for k in range(8): bar.seq["c"].append(f"B{k}")
    a("s_nop 1")
    mfma32(a, O_[1], VF[1] + 4, P_ + 4, O_[1])
    a("s_waitcnt lgkmcnt(0)")
    stamp(a, cfg, 8)
    a.label("L3_chk")
    a("s_nop 7")
    a("s_nop 3")
    a("v_mov_b32 v4, 0x5d800000")
    a(f"v_cmp_nle_f32 vcc, v{O_[0]+8}, v4")
    a(f"s_mov_b64 s[{T+4}:{T+5}], vcc")
    a(f"v_cmp_nle_f32 vcc, v{O_[1]+8}, v4")
    a(f"s_or_b64 vcc, vcc, s[{T+4}:{T+5}]")
    a(f"s_cmp_lg_u32 s{S_RERUN}, 0")
    a("s_cbranch_scc1 L3_ok")
    a("s_cbranch_vccz L3_ok")
    a(f"s_mov_b32 s{S_RERUN}, 1")
    a("v_mov_b32 v2, 0xff800000")
    a("v_mov_b32 v3, 0xff800000")
    for ps in range(2):
        a(f"v_mov_b32 v6, v{V_L16}")
        a(f"v_lshlrev_b32 v7, 3, v{VINC}")
        a(f"v_sub_u32 v7, v{VV}, v7")
        a(f"s_mov_b32 s{S_BLK}, 0")
        a.label(f"L3_re{ps}")
        for i in range(8):
            a(f"ds_read_b128 v[{KF[0]}:{KF[0]+3}], v6 offset:{i*1024}")
            if ps == 1:
                a(f"ds_read_b128 v[{VF[0]}:{VF[0]+3}], v7 offset:{i*1024}")
                a(f"ds_read_b128 v[{VF[0]+4}:{VF[0]+7}], v7 offset:{i*1024+512}")
            a("s_waitcnt lgkmcnt(0)")
            for x in range(2):
                mfma32(a, S_[x], KF[0], Q_[x], "0" if ps == 0 else C_[x])
            a("s_nop 7")
            a("s_nop 3")
            for x in range(2):
                if ps == 0:
                    for k in range(0, 16, 2):
                        a(f"v_max3_f32 v{2+x}, v{2+x}, v{S_[x]+k}, v{S_[x]+k+1}")
                else:
                    for k in range(16): a(f"v_exp_f32 v{S_[x]+k}, v{S_[x]+k}")
                    a("s_nop 0")
                    for m in range(8): a(f"v_cvt_pk_bf16_f32 v{P_+m}, v{S_[x]+2*m}, v{S_[x]+2*m+1}")
                    a("s_nop 1")
                    mfma32(a, O_[x], VF[0], P_, O_[x])
                    mfma32(a, O_[x], VF[0] + 4, P_ + 4, O_[x])
        a("v_add_u32 v6, 16384, v6")
        a(f"v_add_u32 v7, v{VINC}, v7")
        a(f"s_add_u32 s{S_BLK}, s{S_BLK}, 1")
        a(f"s_cmp_lt_u32 s{S_BLK}, 8")
        a(f"s_cbranch_scc1 L3_re{ps}")
        if ps == 0:
            halfmax(a, 2, 4)
            halfmax(a, 3, 4)
            for x in range(2):
                a(f"v_sub_f32 v{C_[x]}, 0, v{2+x}")
                for r in range(1, 16): a(f"v_mov_b32 v{C_[x]+r}, v{C_[x]}")
                for r in range(16): a(f"v_mov_b32 v{O_[x]+r}, 0")
    a("s_branch L3_chk")
    a.label("L3_ok")
    a(f"s_lshl_b32 s{T+4}, s{S_J}, 3")
    a(f"s_lshl_b32 s{T+5}, s{S_W}, 1")
    a(f"s_add_u32 s{T+4}, s{T+4}, s{T+5}")
    a(f"s_lshl_b32 s{T+4}, s{T+4}, 5")
    a(f"s_add_u32 s{T+4}, s{T+4}, s{S_H}")
    a(f"s_lshl_b32 s{T+4}, s{T+4}, 10")
    a(f"s_add_u32 s{T+4}, s{T+4}, {WS_OF}")
    a(f"s_add_u32 s{T+5}, s{T+4}, 32768")
    for x in range(2):
        a(f"v_rcp_f32 v2, v{O_[x]+8}")
        a("s_nop 0")
        for r in range(0, 8, 2):
            a(f"v_pk_mul_f32 v[{O_[x]+r}:{O_[x]+r+1}], v[{O_[x]+r}:{O_[x]+r+1}], v[2:3] op_sel_hi:[1,0]")
        for m in range(4):
            a(f"v_cvt_pk_bf16_f32 v{4+4*x+m}, v{O_[x]+2*m}, v{O_[x]+2*m+1}")
        mode_store(a, [f"buffer_store_dwordx4 v[{4+4*x}:{7+4*x}], v{V_L16}, {W}, s{T+4+x} offen {{sc}}"], f"o{x}")
    a("s_waitcnt vmcnt(0)")
    stamp(a, cfg, 15)
    bar(a, "c", "TA")

def attn_hw(a, cfg, bar):
    L = V_LANE; T = S_A; TMP = T+9
    W = f"s[{S_WS}:{S_WS+3}]"
    HWI = T+1
    a.label("L3_hw_start")
    a(f"s_sub_u32 s{HWI}, s{S_W}, 4")
    a(f"s_lshl_b32 s{T+13}, s{T+13}, 14")
    a(f"s_lshl_b32 s{T+2}, s{HWI}, 11")
    a(f"s_add_u32 s{T+13}, s{T+13}, s{T+2}")
    a(f"s_add_u32 s{T+13}, s{T+13}, {WS_KVL}")
    a(f"v_lshlrev_b32 v4, 4, v{L}")
    a(f"s_add_u32 s{T+4}, s{T+2}, {ONES}")
    a(f"v_add_u32 v4, s{T+4}, v4")
    for r in range(8, 12): a(f"v_mov_b32 v{r}, 0x3f803f80")
    a("ds_write_b128 v4, v[8:11]")
    a("ds_write_b128 v4, v[8:11] offset:1024")
    a(f"v_and_b32 v2, 31, v{L}")
    a("v_lshlrev_b32 v2, 2, v2")
    poll(a, 2, 3, TMP, "p1h")
    def kv4(goff_s, lds_imm, sc="sc1"):
        a(f"s_add_u32 m0, s{T+2}, {lds_imm}")
        a(f"s_add_u32 s{T+6}, s{goff_s}, 8192")
        a(f"buffer_load_dwordx4 v{V_L16}, {W}, s{goff_s} offen {sc} lds")
        a(f"s_add_u32 m0, s{T+2}, {lds_imm + 1024}")
        a(f"s_add_u32 s{T+7}, s{goff_s}, 1024")
        a(f"buffer_load_dwordx4 v{V_L16}, {W}, s{T+7} offen {sc} lds")
        a(f"s_add_u32 m0, s{T+2}, {lds_imm + 8192}")
        a(f"s_add_u32 s{T+7}, s{T+6}, 1024")
        a(f"buffer_load_dwordx4 v{V_L16}, {W}, s{T+6} offen {sc} lds")
        a(f"s_add_u32 m0, s{T+2}, {lds_imm + 9216}")
        a("s_nop 0")
        a(f"buffer_load_dwordx4 v{V_L16}, {W}, s{T+7} offen {sc} lds")
    kv4(T+13, 0)
    remote_flag(a, cfg, "h")
    a(f"s_lshl_b32 s{T}, s{S_H}, 17")
    a(f"s_add_u32 s{T}, s{T}, {WS_KV}")
    a(f"s_add_u32 s{T}, s{T}, s{T+2}")
    a("s_waitcnt vmcnt(1) lgkmcnt(0)")
    bar(a, "h", "S0")
    a(f"s_and_b32 s{T+4}, s{S_H}, 28")
    a(f"s_add_u32 s{T+4}, s{T+4}, s{HWI}")
    a(f"s_lshl_b32 s{T+4}, s{T+4}, 8")
    a(f"s_add_u32 s{T+3}, s{T+4}, {WS_KVFLAG}")
    a(f"v_bfe_u32 v4, v{L}, 4, 1")
    a(f"v_bfe_u32 v5, v{L}, 3, 1")
    a(f"s_and_b32 s{T+5}, s{S_H}, 3")
    a(f"s_and_b32 s{T+6}, s{S_H}, 2")
    a(f"v_lshlrev_b32 v6, 2, v4")
    a(f"v_add_u32 v7, s{T+5}, v6")
    a(f"v_add_u32 v6, s{T+6}, v6")
    a(f"v_add_u32 v6, v6, v4")
    a(f"v_cmp_eq_u32 vcc, 0, v5")
    a(f"v_and_b32 v2, 7, v{L}")
    a("v_lshlrev_b32 v2, 2, v2")
    a(f"v_cndmask_b32 v6, v6, v7, vcc")
    a(f"v_lshl_add_u32 v2, v6, 5, v2")
    stamp(a, cfg, 5)
    poll(a, 2, 3, T+3, "kv3")
    stamp(a, cfg, 6)
    issued = []
    def I(name, n): issued.extend([name] * n)
    def younger(name): return len(issued) - 1 - max(i for i, x in enumerate(issued) if x == name)
    def kv(b):
        a(f"s_add_u32 s{T+4}, s{S_J}, {b}")
        a(f"s_and_b32 s{T+4}, s{T+4}, 7")
        a(f"s_lshl_b32 s{T+4}, s{T+4}, 14")
        a(f"s_add_u32 s{T+4}, s{T+4}, s{T}")
        kv4(T+4, b*16384); I(f"kv{b}", 4)
    W2O, STB = T+10, T+11
    def w2setup():
        a(f"s_and_b32 s{W2O}, s{HWI}, 1")
        a(f"s_mul_i32 s{W2O}, s{W2O}, {43*16*1024}")
        a(f"s_and_b32 s{T+4}, s{S_H}, 7")
        a(f"s_lshl_b32 s{T+4}, s{T+4}, 7")
        a(f"s_add_u32 s{W2O}, s{W2O}, s{T+4}")
        a(f"s_lshr_b32 s{T+4}, s{HWI}, 1")
        a(f"s_lshl_b32 s{T+4}, s{T+4}, 6")
        a(f"s_add_u32 s{W2O}, s{W2O}, s{T+4}")
        a(f"s_mul_i32 s{STB}, s{HWI}, 6144")
        a(f"s_add_u32 s{STB}, s{STB}, {STG}")
        a(f"v_lshrrev_b32 v13, 2, v{L}")
        a(f"v_lshlrev_b32 v12, 10, v13")
        a(f"v_and_b32 v13, 3, v{L}")
        a(f"v_lshl_add_u32 v12, v13, 4, v12")
        tr_addr(a, 13, 0, 14, 15)
        a(f"v_add_u32 v13, s{STB}, v13")
    def R(r):
        fr = list(range(6*r, min(6*r + 6, 43)))
        for q, i in enumerate(fr):
            a(f"s_add_u32 m0, s{STB}, {q*1024}")
            a(f"s_add_u32 s{T+4}, s{W2O}, {i*16*1024}")
            a(f"buffer_load_dwordx4 v12, s[{S_W2}:{S_W2+3}], s{T+4} offen lds")
        I(f"R{r}", len(fr))
    def RD(r):
        fr = list(range(6*r, min(6*r + 6, 43)))
        a(f"s_waitcnt vmcnt({younger(f'R{r}')})")
        for q, i in enumerate(fr):
            d = W2R + 4*i
            a(f"ds_read_b64_tr_b16 v[{d}:{d+1}], v13 offset:{q*1024}")
            a(f"ds_read_b64_tr_b16 v[{d+2}:{d+3}], v13 offset:{q*1024+512}")
        a("s_waitcnt lgkmcnt(0)")
    def warm(mat, n):
        a(f"s_lshl_b32 s{T+4}, s{S_H}, 2")
        a(f"s_add_u32 s{T+4}, s{T+4}, s{HWI}")
        if mat == "w1":
            a(f"s_mul_i32 s{T+5}, s{T+4}, 11008")
            a(f"s_and_b32 s{T+5}, s{T+5}, 0xffffff80")
            a(f"s_add_u32 s{T+5}, s{T+5}, {n*1024}")
            a(f"buffer_load_dwordx4 v[8:11], v{V_L16}, s[{S_W1}:{S_W1+3}], s{T+5} offen")
        else:
            a(f"s_lshl_b32 s{T+5}, s{T+4}, 12")
            a(f"s_add_u32 s{T+5}, s{T+5}, {n*1024}")
            a(f"buffer_load_dwordx4 v[8:11], v{V_L16}, s[{S_WO}:{S_WO+3}], s{T+5} offen")
        I("wm", 1)
    def pretouch(e):
        a(f"s_lshl_b32 s{T+4}, s{S_H}, 3")
        a(f"s_lshl_b32 s{T+5}, s{HWI}, 1")
        a(f"s_add_u32 s{T+4}, s{T+4}, s{T+5}")
        a(f"s_add_u32 s{T+4}, s{T+4}, {e}")
        a(f"s_lshl_b32 s{T+5}, s{S_J}, 18")
        a(f"s_lshl_b32 s{T+6}, s{T+4}, 10")
        a(f"s_add_u32 s{T+5}, s{T+5}, s{T+6}")
        a(f"s_add_u32 s{T+6}, s{T+5}, {WS_OF}")
        a(f"buffer_load_dwordx4 v[8:11], v{V_L16}, {W}, s{T+6} offen")
        a(f"s_add_u32 s{T+6}, s{T+5}, {WS_HF}")
        a(f"buffer_load_dwordx4 v[8:11], v{V_L16}, {W}, s{T+6} offen")
        a(f"s_mul_i32 s{T+5}, s{S_J}, {8*86*1024}")
        a(f"s_mul_i32 s{T+6}, s{T+4}, 2752")
        a(f"s_and_b32 s{T+6}, s{T+6}, 0xffffff80")
        a(f"s_add_u32 s{T+5}, s{T+5}, s{T+6}")
        a(f"s_add_u32 s{T+5}, s{T+5}, {WS_GF}")
        for q in range(3):
            a(f"buffer_load_dwordx4 v[8:11], v{V_L16}, {W}, s{T+5} offen offset:{q*1024}")
        a(f"s_lshl_b32 s{T+5}, s{S_J}, 15")
        a(f"s_lshl_b32 s{T+6}, s{T+4}, 7")
        a(f"s_add_u32 s{T+5}, s{T+5}, s{T+6}")
        a(f"s_add_u32 s{T+5}, s{T+5}, {WS_HS3}")
        a("s_mov_b64 exec, 0xff")
        a(f"buffer_load_dwordx4 v[8:11], v{V_L16}, {W}, s{T+5} offen")
        a("s_mov_b64 exec, -1")
        I("pt", 6)
    def small():
        a(f"s_and_b32 s{T+4}, s{S_H}, 7")
        a(f"s_lshl_b32 s{T+4}, s{T+4}, 7")
        a(f"s_lshr_b32 s{T+5}, s{HWI}, 1")
        a(f"s_lshl_b32 s{T+5}, s{T+5}, 6")
        a(f"s_add_u32 s{T+4}, s{T+4}, s{T+5}")
        a(f"v_lshrrev_b32 v3, 5, v{L}")
        a(f"v_lshlrev_b32 v3, 3, v3")
        for jp in range(4):
            a(f"buffer_load_dwordx2 v[{B2R+2*jp}:{B2R+2*jp+1}], v3, s[{S_B2}:{S_B2+3}], s{T+4} offen offset:{16*jp}")
        a(f"s_and_b32 s{T+4}, s{S_H}, 15")
        a(f"s_mul_i32 s{T+4}, s{T+4}, {8*21846}")
        a(f"s_lshr_b32 s{T+4}, s{T+4}, 16")
        a(f"s_lshl_b32 s{T+4}, s{T+4}, 6")
        a(f"v_lshlrev_b32 v2, 2, v{L}")
        a(f"buffer_load_dword v{B1R}, v2, s[{S_B1}:{S_B1+3}], s{T+4} offen")
        I("sm", 5)
    def B(k, need, st=None):
        a(f"s_waitcnt vmcnt({younger(need)})")
        bar(a, "h", f"B{k}")
        if st is not None: stamp(a, cfg, st)
    kv(1); kv(2); kv(3); w2setup()
    B(0, "kv1", 10)
    kv(4); R(0)
    B(1, "kv2", 11)
    RD(0); kv(5); R(1); small()
    B(2, "kv3", 9)
    RD(1); kv(6); R(2)
    B(3, "kv4", 12)
    RD(2); kv(7); R(3)
    for n in range(6): warm("w1", n)
    B(4, "kv5")
    RD(3); R(4)
    for n in range(6, 11): warm("w1", n)
    for n in range(4): warm("wo", n)
    B(5, "kv6")
    RD(4); R(5); pretouch(0); pretouch(1)
    B(6, "kv7")
    RD(5); R(6)
    a("s_nop 0")
    bar(a, "h", "B7")
    RD(6); R(7); RD(7)
    bar(a, "h", "TA")
    return issued

def build_v3(a, cfg):
    bar = Bar()
    p1_end(a, cfg, bar)
    attn_cw(a, cfg, bar)
    import tail3
    tail3.tail_cw(a, cfg, bar)
    a("s_branch L3_done")
    attn_hw(a, cfg, bar)
    tail3.tail_hw(a, cfg, bar)
    bar.check()
    a.label("L3_done")
```

```python
import sys
from asmlib import *

NAME = "sequential_preLN__mha_block__dense_activation_squared_relu__prompt"
KNAME = NAME + "_kernel"

WS_EPOCH = 0x0
WS_KVFLAG = 0x1000
WS_LFLAG = 0x12000
WS_TFLAG = 0x10000
WS_KV = 0x100000
WS_OF = 0x500000
WS_HF = 0x700000
WS_GF = 0x900000
WS_QF = 0x1000000
WS_KVL = 0x1200000
WS_W2F = 0x1600000
WS_W2FLAG = 0x14000
WS_HST = 0xE80000
WS_STAMP = 0xF00000
WS_SIZE = 0x1800000

S_X, S_WQKV, S_WS, S_WO, S_W1, S_W2, S_OUT, S_B1, S_B2 = 4, 8, 12, 16, 20, 24, 28, 32, 36
S_DBG = 40
S_J, S_H, S_W, S_TAG, S_FAST = 42, 43, 44, 45, 46
S_RERUN = 47
S_VMASK = 48
S_T0 = 50
S_KA = 52
S_BLK = 74
S_XCC = 75
S_MODE = 99
S_A = 76
S_STAMP = 96
S_STB = 98

LDS_SIZE = 163840

class Cfg:
    stamps = False
    stop_after = None
    p1_prefetch = False
    p1_detail = False
    force_slow = False
    f2_detail = False
    at_detail = False
    dbgt = False
    rt = False
    v3 = False
    ustamps = False
    exp = 'rotj_nowl2_late23_S3'
    skip_p1 = False
    attn_variant = 1
    prio = 0

DBG_MAP = {40: 11, 41: 12, 0: 13, 4: 14, 18: 15, 1: 1, 2: 2, 14: 3, 12: 4, 8: 5, 16: 6, 19: 7, 21: 8, 22: 9, 24: 10}
def stamp(a, cfg, idx):
    if cfg.dbgt and idx in DBG_MAP:
        lab = f"L_dbg{idx}_{len(a.lines)}"
        a(f"s_lshl_b32 s{S_STAMP}, s{S_W}, 8")
        a(f"s_or_b32 s{S_STAMP}, s{S_STAMP}, s2")
        a(f"s_cmp_lg_u32 s{S_STAMP}, 41")
        a(f"s_cbranch_scc1 {lab}")
        a(f"s_memrealtime s[{S_STAMP}:{S_STAMP+1}]")
        a("s_waitcnt lgkmcnt(0)")
        if idx == 29: a(f"s_not_b32 s{S_STAMP}, s{S_STAMP}")
        a(f"v_mov_b32 v254, s{S_STAMP}")
        a(f"v_mov_b32 v255, {DBG_MAP[idx]*4}")
        a("s_mov_b64 exec, 1")
        a(f"global_atomic_umax v255, v254, s[{S_KA+18}:{S_KA+19}]")
        a("s_mov_b64 exec, -1")
        a.label(lab)
        return
    if not cfg.stamps: return
    a(f"{'s_memrealtime' if cfg.rt else 's_memtime'} s[{S_STAMP}:{S_STAMP+1}]")
    a("s_waitcnt lgkmcnt(0)")
    a(f"v_writelane_b32 v255, s{S_STAMP}, {idx}")

def stamp_flush(a, cfg):
    if not cfg.stamps: return
    a(f"s_memrealtime s[{S_STAMP}:{S_STAMP+1}]")
    a("s_waitcnt lgkmcnt(0)")
    a(f"v_writelane_b32 v255, s{S_STAMP}, 31")
    a(f"s_lshl_b32 s{S_STB}, s2, 3")
    a(f"s_add_u32 s{S_STB}, s{S_STB}, s{S_W}")
    a(f"s_lshl_b32 s{S_STB}, s{S_STB}, 7")
    a(f"s_add_u32 s{S_STB}, s{S_STB}, {WS_STAMP}")
    a(f"v_lshlrev_b32 v254, 2, v{V_LANE}")
    a("s_mov_b64 exec, 0xffffffff")
    a(f"buffer_store_dword v255, v254, s[{S_WS}:{S_WS+3}], s{S_STB} offen")
    a("s_mov_b64 exec, -1")

V_Q = 240
V_XRES = 244
V_B2 = 248
V_L16 = 252
V_LANE = 253

def srd(a, s, lo, hi, size):
    a(f"s_mov_b32 s{s}, s{lo}")
    a(f"s_mov_b32 s{s+1}, s{hi}")
    a(f"s_mov_b32 s{s+2}, {size}")
    a(f"s_mov_b32 s{s+3}, 0x00020000")

def prologue(a, cfg):
    a("s_cmp_ge_u32 s2, 256")
    a("s_cbranch_scc1 L_end")
    a(f"s_load_dwordx16 s[{S_KA}:{S_KA+15}], s[0:1], 0")
    a(f"s_load_dwordx4 s[{S_KA+16}:{S_KA+19}], s[0:1], 64")
    a(f"s_load_dwordx2 s[{S_KA+20}:{S_KA+21}], s[0:1], 80")
    a(f"v_and_b32 v{V_LANE}, 63, v0")
    a("v_lshrrev_b32 v2, 6, v0")
    a(f"v_lshlrev_b32 v{V_L16}, 4, v{V_LANE}")
    a(f"v_readfirstlane_b32 s{S_W}, v2")
    a(f"s_and_b32 s{S_J}, s2, 7")
    a(f"s_lshr_b32 s{S_H}, s2, 3")
    a(f"s_mov_b32 s{S_VMASK}, 0x0000ffff")
    a(f"s_mov_b32 s{S_VMASK+1}, 0x0000ffff")
    a(f"s_getreg_b32 s{S_XCC}, hwreg(HW_REG_XCC_ID, 0, 4)")
    a(f"s_mov_b32 s{S_RERUN}, 0")
    if cfg.dbgt: a(f"s_memrealtime s[90:91]")
    if cfg.stamps:
        a(f"s_memrealtime s[{S_STAMP}:{S_STAMP+1}]")
        a("s_waitcnt lgkmcnt(0)")
        a(f"v_writelane_b32 v255, s{S_STAMP}, 30")
        stamp(a, cfg, 29)

P1_SLOT = 32768
P1_MISC = 131072
P1_CS = P1_MISC
P1_ST = P1_MISC + 4096
P1_PR = P1_MISC + 1024
P1_CSV = P1_MISC + 512
S_G, S_Q4, S_AH, S_TT = 100, 101, 3, 51

def phase1(a, cfg):
    L = V_LANE
    T = S_A
    TMP, TMP2, XO, WO_, M0B = T+9, T+10, T+4, T+1, T+2
    a(f"s_lshr_b32 s{S_G}, s{S_H}, 2")
    a(f"s_and_b32 s{S_Q4}, s{S_H}, 3")
    a(f"s_and_b32 s{S_AH}, s{S_W}, 3")
    a(f"s_lshr_b32 s{S_TT}, s{S_W}, 2")
    a(f"v_lshrrev_b32 v10, 3, v{L}")
    a(f"v_and_b32 v11, 7, v{L}")
    a(f"v_lshrrev_b32 v12, 4, v{L}")
    a(f"s_and_b32 s{TMP}, s{S_W}, 1")
    a(f"s_lshl_b32 s{TMP}, s{TMP}, 2")
    a(f"v_add_u32 v13, s{TMP}, v12")
    a(f"v_xor_b32 v13, v11, v13")
    a(f"v_lshlrev_b32 v13, 4, v13")
    a(f"v_lshl_add_u32 v2, v10, 10, v13")
    a(f"v_mul_u32_u24 v10, 3072, v10")
    a(f"v_and_b32 v12, 1, v12")
    a(f"v_lshrrev_b32 v13, 1, v11")
    a(f"v_and_b32 v14, 1, v11")
    a(f"v_lshl_add_u32 v10, v14, 4, v10")
    a(f"v_xor_b32 v14, v13, v12")
    a(f"v_lshl_add_u32 v3, v14, 5, v10")
    a(f"v_xor_b32 v14, 2, v14")
    a(f"v_lshl_add_u32 v4, v14, 5, v10")
    a(f"v_add_u32 v4, 1024, v4")
    a(f"v_lshlrev_b32 v12, 1, v12")
    a(f"v_xor_b32 v14, v13, v12")
    a(f"v_lshl_add_u32 v5, v14, 5, v10")
    a(f"v_add_u32 v5, 2048, v5")
    a(f"s_lshl_b32 s{XO}, s{S_J}, 8")
    a(f"s_lshl_b32 s{TMP}, s{S_Q4}, 6")
    a(f"s_add_u32 s{XO}, s{XO}, s{TMP}")
    a(f"s_lshl_b32 s{TMP}, s{S_W}, 3")
    a(f"s_add_u32 s{XO}, s{XO}, s{TMP}")
    a(f"s_lshl_b32 s{XO}, s{XO}, 10")
    a(f"s_mul_i32 s{WO_}, s{TMP}, 3072")
    a(f"s_lshl_b32 s{TMP}, s{S_G}, 7")
    a(f"s_add_u32 s{WO_}, s{WO_}, s{TMP}")
    a(f"s_lshl_b32 s{M0B}, s{S_W}, 10")
    a("s_waitcnt lgkmcnt(0)")
    k = S_KA
    srd(a, S_X, k, k+1, 2097152)
    srd(a, S_WQKV, k+2, k+3, 1572864)
    srd(a, S_WS, k+20, k+21, WS_SIZE)
    if cfg.dbgt:
        a(f"s_lshl_b32 s{S_STAMP}, s{S_W}, 8")
        a(f"s_or_b32 s{S_STAMP}, s{S_STAMP}, s2")
        a(f"s_cmp_lg_u32 s{S_STAMP}, 41")
        a("s_cbranch_scc1 L_dbgstart")
        a("s_not_b32 s90, s90")
        a("v_mov_b32 v254, s90")
        a("v_mov_b32 v255, 0")
        a("s_mov_b64 exec, 1")
        a(f"global_atomic_umax v255, v254, s[{S_KA+18}:{S_KA+19}]")
        a("s_mov_b64 exec, -1")
        a.label("L_dbgstart")
        stamp(a, cfg, 40)
    C0 = T+12
    if 'rotg' in cfg.exp: a(f"s_mov_b32 s{C0}, s{S_G}")
    elif 'rot0' in cfg.exp: a(f"s_mov_b32 s{C0}, 0")
    elif 'rotj' in cfg.exp: a(f"s_mov_b32 s{C0}, s{S_J}")
    elif 'rotk' in cfg.exp:
        a(f"s_add_u32 s{C0}, s{S_J}, s{S_G}")
    else:
        a(f"s_lshl_b32 s{C0}, s{S_Q4}, 1")
        a(f"s_add_u32 s{C0}, s{C0}, s{S_G}")
    NT = 'nt ' if 'nt1' in cfg.exp else ''
    def group(c):
        base = (c % 4) * P1_SLOT
        a(f"s_add_u32 s{TMP2}, s{C0}, {c}")
        a(f"s_and_b32 s{TMP2}, s{TMP2}, 7")
        a(f"s_lshl_b32 s{TMP}, s{TMP2}, 7")
        a(f"s_add_u32 s{TMP}, s{TMP}, s{XO}")
        a(f"s_add_u32 m0, s{M0B}, {base}")
        a(f"s_mul_i32 s{TMP2}, s{TMP2}, {64*3072}")
        a(f"buffer_load_dwordx4 v2, s[{S_X}:{S_X+3}], s{TMP} offen {NT}lds")
        a(f"s_add_u32 m0, s{M0B}, {base+8192}")
        a(f"s_add_u32 s{TMP}, s{WO_}, s{TMP2}")
        a(f"buffer_load_dwordx4 v3, s[{S_WQKV}:{S_WQKV+3}], s{TMP} offen {NT}lds")
        a(f"s_add_u32 m0, s{M0B}, {base+16384}")
        a("s_nop 0")
        a(f"buffer_load_dwordx4 v4, s[{S_WQKV}:{S_WQKV+3}], s{TMP} offen {NT}lds")
        a(f"s_add_u32 m0, s{M0B}, {base+24576}")
        a("s_nop 0")
        a(f"buffer_load_dwordx4 v5, s[{S_WQKV}:{S_WQKV+3}], s{TMP} offen {NT}lds")
    a("v_mov_b32 v30, 0")
    a(f"buffer_load_dword v31, v30, s[{S_WS}:{S_WS+3}], 0 offen")
    group(0)
    if 'g0only' in cfg.exp:
        stamp(a, cfg, 0)
        a("s_waitcnt vmcnt(3)"); stamp(a, cfg, 2)
        a("s_waitcnt vmcnt(2)"); stamp(a, cfg, 3)
        a("s_waitcnt vmcnt(0)"); stamp(a, cfg, 4)
        a("s_barrier"); stamp(a, cfg, 1)
        return
    if cfg.p1_prefetch:
        a(f"s_cmp_ge_u32 s{S_W}, 6")
        a("s_cbranch_scc1 L_p1_pfx")
        a(f"s_and_b32 s{TMP}, s{S_W}, 1")
        a(f"s_lshl_b32 s{TMP}, s{TMP}, 6")
        a(f"s_lshl_b32 s{TMP2}, s{S_Q4}, 7")
        a(f"s_add_u32 s{TMP}, s{TMP}, s{TMP2}")
        a(f"s_mul_i32 s{TMP}, s{TMP}, 3072")
        a(f"s_lshr_b32 s{TMP2}, s{S_W}, 1")
        a(f"s_lshl_b32 s{TMP2}, s{TMP2}, 10")
        a(f"s_add_u32 s{TMP}, s{TMP}, s{TMP2}")
        a(f"s_lshl_b32 s{TMP2}, s{S_G}, 7")
        a(f"s_add_u32 s{TMP}, s{TMP}, s{TMP2}")
        a(f"v_mul_u32_u24 v40, 3072, v{L}")
        a(f"buffer_load_dword v41, v40, s[{S_WQKV}:{S_WQKV+3}], s{TMP} offen")
        a(f"buffer_load_dword v42, v40, s[{S_WQKV}:{S_WQKV+3}], s{TMP} offen offset:64")
        a("s_branch L_p1_pfd")
        a.label("L_p1_pfx")
        a(f"s_lshl_b32 s{TMP}, s{S_J}, 8")
        a(f"s_lshl_b32 s{TMP2}, s{S_Q4}, 6")
        a(f"s_add_u32 s{TMP}, s{TMP}, s{TMP2}")
        a(f"s_lshl_b32 s{TMP2}, s{S_G}, 3")
        a(f"s_add_u32 s{TMP}, s{TMP}, s{TMP2}")
        a(f"s_lshl_b32 s{TMP}, s{TMP}, 10")
        a(f"v_lshlrev_b32 v40, 7, v{L}")
        a(f"buffer_load_dword v41, v40, s[{S_X}:{S_X+3}], s{TMP} offen")
        a(f"buffer_load_dword v42, v40, s[{S_X}:{S_X+3}], s{TMP} offen offset:64")
        a.label("L_p1_pfd")
    if 'nowl2' not in cfg.exp:
        a(f"s_lshl_b32 s{TMP}, s{S_H}, 3")
        a(f"s_add_u32 s{TMP}, s{TMP}, s{S_W}")
        a(f"s_mul_i32 s{TMP}, s{TMP}, 6144")
        for i in range(4):
            a(f"buffer_load_dwordx4 v[40:43], v{V_L16}, s[{S_WQKV}:{S_WQKV+3}], s{TMP} offen offset:{i*1024}")
        a(f"s_add_u32 s{TMP}, s{TMP}, 4096")
        for i in range(2):
            a(f"buffer_load_dwordx4 v[40:43], v{V_L16}, s[{S_WQKV}:{S_WQKV+3}], s{TMP} offen offset:{i*1024}")
        a(f"s_lshl_b32 s{TMP}, s{S_J}, 8")
        a(f"s_lshl_b32 s{TMP2}, s{S_Q4}, 6")
        a(f"s_add_u32 s{TMP}, s{TMP}, s{TMP2}")
        a(f"s_lshl_b32 s{TMP2}, s{S_G}, 3")
        a(f"s_add_u32 s{TMP}, s{TMP}, s{TMP2}")
        a(f"s_add_u32 s{TMP}, s{TMP}, s{S_W}")
        a(f"s_lshl_b32 s{TMP}, s{TMP}, 10")
        a(f"buffer_load_dwordx4 v[40:43], v{V_L16}, s[{S_X}:{S_X+3}], s{TMP} offen")
    a("s_barrier")
    if cfg.dbgt: stamp(a, cfg, 41)
    if 'nowl2' in cfg.exp: group(1)
    if 'sibpf' in cfg.exp:
        a(f"s_add_u32 s{TMP2}, s{C0}, s{S_Q4}")
        a(f"s_add_u32 s{TMP2}, s{TMP2}, 4")
        a(f"s_and_b32 s{TMP2}, s{TMP2}, 7")
        a(f"s_mul_i32 s{TMP2}, s{TMP2}, {64*3072}")
        a(f"s_add_u32 s{TMP}, s{WO_}, s{TMP2}")
        for vv in (3, 4, 5):
            a(f"buffer_load_dwordx4 v[40:43], v{vv}, s[{S_WQKV}:{S_WQKV+3}], s{TMP} offen")
        a(f"s_add_u32 s{TMP2}, s{C0}, s{S_G}")
        a(f"s_and_b32 s{TMP2}, s{TMP2}, 7")
        a(f"s_lshl_b32 s{TMP}, s{TMP2}, 7")
        a(f"s_add_u32 s{TMP}, s{TMP}, s{XO}")
        a(f"buffer_load_dwordx4 v[40:43], v2, s[{S_X}:{S_X+3}], s{TMP} offen")
    a(f"v_and_b32 v20, 31, v{L}")
    a(f"v_lshrrev_b32 v21, 5, v{L}")
    a(f"v_bfe_u32 v22, v{L}, 1, 3")
    a(f"v_xor_b32 v22, v21, v22")
    a(f"v_lshlrev_b32 v22, 4, v22")
    a(f"v_lshl_add_u32 v22, v20, 7, v22")
    a(f"s_lshl_b32 s{TMP}, s{S_TT}, 12")
    a(f"v_add_u32 v8, s{TMP}, v22")
    a(f"v_xor_b32 v9, 32, v8")
    a(f"v_xor_b32 v10, 64, v8")
    a(f"v_xor_b32 v11, 96, v8")
    a(f"s_lshl_b32 s{TMP}, s{S_AH}, 5")
    a(f"v_xor_b32 v7, s{TMP}, v8")
    a(f"v_bfe_u32 v20, v{L}, 2, 2")
    a(f"v_lshl_add_u32 v23, v21, 3, v20")
    a(f"v_lshlrev_b32 v23, 7, v23")
    a(f"v_and_b32 v22, 3, v{L}")
    a(f"v_lshl_add_u32 v23, v22, 3, v23")
    a(f"v_bfe_u32 v24, v{L}, 3, 1")
    a(f"v_bfe_u32 v25, v{L}, 4, 1")
    a(f"v_lshlrev_b32 v26, 1, v25")
    a(f"v_xor_b32 v26, v26, v24")
    a(f"v_xor_b32 v26, s{S_AH}, v26")
    a(f"v_lshl_add_u32 v12, v26, 5, v23")
    a(f"v_lshl_add_u32 v12, v25, 13, v12")
    a(f"v_add_u32 v12, 8192, v12")
    a(f"s_and_b32 s{TMP}, s{S_AH}, 2")
    a(f"v_lshlrev_b32 v26, 1, v24")
    a(f"v_or_b32 v25, s{TMP}, v25")
    a(f"v_xor_b32 v26, v26, v25")
    a(f"v_lshl_add_u32 v13, v26, 5, v23")
    a(f"v_add_u32 v13, 24576, v13")
    a("v_mov_b32 v18, 0x3f803f80")
    for r in (14, 15, 16, 17, 22, 23): a(f"v_mov_b32 v{r}, 0")
    for r in range(48, 80): a(f"v_mov_b32 v{r}, 0")
    if 'nowl2' in cfg.exp and 'late23' not in cfg.exp:
        a("s_barrier")
        group(2); group(3)
    if 'tlb' in cfg.exp:
        a(f"s_cmp_lg_u32 s{S_W}, 7")
        a("s_cbranch_scc1 L_p1_notlb")
        a(f"v_lshlrev_b32 v40, 14, v{L}")
        a(f"s_lshl_b32 s{TMP}, s{S_H}, 20")
        a(f"buffer_load_dword v42, v40, s[{S_WS}:{S_WS+3}], s{TMP} offen")
        a(f"v_lshlrev_b32 v40, 10, v{L}")
        a(f"s_lshl_b32 s{TMP}, s{S_H}, 16")
        a(f"buffer_load_dword v43, v40, s[{S_KA+16}:{S_KA+19}], s{TMP} offen") if False else None
        a.label("L_p1_notlb")
    NPT = 5 if 'ptkv' in cfg.exp else 3
    a(f"s_cmp_ge_u32 s{S_W}, {NPT}")
    a("s_cbranch_scc1 L_p1_nopt")
    a(f"s_lshl_b32 s{TMP}, s{S_H}, 3")
    a(f"s_add_u32 s{TMP}, s{TMP}, s{S_J}")
    a(f"s_lshl_b32 s{TMP2}, s{TMP}, 14")
    a(f"s_lshl_b32 s{TMP}, s{TMP}, 13")
    a(f"s_add_u32 s{TMP}, s{TMP}, {WS_QF}")
    a(f"s_cmp_eq_u32 s{S_W}, 0")
    a("s_cbranch_scc1 L_p1_ptgo")
    a(f"s_sub_u32 s{TMP}, s{S_W}, 1")
    a(f"s_and_b32 s{T+13}, s{TMP}, 1")
    a(f"s_lshl_b32 s{T+13}, s{T+13}, 13")
    a(f"s_add_u32 s{TMP2}, s{TMP2}, s{T+13}")
    a(f"s_cmp_lt_u32 s{TMP}, 2")
    a(f"s_mov_b32 s{TMP}, {WS_KV}")
    a(f"s_cselect_b32 s{TMP}, {WS_KVL}, s{TMP}")
    a(f"s_add_u32 s{TMP}, s{TMP}, s{TMP2}")
    a.label("L_p1_ptgo")
    a(f"v_lshlrev_b32 v44, 7, v{L}")
    a(f"buffer_load_dword v45, v44, s[{S_WS}:{S_WS+3}], s{TMP} offen")
    a.label("L_p1_nopt")
    a(f"s_lshl_b32 s92, s{S_G}, 2")
    a(f"s_add_u32 s92, s92, s{S_AH}")
    a(f"s_lshl_b32 s92, s92, 3")
    a(f"s_add_u32 s92, s92, s{S_J}")
    a(f"s_lshl_b32 s93, s{S_Q4}, 1")
    a(f"s_add_u32 s93, s93, s{S_TT}")
    a(f"s_lshl_b32 s93, s93, 10")
    a(f"s_lshl_b32 s94, s92, 14")
    a(f"s_add_u32 s94, s94, s93")
    a(f"s_lshl_b32 s92, s92, 13")
    a(f"s_add_u32 s92, s92, s93")
    a(f"s_add_u32 s92, s92, {WS_QF}")
    a(f"s_add_u32 s93, s94, {WS_KVL}")
    a(f"s_add_u32 s94, s94, {WS_KV}")
    a(f"v_bfe_u32 v144, v{L}, 4, 1")
    a(f"s_and_b32 s{TMP2}, s{S_AH}, 1")
    a(f"v_subrev_u32 v144, s{TMP2}, v144")
    a(f"v_lshlrev_b32 v144, 17, v144")
    a(f"v_and_b32 v145, 15, v{L}")
    a(f"v_lshlrev_b32 v145, 4, v145")
    a(f"v_lshrrev_b32 v146, 5, v{L}")
    a(f"v_lshl_add_u32 v145, v146, 8, v145")
    a(f"v_add_u32 v144, v144, v145")
    a(f"v_add_u32 v144, {8192 + 0x20000}, v144")
    srd(a, S_WO, k+4, k+5, 524288)
    srd(a, S_W1, k+8, k+9, 1409024)
    srd(a, S_B1, k+10, k+11, 2752)
    srd(a, S_W2, k+12, k+13, 1409024)
    srd(a, S_B2, k+14, k+15, 1024)
    srd(a, S_OUT, k+16, k+17, 2097152)
    a(f"s_mov_b32 s{S_DBG}, s{k+18}")
    a(f"s_mov_b32 s{S_DBG+1}, s{k+19}")
    if 'tlb' in cfg.exp:
        a(f"s_cmp_lg_u32 s{S_W}, 6")
        a("s_cbranch_scc1 L_p1_notlb2")
        a(f"v_lshlrev_b32 v40, 10, v{L}")
        a(f"s_lshl_b32 s{TMP}, s{S_H}, 16")
        for srd_, dst in ((S_OUT, 42), (S_W1, 43), (S_W2, 44), (S_WO, 45)):
            a(f"buffer_load_dword v{dst}, v40, s[{srd_}:{srd_+3}], s{TMP} offen")
        a.label("L_p1_notlb2")
    stamp(a, cfg, 0)
    a(f"s_waitcnt vmcnt({((4 if 'late23' in cfg.exp else 12) + (4 if 'sibpf' in cfg.exp else 0)) if 'nowl2' in cfg.exp else 7})")
    a(f"v_readfirstlane_b32 s{S_TAG}, v31")
    a("s_waitcnt lgkmcnt(0)")
    a(f"s_mul_i32 s{S_TAG}, s{S_TAG}, 1664525")
    a(f"s_add_u32 s{S_TAG}, s{S_TAG}, 1013904223")
    a("s_barrier")
    stamp(a, cfg, 1)
    XB = [80 + 4*i for i in range(4)]
    XS = 96
    WQ = [112 + 8*i for i in range(4)]; WVr = [116 + 8*i for i in range(4)]
    def reads_l(c, ks, owner):
        o = (c % 4) * P1_SLOT
        L_ = []
        L_.append(f"ds_read_b128 v[{XB[ks]}:{XB[ks]+3}], v{8+ks} offset:{o % 65536}" if o < 65536 else f"ds_read_b128 v[{XB[ks]}:{XB[ks]+3}], v{148+ks} offset:{o-65536}")
        qa = 12 if o < 65536 else 152
        oo = (o % 65536) + ks*2048
        L_.append(f"ds_read_b64_tr_b16 v[{WQ[ks]}:{WQ[ks]+1}], v{qa} offset:{oo}")
        L_.append(f"ds_read_b64_tr_b16 v[{WQ[ks]+2}:{WQ[ks]+3}], v{qa} offset:{oo+512}")
        if owner:
            va = 13 if o < 65536 else 153
            L_.append(f"ds_read_b64_tr_b16 v[{WVr[ks]}:{WVr[ks]+1}], v{va} offset:{oo}")
            L_.append(f"ds_read_b64_tr_b16 v[{WVr[ks]+2}:{WVr[ks]+3}], v{va} offset:{oo+512}")
        return L_
    def reads(c, ks, owner):
        for i_ in reads_l(c, ks, owner): a(i_)
    ONES = 156; CSV = 160
    def sread_l(c, owner):
        o = (c % 4) * P1_SLOT
        xs = XS + 4 * (c % 2)
        L_ = [f"ds_read_b128 v[{xs}:{xs+3}], v{7 if o < 65536 else 154} offset:{o % 65536}"]
        if not owner:
            va = 6 if o < 65536 else 155
            for q in range(2):
                b = 176 + 8 * (c % 2) + 4 * q
                L_.append(f"ds_read_b64_tr_b16 v[{b}:{b+1}], v{va} offset:{(o % 65536) + q*2048}")
                L_.append(f"ds_read_b64_tr_b16 v[{b+2}:{b+3}], v{va} offset:{(o % 65536) + q*2048 + 512}")
        return L_
    def sread(c, owner):
        for i_ in sread_l(c, owner): a(i_)
    def stats_l(c, r):
        t = 36 + 2 * (r & 1)
        xs = XS + 4 * (c % 2)
        return [f"v_lshlrev_b32 v{t}, 16, v{xs+r}", f"v_and_b32 v{t+1}, 0xffff0000, v{xs+r}", f"v_fmac_f32 v14, v{t}, v{t}",
                f"v_add_f32 v22, v22, v{t}", f"v_fmac_f32 v15, v{t+1}, v{t+1}", f"v_add_f32 v23, v23, v{t+1}"]
    def compute(c, ks, owner, fill):
        x = XB[ks]
        M = [f"v_mfma_f32_32x32x16_bf16 v[48:63], v[{WQ[ks]}:{WQ[ks]+3}], v[{x}:{x+3}], v[48:63]"]
        if owner:
            M.append(f"v_mfma_f32_32x32x16_bf16 v[64:79], v[{x}:{x+3}], v[{WVr[ks]}:{WVr[ks]+3}], v[64:79]")
        else:
            M.append(f"v_mfma_f32_32x32x16_bf16 v[64:79], v[{WQ[ks]}:{WQ[ks]+3}], v[{ONES}:{ONES+3}], v[64:79]")
            if ks < 2:
                b = 176 + 8 * (c % 2) + 4 * ks
                M.append(f"v_mfma_f32_32x32x16_bf16 v[{CSV}:{CSV+15}], v[{ONES}:{ONES+3}], v[{b}:{b+3}], v[{CSV}:{CSV+15}]")
        F = list(fill) + stats_l(c, ks)
        k_ = len(M)
        per = (len(F) + k_ - 1) // k_
        for i_, m_ in enumerate(M):
            a(m_)
            for f_ in F[i_*per:(i_+1)*per]:
                if callable(f_): f_()
                else: a(f_)
    a(f"s_and_b32 s{TMP}, s{S_AH}, 1")
    a(f"s_lshl_b32 s{TMP}, s{TMP}, 12")
    a(f"v_add_u32 v6, s{TMP}, v13")
    for i in range(4): a(f"v_add_u32 v{148+i}, 0x10000, v{8+i}")
    a("v_add_u32 v152, 0x10000, v12")
    a("v_add_u32 v153, 0x10000, v13")
    a("v_add_u32 v154, 0x10000, v7")
    a("v_add_u32 v155, 0x10000, v6")
    for r in range(4): a(f"v_mov_b32 v{ONES+r}, 0x3f803f80")
    for r in range(16): a(f"v_mov_b32 v{CSV+r}, 0")
    a(f"s_cmp_lg_u32 s{S_W}, 0")
    a("s_cbranch_scc1 L_p1_nohello")
    a(f"s_lshl_b32 s{TMP}, s{S_J}, 7")
    a(f"s_lshl_b32 s{TMP2}, s{S_H}, 2")
    a(f"s_add_u32 s{TMP}, s{TMP}, s{TMP2}")
    a(f"s_add_u32 s{TMP}, s{TMP}, {WS_TFLAG}")
    a(f"s_add_u32 s{TMP2}, s{S_TAG}, s{S_XCC}")
    a(f"s_add_u32 s{TMP2}, s{TMP2}, 1")
    a(f"v_mov_b32 v28, s{TMP2}")
    a("v_mov_b32 v29, 0")
    a("s_mov_b64 exec, 1")
    a(f"buffer_store_dword v28, v29, s[{S_WS}:{S_WS+3}], s{TMP} offen sc1")
    a("s_mov_b64 exec, -1")
    a.label("L_p1_nohello")
    a(f"s_and_b32 s{TMP}, s{S_AH}, 1")
    a(f"s_cmp_eq_u32 s{TMP}, s{S_TT}")
    a("s_cbranch_scc0 L_p1_nonowner")
    for owner in (True, False):
        n = 5 if owner else 3
        m = 1 if owner else 5
        if not owner: a.label("L_p1_nonowner")
        sread(0, owner); reads(0, 0, owner); reads(0, 1, owner)
        for c in range(8):
            last = c == 7
            if cfg.p1_detail: stamp(a, cfg, 16 + c)
            a(f"s_waitcnt lgkmcnt({n})")
            early = c == 0 and 'nowl2' not in cfg.exp
            l23 = c == 0 and 'late23' in cfg.exp
            compute(c, 0, owner, ([lambda: group(1), lambda: group(2)] if early else []) + ([lambda: group(2)] if l23 else []) + reads_l(c, 2, owner))
            a(f"s_waitcnt lgkmcnt({n})")
            compute(c, 1, owner, ([lambda: group(3)] if early or l23 else []) + reads_l(c, 3, owner))
            if not last:
                a(f"s_waitcnt vmcnt({[8,4,4,4,4,5,1][c]}) lgkmcnt({n})")
                if 'nobar' not in cfg.exp: a("s_barrier")
                compute(c, 2, owner, sread_l(c + 1, owner) + reads_l(c + 1, 0, owner))
                a(f"s_waitcnt lgkmcnt({m+n})")
                fill = reads_l(c + 1, 1, owner)
                if c >= 1 and c + 3 <= 7 and 'nodma' not in cfg.exp:
                    fill = fill + [(lambda cc: (lambda: group(cc)))(c + 3)]
                if c == 4:
                    def hello_load():
                        a(f"s_lshl_b32 s{TMP}, s{S_J}, 7")
                        a(f"s_add_u32 s{TMP}, s{TMP}, {WS_TFLAG}")
                        a(f"v_and_b32 v28, 31, v{L}")
                        a("v_lshlrev_b32 v28, 2, v28")
                        a(f"buffer_load_dword v29, v28, s[{S_WS}:{S_WS+3}], s{TMP} offen sc1")
                    fill = fill + [hello_load]
                compute(c, 3, owner, fill)
            else:
                a(f"s_waitcnt lgkmcnt({n})")
                compute(c, 2, owner, [])
                a("s_waitcnt lgkmcnt(0)")
                compute(c, 3, owner, [])
        if owner: a("s_branch L_p1_joined")
    a.label("L_p1_joined")
    stamp(a, cfg, 2)
    p1_epilogue(a, cfg)

def p1_epilogue(a, cfg):
    L = V_LANE
    T = S_A
    TMP, TMP2 = T+9, T+10
    a(f"v_lshrrev_b32 v21, 5, v{L}")
    a("v_add_f32 v22, v22, v23")
    a("v_add_f32 v16, v14, v15")
    a(f"v_and_b32 v25, 31, v{L}")
    a("v_mov_b32 v23, v22")
    a("v_mov_b32 v17, v16")
    a(f"v_lshlrev_b32 v25, 2, v25")
    a(f"s_lshl_b32 s{TMP}, s{S_TT}, 10")
    a("v_permlane32_swap_b32 v22, v23")
    a("v_permlane32_swap_b32 v16, v17")
    a(f"s_add_u32 s{TMP}, s{TMP}, {P1_ST}")
    a(f"v_lshl_add_u32 v26, v25, 1, s{TMP}")
    a(f"s_lshl_b32 s{TMP2}, s{S_AH}, 8")
    a(f"v_add_u32 v27, s{TMP2}, v26")
    a("v_add_f32 v22, v22, v23")
    a("v_add_f32 v23, v16, v17")
    a("s_mov_b64 exec, 0xffffffff")
    a("ds_write_b64 v27, v[22:23]")
    a(f"s_and_b32 s{TMP2}, s{S_AH}, 1")
    a(f"s_cmp_eq_u32 s{TMP2}, s{S_TT}")
    a("s_cbranch_scc1 L_p1_e1")
    a(f"s_lshl_b32 s{TMP}, s{S_AH}, 7")
    a(f"s_add_u32 s{TMP}, s{TMP}, {P1_CSV}")
    a(f"v_add_u32 v27, s{TMP}, v25")
    a("ds_write_b32 v27, v160")
    a(f"s_lshl_b32 s{TMP}, s{S_AH}, 7")
    a(f"s_add_u32 s{TMP}, s{TMP}, {P1_CS}")
    a("s_mov_b64 exec, -1")
    a(f"v_lshlrev_b32 v27, 4, v21")
    a(f"v_add_u32 v27, s{TMP}, v27")
    a("s_mov_b32 exec_lo, 1")
    a("s_mov_b32 exec_hi, 1")
    for jj in range(4):
        a(f"ds_write_b128 v27, v[{64+4*jj}:{67+4*jj}] offset:{jj*32}")
    a.label("L_p1_e1")
    a("s_mov_b64 exec, -1")
    a(f"s_lshl_b32 s{TMP}, s{S_J}, 7")
    a(f"s_add_u32 s{TMP}, s{TMP}, {WS_TFLAG}")
    a(f"s_add_u32 s{TMP2}, s{S_TAG}, 1")
    a(f"s_mov_b32 s{T+11}, 0")
    a("s_waitcnt vmcnt(0)")
    a.label("L_p1_hchk")
    a(f"v_subrev_u32 v29, s{TMP2}, v29")
    a("v_cmp_lt_u32 vcc, 15, v29")
    a("s_cbranch_vccz L_p1_hok")
    a(f"s_add_u32 s{T+11}, s{T+11}, 1")
    a(f"s_cmp_gt_u32 s{T+11}, 0x100000")
    a("s_cbranch_scc1 L_p1_hok")
    a(f"buffer_load_dword v29, v28, s[{S_WS}:{S_WS+3}], s{TMP} offen sc1")
    a("s_waitcnt vmcnt(0)")
    a("s_branch L_p1_hchk")
    a.label("L_p1_hok")
    a(f"v_cmp_ne_u32 vcc, s{S_XCC}, v29")
    a(f"s_cmp_eq_u64 vcc, 0")
    a(f"s_cselect_b32 s{S_FAST}, 1, 0")
    if cfg.force_slow: a(f"s_mov_b32 s{S_FAST}, 0")
    a("s_waitcnt lgkmcnt(0)")
    a("s_barrier")
    stamp(a, cfg, 3)
    for q in range(4):
        a(f"ds_read_b64 v[{36+2*q}:{37+2*q}], v26 offset:{q*256}")
    a(f"s_lshl_b32 s{TMP}, s{S_AH}, 7")
    a(f"s_add_u32 s{TMP}, s{TMP}, {P1_CS}")
    a(f"v_lshlrev_b32 v20, 4, v21")
    a(f"v_add_u32 v20, s{TMP}, v20")
    for jj in range(4):
        a(f"ds_read_b128 v[{80+4*jj}:{83+4*jj}], v20 offset:{jj*32}")
    a(f"s_and_b32 s{TMP}, s{S_AH}, 2")
    a(f"s_lshl_b32 s{TMP}, s{TMP}, 7")
    a(f"s_add_u32 s{TMP}, s{TMP}, {P1_CSV}")
    a(f"v_add_u32 v27, s{TMP}, v25")
    a("ds_read_b32 v19, v27")
    a("ds_read_b32 v18, v27 offset:128")
    QO, KL, KR = 92, 93, 94
    a("s_waitcnt lgkmcnt(6)")
    a("v_pk_add_f32 v[36:37], v[36:37], v[38:39]")
    a("v_pk_add_f32 v[40:41], v[40:41], v[42:43]")
    a("v_pk_add_f32 v[36:37], v[36:37], v[40:41]")
    a("v_mul_f32 v14, 0x3b000000, v36")
    a("v_mul_f32 v16, 0x3b000000, v37")
    a("v_fma_f32 v16, -v14, v14, v16")
    a("v_add_f32 v16, 0x3727c5ac, v16")
    a("v_rsq_f32 v16, v16")
    a(f"s_lshl_b32 s{TMP}, s{S_W}, 8")
    a(f"s_add_u32 s{TMP}, s{TMP}, {P1_PR}")
    a(f"v_add_u32 v25, s{TMP}, v25")
    a("v_mul_f32 v17, v14, v16")
    a("v_mul_f32 v15, 0x3eb8aa3b, v16")
    a(f"v_lshlrev_b32 v23, 4, v21")
    a(f"v_add_u32 v23, s{TMP}, v23")
    a("ds_write_b32 v25, v16")
    a("ds_write_b32 v25, v17 offset:128")
    a("s_waitcnt lgkmcnt(2)")
    a("v_add_f32 v19, v19, v18")
    for i in range(8, 16, 2):
        a(f"v_pk_fma_f32 v[{48+i}:{49+i}], v[{80+i}:{81+i}], v[14:15], v[{48+i}:{49+i}] op_sel_hi:[1,0,1] neg_lo:[0,1,0] neg_hi:[0,1,0]")
    for i in range(8, 16, 2):
        a(f"v_pk_mul_f32 v[{48+i}:{49+i}], v[{48+i}:{49+i}], v[16:17] op_sel_hi:[1,0]")
    for n in range(4):
        a(f"v_cvt_pk_bf16_f32 v{28+n}, v{56+2*n}, v{57+2*n}")
    W = f"s[{S_WS}:{S_WS+3}]"
    def mstore(ins, uniq):
        a(f"s_cmp_eq_u32 s{S_FAST}, 0")
        a(f"s_cbranch_scc1 L_p1s_{uniq}_s")
        for i_ in ins: a(i_.format(sc=""))
        a(f"s_branch L_p1s_{uniq}_d")
        a.label(f"L_p1s_{uniq}_s")
        for i_ in ins: a(i_.format(sc="sc1"))
        a.label(f"L_p1s_{uniq}_d")
    mstore([f"buffer_store_dwordx4 v[28:31], v{V_L16}, {W}, s{KL} offen {{sc}}"], "k")
    a("s_waitcnt lgkmcnt(0)")
    for jj in range(4):
        a(f"ds_read_b128 v[{96+4*jj}:{99+4*jj}], v23 offset:{jj*32}")
        a(f"ds_read_b128 v[{112+4*jj}:{115+4*jj}], v23 offset:{128+jj*32}")
    for i in range(0, 8, 2):
        a(f"v_pk_fma_f32 v[{48+i}:{49+i}], v[{80+i}:{81+i}], v[14:15], v[{48+i}:{49+i}] op_sel_hi:[1,0,1] neg_lo:[0,1,0] neg_hi:[0,1,0]")
    for i in range(0, 8, 2):
        a(f"v_pk_mul_f32 v[{48+i}:{49+i}], v[{48+i}:{49+i}], v[14:15] op_sel:[0,1] op_sel_hi:[1,1]")
    for n in range(4):
        a(f"v_cvt_pk_bf16_f32 v{32+n}, v{48+2*n}, v{49+2*n}")
    mstore([f"buffer_store_dwordx4 v[32:35], v{V_L16}, {W}, s{QO} offen {{sc}}"], "q")
    a(f"s_sub_u32 s{T+13}, s{KL}, 0x20000")
    a(f"s_sub_u32 s{T+14}, s{KR}, 0x20000")
    a(f"s_and_b32 s{TMP2}, s{S_AH}, 1")
    a(f"s_cmp_eq_u32 s{TMP2}, s{S_TT}")
    a("s_cbranch_scc0 L_p1_st_n")
    a("s_waitcnt lgkmcnt(0)")
    for hf in range(2):
        for i in range(8*hf, 8*hf+8, 2):
            a(f"v_pk_mul_f32 v[{112+i}:{113+i}], v[{112+i}:{113+i}], v[18:19] op_sel:[0,1] op_sel_hi:[1,1]")
        for i in range(8*hf, 8*hf+8, 2):
            a(f"v_pk_fma_f32 v[{64+i}:{65+i}], v[{64+i}:{65+i}], v[{96+i}:{97+i}], v[{112+i}:{113+i}] neg_lo:[0,0,1] neg_hi:[0,0,1]")
        for n in range(4*hf, 4*hf+4):
            a(f"v_cvt_pk_bf16_f32 v{40+n}, v{64+2*n}, v{65+2*n}")
        mstore([f"buffer_store_dwordx4 v[{40+4*hf}:{43+4*hf}], v144, {W}, s{T+13} offen offset:{512*hf} {{sc}}"], f"v{hf}")
    a(f"buffer_store_dwordx4 v[28:31], v{V_L16}, {W}, s{KR} offen sc1")
    a(f"buffer_store_dwordx4 v[40:43], v144, {W}, s{T+14} offen sc1")
    a(f"buffer_store_dwordx4 v[44:47], v144, {W}, s{T+14} offen offset:512 sc1")
    a("s_waitcnt vmcnt(3)")
    a("s_branch L_p1_st_done")
    a.label("L_p1_st_n")
    a(f"buffer_store_dwordx4 v[28:31], v{V_L16}, {W}, s{KR} offen sc1")
    a("s_waitcnt vmcnt(1) lgkmcnt(0)")
    a.label("L_p1_st_done")
    stamp(a, cfg, 4)
    a(f"s_lshl_b32 s{TMP}, s{S_J}, 10")
    a(f"s_add_u32 s{TMP}, s{TMP}, {WS_LFLAG}")
    a(f"s_lshl_b32 s{TMP2}, s{S_H}, 3")
    a(f"s_add_u32 s{TMP2}, s{TMP2}, s{S_W}")
    a(f"s_lshl_b32 s{TMP2}, s{TMP2}, 2")
    a(f"s_add_u32 s{TMP2}, s{TMP2}, s{TMP}")
    team_flag(a, cfg, TMP2, "p1")
    if cfg.v3:
        import v3
        v3.build_v3(a, cfg)
        return
    attn_presetup(a)
    a(f"s_lshl_b32 s{T+13}, s{S_H}, 3")
    a(f"s_add_u32 s{T+13}, s{T+13}, s{S_J}")
    a(f"s_lshl_b32 s{T+14}, s{T+13}, 13")
    a(f"s_lshl_b32 s{T+13}, s{T+13}, 14")
    a(f"s_lshl_b32 s{T+11}, s{S_W}, 10")
    a(f"s_and_b32 s{T+12}, s{S_W}, 6")
    a(f"s_lshl_b32 s{T+12}, s{T+12}, 10")
    a(f"s_add_u32 s{T+14}, s{T+14}, s{T+12}")
    a(f"s_add_u32 s{T+14}, s{T+14}, {WS_QF}")
    a(f"s_add_u32 s{T+13}, s{T+13}, s{T+11}")
    a(f"s_add_u32 s{T+13}, s{T+13}, {WS_KVL}")
    a(f"s_lshl_b32 s{TMP2}, s{S_G}, 7")
    a(f"s_add_u32 s{TMP}, s{TMP}, s{TMP2}")
    a(f"v_and_b32 v2, 31, v{L}")
    a("v_lshlrev_b32 v2, 2, v2")
    poll(a, 2, 3, TMP, "p1l")
    stamp(a, cfg, 13)
    a(f"s_mov_b32 m0, s{T+11}")
    a(f"buffer_load_dwordx4 v[{V_Q}:{V_Q+3}], v{V_L16}, s[{S_WS}:{S_WS+3}], s{T+14} offen sc1")
    a(f"buffer_load_dwordx4 v[244:247], v{V_L16}, s[{S_WS}:{S_WS+3}], s{T+14} offen offset:1024 sc1")
    a(f"buffer_load_dwordx4 v{V_L16}, s[{S_WS}:{S_WS+3}], s{T+13} offen sc1 lds")
    a(f"s_add_u32 m0, m0, 8192")
    a(f"s_add_u32 s{T+13}, s{T+13}, 8192")
    a(f"buffer_load_dwordx4 v{V_L16}, s[{S_WS}:{S_WS+3}], s{T+13} offen sc1 lds")
    a(f"s_lshl_b32 s{TMP}, s{S_H}, 3")
    a(f"s_add_u32 s{TMP}, s{TMP}, s{S_W}")
    a(f"s_lshl_b32 s{TMP}, s{TMP}, 5")
    a(f"s_lshl_b32 s{TMP2}, s{S_J}, 2")
    a(f"s_add_u32 s{TMP}, s{TMP}, s{TMP2}")
    a(f"s_add_u32 s{TMP}, s{TMP}, {WS_KVFLAG}")
    flag_store(a, S_TAG, TMP, "sc1")
    a("s_waitcnt vmcnt(1)")
    a("s_barrier")
    stamp(a, cfg, 14)

def team_flag(a, cfg, off_s, uniq):
    a(f"v_mov_b32 v2, s{S_TAG}")
    a("v_mov_b32 v3, 0")
    a("s_mov_b64 exec, 1")
    a(f"s_cmp_eq_u32 s{S_FAST}, 0")
    a(f"s_cbranch_scc1 L_tf_{uniq}_s")
    a(f"buffer_store_dword v2, v3, s[{S_WS}:{S_WS+3}], s{off_s} offen")
    a(f"s_branch L_tf_{uniq}_d")
    a.label(f"L_tf_{uniq}_s")
    a(f"buffer_store_dword v2, v3, s[{S_WS}:{S_WS+3}], s{off_s} offen sc1")
    a.label(f"L_tf_{uniq}_d")
    a("s_mov_b64 exec, -1")

def poll(a, vaddr, vtmp, off_s, uniq):
    C = S_A + 19
    a(f"s_mov_b32 s{C}, 0")
    a.label(f"L_poll_{uniq}")
    a(f"buffer_load_dword v{vtmp}, v{vaddr}, s[{S_WS}:{S_WS+3}], s{off_s} offen sc1")
    a(f"s_add_u32 s{C}, s{C}, 1")
    a("s_waitcnt vmcnt(0)")
    a(f"v_cmp_ne_u32 vcc, s{S_TAG}, v{vtmp}")
    a(f"s_cmp_gt_u32 s{C}, 0x100000")
    a(f"s_cbranch_scc1 L_poll_{uniq}_x")
    a(f"s_cbranch_vccnz L_poll_{uniq}")
    a.label(f"L_poll_{uniq}_x")

A_S = [16, 32]; A_C = [48, 64]; A_O = [80, 96]; A_P = 112; A_KF = [120, 124]; A_VF = [128, 136]
A_VK = [144, 145]; A_VV = [146, 147]
V_QB = 244
V_W2V, V_W2T, V_DUM = 148, 149, 150
def mfma32(a, d, x, y, c):
    cs = c if isinstance(c, str) else f"v[{c}:{c+15}]"
    a(f"v_mfma_f32_32x32x16_bf16 v[{d}:{d+15}], v[{x}:{x+3}], v[{y}:{y+3}], {cs}")

def maxtree(a, src, dst):
    a(f"v_max3_f32 v{dst}, v{src}, v{src+1}, v{src+2}")
    for i in range(3, 15, 2):
        a(f"v_max3_f32 v{dst}, v{dst}, v{src+i}, v{src+i+1}")
    a(f"v_max_f32 v{dst}, v{dst}, v{src+15}")

def halfmax(a, r, t):
    a(f"v_mov_b32 v{t}, v{r}")
    a("s_nop 1")
    a(f"v_permlane32_swap_b32 v{r}, v{t}")
    a("s_nop 0")
    a(f"v_max_f32 v{r}, v{r}, v{t}")

def attn_presetup(a):
    L = V_LANE
    T = S_A
    a(f"s_and_b32 s{T+4}, s{S_W}, 1")
    a(f"s_lshl_b32 s{T+4}, s{T+4}, 12")
    a(f"v_add_u32 v{A_VK[0]}, s{T+4}, v{V_L16}")
    a(f"v_and_b32 v4, 15, v{L}")
    a(f"v_lshlrev_b32 v4, 4, v4")
    a(f"v_lshrrev_b32 v5, 5, v{L}")
    a(f"v_lshl_add_u32 v4, v5, 8, v4")
    a(f"v_add_u32 v4, 8192, v4")
    a(f"v_add_u32 v{A_VV[0]}, s{T+4}, v4")
    a(f"v_add_u32 v{A_VK[1]}, 0x10000, v{A_VK[0]}")
    a(f"v_add_u32 v{A_VV[1]}, 0x10000, v{A_VV[0]}")
    a(f"v_and_b32 v5, 31, v{L}")
    a(f"v_cmp_eq_u32 vcc, 16, v5")
    a(f"v_mov_b32 v4, 0x3f803f80")
    a("s_nop 0")
    a(f"v_cndmask_b32 v{A_VF[0]}, 0, v4, vcc")
    for r in range(1, 16):
        a(f"v_mov_b32 v{A_VF[0]+r}, v{A_VF[0]}")
    for x in range(2):
        for r in range(16): a(f"v_mov_b32 v{A_O[x]+r}, 0")
    for r in range(8): a(f"v_mov_b32 v{A_P+r}, 0")

USTAMPS = [0, 6, 7, 14, 15, 22, 23, 30, 38, 46, 54]
def attention(a, cfg):
    L = V_LANE
    T = S_A
    Q = [V_Q, V_QB]
    act = make_act(a, cfg)
    if cfg.skip_p1:
        keepu = set()
        if 'bar' in cfg.exp: keepu |= {6, 14, 22, 30}
        if 'w2h' in cfg.exp: keepu |= {24, 32, 38, 44, 50, 55, 60, 61}
        if 'wrm' in cfg.exp: keepu |= {33, 34, 35, 39, 40, 41, 45, 46, 47}
        if 'kvd' in cfg.exp: keepu |= {2, 4, 7, 10, 13, 16}
        act = {k: v for k, v in act.items() if k[0]*8 + k[1] in keepu}
    if cfg.skip_p1: attn_presetup(a)
    a(f"ds_read_b128 v[{A_KF[1]}:{A_KF[1]+3}], v{V_L16}")
    a(f"ds_read_b128 v[{A_KF[0]}:{A_KF[0]+3}], v{A_VK[0]}")
    a(f"s_mov_b64 exec, s[{S_VMASK}:{S_VMASK+1}]")
    a(f"ds_read_b128 v[{A_VF[0]}:{A_VF[0]+3}], v{A_VV[0]}")
    a(f"ds_read_b128 v[{A_VF[0]+4}:{A_VF[0]+7}], v{A_VV[0]} offset:512")
    a("s_mov_b64 exec, -1")
    a(f"s_lshl_b32 s{T}, s{S_H}, 17")
    a(f"s_add_u32 s{T}, s{T}, {WS_KV}")
    a(f"s_lshl_b32 s{T+1}, s{S_W}, 10")
    a(f"s_add_u32 s{T}, s{T}, s{T+1}")
    a(f"s_add_u32 s{T+2}, s{T+1}, 0")
    a("s_waitcnt lgkmcnt(3)")
    mfma32(a, A_S[0], A_KF[1], Q[0], "0")
    mfma32(a, A_S[1], A_KF[1], Q[1], "0")
    a("s_nop 7")
    a("s_nop 2")
    maxtree(a, A_S[0], 2)
    maxtree(a, A_S[1], 3)
    halfmax(a, 2, 4)
    halfmax(a, 3, 4)
    for x in range(2):
        a(f"v_sub_f32 v{A_C[x]}, 0, v{2+x}")
        for r in range(1, 16): a(f"v_mov_b32 v{A_C[x]+r}, v{A_C[x]}")
    a("s_waitcnt lgkmcnt(0)")
    mfma32(a, A_S[0], A_KF[0], Q[0], A_C[0])
    a("s_nop 7")
    a("s_nop 3")
    P = A_P
    def kv_off(n):
        s_, i = n >> 2, n & 3
        hi = 1 if s_ >= 4 else 0
        return hi, (s_ - 4*hi) * 16384 + i * 1024
    for u in range(64):
        n, x = u >> 1, u & 1
        cur = A_S[u % 2]; nxt = A_S[(u + 1) % 2]
        e = lambda i: a(f"v_exp_f32 v{cur+i}, v{cur+i}")
        c = lambda m: a(f"v_cvt_pk_bf16_f32 v{P+m}, v{cur+2*m}, v{cur+2*m+1}")
        if cfg.ustamps and u in USTAMPS:
            a(f"s_memtime s[{52+2*USTAMPS.index(u)}:{53+2*USTAMPS.index(u)}]")
        for fn in act.get((u >> 3, u & 7), []): fn()
        if cfg.stamps and cfg.at_detail and u % 8 == 0 and u: stamp(a, cfg, 15 + u // 8)
        e(0); e(1)
        if u > 0:
            pn, px = (u - 1) >> 1, (u - 1) & 1
            mfma32(a, A_O[px], A_VF[pn % 2] + 4, P + 4, A_O[px])
        e(2); c(0); e(3); e(4); c(1)
        if u < 63:
            n1, x1 = (u + 1) >> 1, (u + 1) & 1
            if x == 1: a("s_waitcnt lgkmcnt(0)")
            mfma32(a, nxt, A_KF[n1 % 2], Q[x1], A_C[x1])
        if x == 0 and n + 1 < 32:
            hi, off = kv_off(n + 1)
            kb, vb = A_KF[(n + 1) % 2], A_VF[(n + 1) % 2]
            a(f"ds_read_b128 v[{kb}:{kb+3}], v{A_VK[hi]} offset:{off}")
            a(f"s_mov_b64 exec, s[{S_VMASK}:{S_VMASK+1}]")
            a(f"ds_read_b128 v[{vb}:{vb+3}], v{A_VV[hi]} offset:{off}")
            a(f"ds_read_b128 v[{vb+4}:{vb+7}], v{A_VV[hi]} offset:{off+512}")
            a("s_mov_b64 exec, -1")
        e(5); e(6); c(2); e(7); e(8); c(3); e(9); e(10)
        mfma32(a, A_O[x], A_VF[n % 2], P, A_O[x])
        c(4); e(11); e(12); c(5); e(13); e(14); e(15); c(6); c(7)
    a("s_nop 1")
    mfma32(a, A_O[1], A_VF[1] + 4, P + 4, A_O[1])
    stamp(a, cfg, 8)
    if cfg.ustamps:
        a("s_waitcnt lgkmcnt(0)")
        for i_ in range(len(USTAMPS)): a(f"v_writelane_b32 v255, s{52+2*i_}, {16+i_}")
    a.label("L_at_chk")
    a("s_nop 7")
    a("s_nop 3")
    for x in range(2):
        a(f"v_mov_b32 v{2+x}, v{A_O[x]+8}")
        a(f"v_mov_b32 v{4+x}, v{A_O[x]+8}")
    a("s_nop 1")
    a("v_permlane32_swap_b32 v2, v4")
    a("v_permlane32_swap_b32 v3, v5")
    a("v_mov_b32 v4, 0x5d800000")
    a("v_max_f32 v5, v2, v3")
    a("v_cmp_nle_f32 vcc, v2, v4")
    a(f"s_mov_b64 s[{T+4}:{T+5}], vcc")
    a("v_cmp_nle_f32 vcc, v3, v4")
    a(f"s_or_b64 vcc, vcc, s[{T+4}:{T+5}]")
    a(f"s_cmp_lg_u32 s{S_RERUN}, 0")
    a("s_cbranch_scc1 L_at_ok")
    a("s_cbranch_vccz L_at_ok")
    a(f"s_mov_b32 s{S_RERUN}, 1")
    a("v_mov_b32 v2, 0xff800000")
    a("v_mov_b32 v3, 0xff800000")
    for ps in range(2):
        a(f"v_mov_b32 v6, v{A_VK[0]}")
        a(f"v_mov_b32 v7, v{A_VV[0]}")
        a(f"s_mov_b32 s{S_BLK}, 0")
        a.label(f"L_at_re{ps}")
        for i in range(4):
            a(f"ds_read_b128 v[{A_KF[0]}:{A_KF[0]+3}], v6 offset:{i*1024}")
            if ps == 1:
                a(f"s_mov_b64 exec, s[{S_VMASK}:{S_VMASK+1}]")
                a(f"ds_read_b128 v[{A_VF[0]}:{A_VF[0]+3}], v7 offset:{i*1024}")
                a(f"ds_read_b128 v[{A_VF[0]+4}:{A_VF[0]+7}], v7 offset:{i*1024+512}")
                a("s_mov_b64 exec, -1")
            a("s_waitcnt lgkmcnt(0)")
            for x in range(2):
                mfma32(a, A_S[x], A_KF[0], Q[x], "0" if ps == 0 else A_C[x])
            a("s_nop 7")
            a("s_nop 3")
            for x in range(2):
                if ps == 0:
                    for k in range(0, 16, 2):
                        a(f"v_max3_f32 v{2+x}, v{2+x}, v{A_S[x]+k}, v{A_S[x]+k+1}")
                else:
                    for k in range(16): a(f"v_exp_f32 v{A_S[x]+k}, v{A_S[x]+k}")
                    a("s_nop 0")
                    for m in range(8): a(f"v_cvt_pk_bf16_f32 v{P+m}, v{A_S[x]+2*m}, v{A_S[x]+2*m+1}")
                    a("s_nop 1")
                    mfma32(a, A_O[x], A_VF[0], P, A_O[x])
                    mfma32(a, A_O[x], A_VF[0] + 4, P + 4, A_O[x])
        a("v_add_u32 v6, 16384, v6")
        a("v_add_u32 v7, 16384, v7")
        a(f"s_add_u32 s{S_BLK}, s{S_BLK}, 1")
        a(f"s_cmp_lt_u32 s{S_BLK}, 8")
        a(f"s_cbranch_scc1 L_at_re{ps}")
        if ps == 0:
            halfmax(a, 2, 4)
            halfmax(a, 3, 4)
            for x in range(2):
                a(f"v_sub_f32 v{A_C[x]}, 0, v{2+x}")
                for r in range(1, 16): a(f"v_mov_b32 v{A_C[x]+r}, v{A_C[x]}")
                for r in range(16): a(f"v_mov_b32 v{A_O[x]+r}, 0")
    a("s_branch L_at_chk")
    a.label("L_at_ok")
    a("s_barrier")
    a(f"s_mul_i32 s{T+4}, s{S_W}, 3072")
    a(f"v_add_u32 v8, s{T+4}, v{V_L16}")
    a(f"s_xor_b32 s{T+5}, s{S_W}, 1")
    a(f"s_mul_i32 s{T+5}, s{T+5}, 3072")
    a(f"v_add_u32 v9, s{T+5}, v{V_L16}")
    a(f"s_bitcmp1_b32 s{S_W}, 0")
    a("s_cbranch_scc1 L_at_m1")
    for kh in range(2):
        if kh == 1: a.label("L_at_m1")
        keep, send = kh, 1 - kh
        a(f"v_mov_b32 v4, v{2+send}")
        a(f"v_mov_b32 v5, v{A_C[send]}")
        a(f"ds_write_b128 v8, v[{A_O[send]}:{A_O[send]+3}]")
        a(f"ds_write_b128 v8, v[{A_O[send]+4}:{A_O[send]+7}] offset:1024")
        a(f"ds_write_b64 v8, v[4:5] offset:2048")
        for r in range(8): a(f"v_mov_b32 v{16+r}, v{A_O[keep]+r}")
        a(f"v_mov_b32 v24, v{2+keep}")
        a(f"v_mov_b32 v25, v{A_C[keep]}")
        if kh == 0: a("s_branch L_at_m2")
    a.label("L_at_m2")
    a("s_waitcnt lgkmcnt(0)")
    a("s_barrier")
    a("ds_read_b128 v[32:35], v9")
    a("ds_read_b128 v[36:39], v9 offset:1024")
    a("ds_read_b64 v[40:41], v9 offset:2048")
    a("s_waitcnt lgkmcnt(0)")
    a("v_min_f32 v26, v25, v41")
    a("v_sub_f32 v27, v26, v25")
    a("v_sub_f32 v28, v26, v41")
    a("v_exp_f32 v27, v27")
    a("v_exp_f32 v28, v28")
    a("s_nop 0")
    a("v_mul_f32 v24, v24, v27")
    a("v_fmac_f32 v24, v40, v28")
    a("v_rcp_f32 v24, v24")
    a("s_nop 0")
    a("v_mul_f32 v27, v27, v24")
    a("v_mul_f32 v28, v28, v24")
    for r in range(8): a(f"v_mul_f32 v{16+r}, v{16+r}, v27")
    for r in range(8): a(f"v_fmac_f32 v{16+r}, v{32+r}, v28")
    for m in range(4):
        a(f"v_cvt_pk_bf16_f32 v{4+m}, v{16+2*m}, v{17+2*m}")

def flag_store(a, val_s, off_s, sc):
    a(f"v_mov_b32 v2, s{val_s}")
    a("v_mov_b32 v3, 0")
    a("s_mov_b64 exec, 1")
    a(f"buffer_store_dword v2, v3, s[{S_WS}:{S_WS+3}], s{off_s} offen {sc}")
    a("s_mov_b64 exec, -1")

def kv_dma(a, blk):
    T = S_A
    a(f"s_add_u32 s{T+4}, s{S_J}, {blk}")
    a(f"s_and_b32 s{T+4}, s{T+4}, 7")
    a(f"s_lshl_b32 s{T+4}, s{T+4}, 14")
    a(f"s_add_u32 s{T+4}, s{T+4}, s{T}")
    a(f"s_add_u32 m0, s{T+2}, {blk*16384}")
    a(f"s_add_u32 s{T+6}, s{T+4}, 8192")
    a(f"buffer_load_dwordx4 v{V_L16}, s[{S_WS}:{S_WS+3}], s{T+4} offen sc1 lds")
    a(f"s_add_u32 m0, m0, 8192")
    a("s_nop 0")
    a(f"buffer_load_dwordx4 v{V_L16}, s[{S_WS}:{S_WS+3}], s{T+6} offen sc1 lds")

V_W2 = 152
W2_STAGE = 131072
HOOKS = {}

def w2_setup(a):
    T = S_A; L = V_LANE
    a(f"s_and_b32 s{T+10}, s{S_W}, 3")
    a(f"s_mul_i32 s{T+10}, s{T+10}, {22*16*1024}")
    a(f"s_and_b32 s{T+11}, s{S_H}, 7")
    a(f"s_lshl_b32 s{T+11}, s{T+11}, 7")
    a(f"s_add_u32 s{T+10}, s{T+10}, s{T+11}")
    a(f"s_lshr_b32 s{T+11}, s{S_W}, 2")
    a(f"s_lshl_b32 s{T+11}, s{T+11}, 6")
    a(f"s_add_u32 s{T+10}, s{T+10}, s{T+11}")
    a(f"s_lshl_b32 s{T+11}, s{S_W}, 12")
    a(f"s_add_u32 s{T+11}, s{T+11}, {W2_STAGE}")
    a(f"v_lshrrev_b32 v149, 2, v{L}")
    a(f"v_lshlrev_b32 v148, 10, v149")
    a(f"v_and_b32 v149, 3, v{L}")
    a(f"v_lshl_add_u32 v148, v149, 4, v148")
    a(f"v_lshrrev_b32 v149, 5, v{L}")
    a(f"v_bfe_u32 v151, v{L}, 2, 2")
    a(f"v_lshl_add_u32 v149, v149, 2, v151")
    a(f"v_lshlrev_b32 v149, 6, v149")
    a(f"v_bfe_u32 v151, v{L}, 4, 1")
    a(f"v_lshl_add_u32 v149, v151, 5, v149")
    a(f"v_and_b32 v151, 3, v{L}")
    a(f"v_lshl_add_u32 v149, v151, 3, v149")
    a(f"v_add_u32 v149, s{T+11}, v149")


def w2f_produce_a(a):
    T = S_A; L = V_LANE
    a(f"s_lshl_b32 s{T+10}, s{S_W}, 8")
    a(f"s_add_u32 s{T+10}, s{T+10}, s2")
    a(f"s_lshr_b32 s{T+4}, s{T+10}, 4")
    a(f"s_lshl_b32 s{T+4}, s{T+4}, 14")
    a(f"s_and_b32 s{T+5}, s{T+10}, 15")
    a(f"s_lshl_b32 s{T+5}, s{T+5}, 6")
    a(f"s_add_u32 s{T+4}, s{T+4}, s{T+5}")
    a(f"s_lshl_b32 s{T+11}, s{S_W}, 12")
    a(f"s_add_u32 s{T+11}, s{T+11}, {W2_STAGE}")
    a(f"v_lshrrev_b32 v149, 2, v{L}")
    a(f"v_lshlrev_b32 v148, 10, v149")
    a(f"v_and_b32 v149, 3, v{L}")
    a(f"v_lshl_add_u32 v148, v149, 4, v148")
    a(f"s_mov_b32 m0, s{T+11}")
    a(f"v_lshrrev_b32 v149, 5, v{L}")
    a(f"buffer_load_dwordx4 v148, s[{S_W2}:{S_W2+3}], s{T+4} offen lds")
    a(f"v_bfe_u32 v151, v{L}, 2, 2")
    a(f"v_lshl_add_u32 v149, v149, 2, v151")
    a(f"v_lshlrev_b32 v149, 6, v149")
    a(f"v_bfe_u32 v151, v{L}, 4, 1")
    a(f"v_lshl_add_u32 v149, v151, 5, v149")
    a(f"v_and_b32 v151, 3, v{L}")
    a(f"v_lshl_add_u32 v149, v151, 3, v149")
    a(f"v_add_u32 v149, s{T+11}, v149")

def w2f_produce_b(a, younger):
    a(f"s_waitcnt vmcnt({younger})")
    a(f"ds_read_b64_tr_b16 v[{V_W2}:{V_W2+1}], v149")
    a(f"ds_read_b64_tr_b16 v[{V_W2+2}:{V_W2+3}], v149 offset:512")

def w2f_produce_c(a):
    T = S_A
    a(f"s_lshl_b32 s{T+4}, s{T+10}, 10")
    a(f"s_add_u32 s{T+4}, s{T+4}, {WS_W2F}")
    a(f"buffer_store_dwordx4 v[{V_W2}:{V_W2+3}], v{V_L16}, s[{S_WS}:{S_WS+3}], s{T+4} offen sc1")

def w2f_produce_d(a, younger):
    T = S_A
    a(f"s_waitcnt vmcnt({younger})")
    a(f"s_lshl_b32 s{T+4}, s{T+10}, 2")
    a(f"s_add_u32 s{T+4}, s{T+4}, {WS_W2FLAG}")
    flag_store(a, S_TAG, T+4, "sc1")

def w2f_poll(a):
    T = S_A; L = V_LANE
    a(f"s_and_b32 s{T+4}, s{S_W}, 3")
    a(f"s_mul_i32 s{T+4}, s{T+4}, {22*16}")
    a(f"s_and_b32 s{T+5}, s{S_H}, 7")
    a(f"s_lshl_b32 s{T+5}, s{T+5}, 1")
    a(f"s_add_u32 s{T+4}, s{T+4}, s{T+5}")
    a(f"s_lshr_b32 s{T+5}, s{S_W}, 2")
    a(f"s_add_u32 s{T+4}, s{T+4}, s{T+5}")
    a(f"s_lshl_b32 s{T+10}, s{T+4}, 10")
    a(f"s_add_u32 s{T+10}, s{T+10}, {WS_W2F}")
    a(f"s_lshl_b32 s{T+4}, s{T+4}, 2")
    a(f"s_add_u32 s{T+4}, s{T+4}, {WS_W2FLAG}")
    a(f"s_and_b32 s{T+5}, s{S_W}, 3")
    a(f"s_cmp_eq_u32 s{T+5}, 3")
    a(f"s_cselect_b32 s{T+5}, 19, 21")
    a(f"v_min_u32 v2, s{T+5}, v{L}")
    a("v_lshlrev_b32 v2, 6, v2")
    poll(a, 2, 3, T+4, "w2f")
    a(f"s_and_b32 s{T+5}, s{S_W}, 3")
    a(f"s_cmp_eq_u32 s{T+5}, 3")
    a(f"s_cselect_b32 s{T+11}, 0x40000000, 0")

def w2f_load(a, i0, n):
    T = S_A
    for i in range(i0, i0 + n):
        a(f"s_add_u32 s{T+4}, s{T+10}, {i*16384}")
        if i >= 20: a(f"s_add_u32 s{T+4}, s{T+4}, s{T+11}")
        a(f"buffer_load_dwordx4 v[{V_W2+4*i}:{V_W2+4*i+3}], v{V_L16}, s[{S_WS}:{S_WS+3}], s{T+4} offen sc1")

NOW2 = False
def w2_issue(a, r):
    T = S_A
    n = 4 if r < 5 else 2
    if NOW2: return
    for i in range(n):
        a(f"s_add_u32 m0, s{T+11}, {i*1024}")
        a(f"s_add_u32 s{T+4}, s{T+10}, {(r*4+i)*16*1024}")
        a(f"buffer_load_dwordx4 v148, s[{S_W2}:{S_W2+3}], s{T+4} offen lds")

def w2_read(a, r, younger=0):
    n = 4 if r < 5 else 2
    if NOW2: return
    a(f"s_waitcnt vmcnt({younger})")
    for i in range(n):
        d = V_W2 + 4*(r*4+i)
        a(f"ds_read_b64_tr_b16 v[{d}:{d+1}], v149 offset:{i*1024}")
        a(f"ds_read_b64_tr_b16 v[{d+2}:{d+3}], v149 offset:{i*1024+512}")
    a("s_waitcnt lgkmcnt(0)")

def warm(a, srd, piece_bytes, nlanes, vdst):
    T = S_A
    a(f"v_lshlrev_b32 v2, 7, v{V_LANE}")
    a(f"s_lshl_b32 s{T+4}, s{S_H}, 3")
    a(f"s_add_u32 s{T+4}, s{T+4}, s{S_W}")
    a(f"s_mul_i32 s{T+5}, s{T+4}, {piece_bytes}")
    a(f"s_and_b32 s{T+5}, s{T+5}, 0xffffff80")
    if nlanes > 32: a(f"s_mov_b32 exec_hi, {hex((1 << (nlanes-32)) - 1)}")
    else: a(f"s_mov_b64 exec, {hex((1 << nlanes) - 1)}")
    a(f"buffer_load_dword v{vdst}, v2, s[{srd}:{srd+3}], s{T+5} offen")
    a("s_mov_b64 exec, -1")

V_XR = 12
V_B1R = 11
def small_loads(a):
    T = S_A; L = V_LANE
    a(f"s_and_b32 s{T+4}, s{S_H}, 7")
    a(f"s_lshl_b32 s{T+4}, s{T+4}, 6")
    a(f"s_lshr_b32 s{T+5}, s{S_W}, 2")
    a(f"s_lshl_b32 s{T+5}, s{T+5}, 5")
    a(f"s_add_u32 s{T+4}, s{T+4}, s{T+5}")
    a(f"s_and_b32 s{T+5}, s{S_W}, 1")
    a(f"s_lshl_b32 s{T+5}, s{T+5}, 4")
    a(f"s_add_u32 s{T+4}, s{T+4}, s{T+5}")
    a(f"s_lshl_b32 s{T+5}, s{S_J}, 8")
    a(f"s_lshr_b32 s{T+6}, s{S_H}, 3")
    a(f"s_lshl_b32 s{T+6}, s{T+6}, 6")
    a(f"s_add_u32 s{T+5}, s{T+5}, s{T+6}")
    a(f"s_bfe_u32 s{T+6}, s{S_W}, 0x10001")
    a(f"s_lshl_b32 s{T+6}, s{T+6}, 5")
    a(f"s_add_u32 s{T+5}, s{T+5}, s{T+6}")
    a(f"s_lshl_b32 s{T+5}, s{T+5}, 10")
    a(f"s_lshl_b32 s{T+4}, s{T+4}, 1")
    a(f"s_add_u32 s{T+5}, s{T+5}, s{T+4}")
    a(f"v_and_b32 v2, 31, v{L}")
    a(f"v_lshlrev_b32 v2, 10, v2")
    a(f"v_lshrrev_b32 v3, 5, v{L}")
    a(f"v_lshlrev_b32 v3, 3, v3")
    a(f"v_add_u32 v2, v2, v3")
    a(f"buffer_load_dwordx2 v[{V_XR}:{V_XR+1}], v2, s[{S_X}:{S_X+3}], s{T+5} offen")
    a(f"buffer_load_dwordx2 v[{V_XR+2}:{V_XR+3}], v2, s[{S_X}:{S_X+3}], s{T+5} offen offset:16")
    a(f"buffer_load_dwordx2 v[{V_B2}:{V_B2+1}], v3, s[{S_B2}:{S_B2+3}], s{T+4} offen")
    a(f"buffer_load_dwordx2 v[{V_B2+2}:{V_B2+3}], v3, s[{S_B2}:{S_B2+3}], s{T+4} offen offset:16")
    a(f"s_and_b32 s{T+4}, s{S_H}, 15")
    a(f"s_mul_i32 s{T+4}, s{T+4}, {8*21846}")
    a(f"s_lshr_b32 s{T+4}, s{T+4}, 16")
    a(f"s_lshl_b32 s{T+4}, s{T+4}, 6")
    a(f"v_lshlrev_b32 v2, 2, v{L}")
    a(f"buffer_load_dword v{V_B1R}, v2, s[{S_B1}:{S_B1+3}], s{T+4} offen")

NOPT = False
def pretouch_tail(a):
    if NOPT:
        a(f"s_mov_b32 s{S_A+5}, 0x40000000"); a(f"buffer_load_dword v150, v{V_L16}, s[{S_W1}:{S_W1+3}], s{S_A+5} offen"); return
    _pretouch_tail(a)
def _pretouch_tail(a):
    T = S_A; L = V_LANE
    a(f"s_lshl_b32 s{T+4}, s{S_H}, 3")
    a(f"s_add_u32 s{T+4}, s{T+4}, s{S_W}")
    a(f"s_lshl_b32 s{T+5}, s{S_J}, 18")
    a(f"s_lshl_b32 s{T+6}, s{T+4}, 10")
    a(f"s_add_u32 s{T+5}, s{T+5}, s{T+6}")
    a(f"v_and_b32 v2, 7, v{L}")
    a(f"v_lshlrev_b32 v2, 7, v2")
    a(f"v_add_u32 v2, s{T+5}, v2")
    a(f"v_add_u32 v3, {WS_HF}, v2")
    a(f"v_add_u32 v2, {WS_OF}, v2")
    a(f"v_cmp_gt_u32 vcc, 8, v{L}")
    a("s_nop 1")
    a(f"v_cndmask_b32 v2, v3, v2, vcc")
    a(f"s_lshl_b32 s{T+5}, s{S_J}, 16")
    a(f"s_lshl_b32 s{T+6}, s{T+4}, 8")
    a(f"s_add_u32 s{T+5}, s{T+5}, s{T+6}")
    a(f"s_add_u32 s{T+5}, s{T+5}, {WS_HST - 16*128}")
    a(f"v_lshlrev_b32 v3, 7, v{L}")
    a(f"v_add_u32 v4, s{T+5}, v3")
    a(f"v_cmp_gt_u32 vcc, 16, v{L}")
    a(f"s_mul_i32 s{T+5}, s{S_J}, {8*86*1024}")
    a("s_nop 0")
    a(f"v_cndmask_b32 v2, v4, v2, vcc")
    a(f"s_mul_i32 s{T+6}, s{T+4}, 2752")
    a(f"s_and_b32 s{T+6}, s{T+6}, 0xffffff80")
    a(f"s_add_u32 s{T+5}, s{T+5}, s{T+6}")
    a(f"s_add_u32 s{T+5}, s{T+5}, {WS_GF - 18*128}")
    a(f"v_add_u32 v4, s{T+5}, v3")
    a(f"v_cmp_gt_u32 vcc, 18, v{L}")
    a("s_nop 1")
    a(f"v_cndmask_b32 v2, v4, v2, vcc")
    a("v_mov_b32 v3, 0") if False else None
    a("s_mov_b32 exec_hi, 0x1ff")
    a(f"buffer_load_dword v150, v2, s[{S_WS}:{S_WS+3}], 0 offen")
    a("s_mov_b64 exec, -1")

NOWARM = False
def warm_dma(a, mat, n):
    if NOWARM:
        a(f"s_mov_b32 s{S_A+5}, 0x40000000"); a(f"buffer_load_dword v150, v{V_L16}, s[{S_W1}:{S_W1+3}], s{S_A+5} offen"); return
    _warm_dma(a, mat, n)
def _warm_dma(a, mat, n):
    T = S_A
    a(f"s_lshl_b32 s{T+4}, s{S_H}, 3")
    a(f"s_add_u32 s{T+4}, s{T+4}, s{S_W}")
    if mat in ("w1", "w2"):
        srd_ = S_W1 if mat == "w1" else S_W2
        a(f"s_mul_i32 s{T+5}, s{T+4}, 5504")
        a(f"s_and_b32 s{T+5}, s{T+5}, 0xffffff80")
        a(f"s_add_u32 s{T+5}, s{T+5}, {n*1024}")
    else:
        srd_ = S_WO
        a(f"s_lshl_b32 s{T+5}, s{T+4}, 11")
        a(f"s_add_u32 s{T+5}, s{T+5}, {n*1024}")
    a(f"buffer_load_dwordx4 v[6:9], v{V_L16}, s[{srd_}:{srd_+3}], s{T+5} offen")

def make_act(a, cfg):
    T = S_A
    act = {}
    def add(b, t, fn): act.setdefault((b, t), []).append(fn)
    def poll_kv():
        stamp(a, cfg, 5)
        a(f"s_and_b32 s{T+4}, s{S_H}, 28")
        a(f"s_lshr_b32 s{T+5}, s{S_W}, 1")
        a(f"s_add_u32 s{T+4}, s{T+4}, s{T+5}")
        a(f"s_lshl_b32 s{T+4}, s{T+4}, 8")
        a(f"s_add_u32 s{T+3}, s{T+4}, {WS_KVFLAG}")
        a(f"s_and_b32 s{T+4}, s{S_W}, 1")
        a(f"s_lshl_b32 s{T+5}, s{T+4}, 2")
        a(f"s_and_b32 s{T+6}, s{S_H}, 3")
        a(f"s_add_u32 s{T+6}, s{T+6}, s{T+5}")
        a(f"s_and_b32 s{T+7}, s{S_H}, 2")
        a(f"s_add_u32 s{T+7}, s{T+7}, s{T+5}")
        a(f"s_add_u32 s{T+7}, s{T+7}, s{T+4}")
        a(f"s_lshl_b32 s{T+6}, s{T+6}, 5")
        a(f"s_lshl_b32 s{T+7}, s{T+7}, 5")
        a(f"v_and_b32 v2, 7, v{V_LANE}")
        a("v_lshlrev_b32 v2, 2, v2")
        a(f"v_mov_b32 v3, s{T+7}")
        a(f"v_mov_b32 v4, s{T+6}")
        a(f"v_cmp_gt_u32 vcc, 8, v{V_LANE}")
        a("s_nop 1")
        a("v_cndmask_b32 v3, v3, v4, vcc")
        a("v_add_u32 v2, v2, v3")
        poll(a, 2, 3, T+3, "kv")
        stamp(a, cfg, 6)
    def sync(n, st):
        def f():
            a(f"s_waitcnt vmcnt({n})"); a("s_barrier"); stamp(a, cfg, st)
        return f
    sched = []
    def I(u, name, nvm, fn): sched.append((u, 'i', name, nvm, fn))
    def Wt(u, target, fn): sched.append((u, 'w', target, 0, fn))
    def syncw(st):
        def f(n):
            a(f"s_waitcnt vmcnt({n})"); a("s_barrier"); stamp(a, cfg, st)
        return f
    def rd(r):
        def f(younger):
            n = 4 if r < 5 else 2
            a(f"s_waitcnt vmcnt({younger})")
            for i in range(n):
                d = V_W2 + 4*(r*4+i)
                a(f"ds_read_b64_tr_b16 v[{d}:{d+1}], v149 offset:{i*1024}")
                a(f"ds_read_b64_tr_b16 v[{d+2}:{d+3}], v149 offset:{i*1024+512}")
        return f
    wseq = [("w1", i) for i in range(6)] + [("wo", i) for i in range(2)]
    I(1, 'poll', 0, poll_kv)
    kvu = {1: 1, 2: 2, 3: 4, 4: 7, 5: 10, 6: 13, 7: 16}
    for b_, u_ in kvu.items(): I(u_, f'kv{b_}', 2, (lambda bb: (lambda: kv_dma(a, bb)))(b_))
    Wt(6, 'kv1', syncw(10)); Wt(14, 'kv2', syncw(11)); Wt(22, 'kv3', syncw(9)); Wt(30, 'kv7', syncw(12))
    I(17, 'small', 5, lambda: small_loads(a))
    if 'W2F' in cfg.exp:
        I(20, 'p_a', 1, lambda: w2f_produce_a(a))
        Wt(28, 'p_a', lambda y: w2f_produce_b(a, y))
        I(31, 'p_c', 1, lambda: w2f_produce_c(a))
        Wt(39, 'p_c', lambda y: w2f_produce_d(a, y))
        sched.append((39, 'i', 'p_flag', 1, lambda: None))
        for i_, u_ in enumerate([32, 33, 34, 35, 36, 37, 40, 41]): I(u_, f'wm{i_}', 1, (lambda ii: (lambda: warm_dma(a, *wseq[ii])))(i_))
        I(42, 'pt', 1, lambda: pretouch_tail(a))
        I(50, 'w2poll', 0, lambda: w2f_poll(a))
        for k_, u_ in enumerate([51, 52, 53, 54, 55, 56, 57, 58, 59, 60, 61]): I(u_, f'w2l{k_}', 2, (lambda kk: (lambda: w2f_load(a, 2*kk, 2)))(k_))
    else:
        if 'S3' in cfg.exp:
            iss = [24, 32, 40, 48, 54, 60]; rdu = [30, 38, 46, 52, 58, 63]
            wmu = [33, 34, 35, 41, 42, 43, 49, 50]; ptu = 51
        else:
            iss = [24, 34, 42, 48, 54, 60]; rdu = [32, 40, 46, 52, 58, 63]
            wmu = [35, 36, 37, 43, 44, 45, 49, 50]; ptu = 51
        I(iss[0], 'setup', 0, lambda: w2_setup(a))
        for r in range(6):
            I(iss[r], f'R{r}', 4 if r < 5 else 2, (lambda rr: (lambda: w2_issue(a, rr)))(r))
            Wt(rdu[r], f'R{r}', rd(r))
        for i_, u_ in enumerate(wmu): I(u_, f'wm{i_}', 1, (lambda ii: (lambda: warm_dma(a, *wseq[ii])))(i_))
        I(ptu, 'pt', 1, lambda: pretouch_tail(a))
    sched.sort(key=lambda e: (e[0], 0 if e[1] == 'w' else 1))
    issued = []
    for e in sched:
        u_, kind, name, nvm, fn = e
        if kind == 'i':
            issued += [name] * nvm
            add(u_ >> 3, u_ & 7, fn)
        else:
            last = max(i for i, nm in enumerate(issued) if nm == name)
            add(u_ >> 3, u_ & 7, (lambda ff, yy: (lambda: ff(yy)))(fn, len(issued) - 1 - last))
    def wo0():
        a(f"s_lshl_b32 s{T+5}, s{S_W}, 16")
        a(f"s_and_b32 s{T+6}, s{S_H}, 7")
        a(f"s_lshl_b32 s{T+6}, s{T+6}, 7")
        a(f"s_add_u32 s{T+5}, s{T+5}, s{T+6}")
        a(f"s_lshl_b32 s{T+6}, s{S_W}, 12")
        for i in range(4):
            a(f"s_add_u32 m0, s{T+6}, {131072 + i*1024}")
            a(f"s_add_u32 s{T+7}, s{T+5}, {i*16*1024}")
            a(f"buffer_load_dwordx4 v148, s[{S_WO}:{S_WO+3}], s{T+7} offen lds")
    return act

def attn_out(a, cfg, sc):
    T = S_A
    a(f"s_lshl_b32 s{T+4}, s{S_J}, 3")
    a(f"s_add_u32 s{T+4}, s{T+4}, s{S_W}")
    a(f"s_lshl_b32 s{T+4}, s{T+4}, 5")
    a(f"s_add_u32 s{T+4}, s{T+4}, s{S_H}")
    a(f"s_lshl_b32 s{T+4}, s{T+4}, 10")
    a(f"s_add_u32 s{T+4}, s{T+4}, {WS_OF}")
    a(f"buffer_store_dwordx4 v[4:7], v{V_L16}, s[{S_WS}:{S_WS+3}], s{T+4} offen {sc}")

def finish(a, cfg):
    T = S_A
    a(f"s_or_b32 s{T+4}, s2, s{S_W}")
    a(f"s_cmp_lg_u32 s{T+4}, 0")
    a("s_cbranch_scc1 L_fin")
    a(f"s_mov_b32 s{T+4}, {WS_EPOCH}")
    flag_store(a, S_TAG, T+4, "sc1")
    a.label("L_fin")
    stamp_flush(a, cfg)
    a("s_waitcnt vmcnt(0)")
    a.label("L_end")
    a("s_endpgm")

def build(cfg):
    global NOW2
    NOW2 = 'now2' in cfg.exp
    global NOWARM, NOPT
    NOWARM = 'nowarm' in cfg.exp
    NOPT = 'nopt' in cfg.exp
    a = Asm()
    prologue(a, cfg)
    if cfg.skip_p1:
        a("s_waitcnt lgkmcnt(0)")
        srd(a, S_WS, S_KA+20, S_KA+21, WS_SIZE)
        k = S_KA
        srd(a, S_X, k, k+1, 2097152); srd(a, S_WO, k+4, k+5, 524288); srd(a, S_W1, k+8, k+9, 1409024); srd(a, S_B1, k+10, k+11, 2752); srd(a, S_W2, k+12, k+13, 1409024); srd(a, S_B2, k+14, k+15, 1024)
        a(f"s_mov_b32 s{S_RERUN}, 1")
        for r in range(8): a(f"v_mov_b32 v{V_Q+r}, 0x3c003c00")
        if 'rnd' in cfg.exp:
            a(f"s_mov_b32 s{S_A+4}, 0x9e3779b1")
            a(f"v_mul_lo_u32 v2, v0, s{S_A+4}")
            def rnd(dst):
                a(f"v_mul_lo_u32 v2, v2, s{S_A+4}")
                a("v_add_u32 v2, 0x7f4a7c15, v2")
                a(f"v_and_b32 v{dst}, 0xbf7fbf7f, v2")
                a(f"v_or_b32 v{dst}, 0x3e003e00, v{dst}")
            for r in range(8): rnd(V_Q + r)
            a(f"v_lshlrev_b32 v3, 4, v0")
            for i in range(16):
                for r in range(4): rnd(4 + r)
                a(f"ds_write_b128 v3, v[4:7]")
                a(f"v_add_u32 v3, 8192, v3")
            a("s_waitcnt lgkmcnt(0)")
        a("s_barrier")
        stamp(a, cfg, 4)
    else:
        phase1(a, cfg)
    if cfg.stop_after != "p1" and not cfg.v3:
        attention(a, cfg)
        if cfg.stop_after == "attn":
            attn_out(a, cfg, "sc1")
            stamp(a, cfg, 9)
        else:
            import tail
            tail.tail(a, cfg)
    finish(a, cfg)
    errs = check_hazards(a.lines) + check_waits(a.lines)
    if cfg.v3:
        errs += check_waits(a.lines, take=('L3_hw_start',)) + check_waits(a.lines, take=('L3_hw_start', 'L3_o_np', 'L3_o_w1b', 'L3_o_w1d', 'L3_h_cs', 'L3_g_np', 'L3_nf_o', 'L3_f_k1', 'L_p1_nonowner', 'L_p1_st_n'))
        errs = sorted(set(errs))
    errs = [e for e in errs if e.count("buffer_load_dwordx4 v[6:9]") < 2 and e.count("buffer_load_dwordx4 v[40:43]") < 2 and e.count("buffer_load_dwordx4 v[8:11]") < 2]
    for e in errs[:8]: print("!!", e, file=sys.stderr)
    hdr = open("cdna_kernels/" + NAME + ".s.ref").read().split("; Override")[0]
    out = hdr
    out += f"; @launch kernel={KNAME} grid=(256,1,1) block=(512,1,1) lds={LDS_SIZE}\n"
    out += '.amdgcn_target "amdgcn-amd-amdhsa--gfx950"\n.text\n'
    out += f".globl {KNAME}\n.p2align 8\n.type {KNAME},@function\n{KNAME}:\n"
    out += a.text()
    out += f""".section .rodata,"a"
.p2align 6
.amdhsa_kernel {KNAME}
  .amdhsa_next_free_vgpr 256
  .amdhsa_next_free_sgpr 102
  .amdhsa_accum_offset 256
  .amdhsa_group_segment_fixed_size 0
  .amdhsa_kernarg_size 88
  .amdhsa_user_sgpr_count 2
  .amdhsa_user_sgpr_kernarg_segment_ptr 1
  .amdhsa_system_sgpr_workgroup_id_x 1
.end_amdhsa_kernel
"""
    return out, errs

if __name__ == "__main__":
    cfg = Cfg()
    outp = "cdna_kernels/" + NAME + ".s"
    for arg in sys.argv[1:]:
        if arg == "stamps": cfg.stamps = True
        elif arg.startswith("stop="): cfg.stop_after = arg[5:]
        elif arg.startswith("out="): outp = arg[4:]
        elif arg == "pf": cfg.p1_prefetch = True
        elif arg == "p1d": cfg.p1_detail = True
        elif arg == "slow": cfg.force_slow = True
        elif arg == "f2d": cfg.f2_detail = True
        elif arg == "atd": cfg.at_detail = True
        elif arg == "dbgt": cfg.dbgt = True
        elif arg == "rt": cfg.rt = True
        elif arg == "v3": cfg.v3 = True
        elif arg == "ust": cfg.ustamps = True
        elif arg.startswith("exp="): cfg.exp = cfg.exp + "_" + arg[4:]
        elif arg.startswith("EXP="): cfg.exp = arg[4:]
        elif arg == "skip_p1": cfg.skip_p1 = True
        elif arg.startswith("av="): cfg.attn_variant = int(arg[3:])
        elif arg.startswith("prio="): cfg.prio = int(arg[5:])
    txt, errs = build(cfg)
    open(outp, "w").write(txt)
    print("wrote", outp, len(txt), "bytes;", len(errs), "checker findings")
```

```python
from asmlib import *
import gen as G
from gen import *
from tail import tr_addr192, mode_store, pk_add
import v3
from v3 import W2R, B2R, B1R, XR, WS_HS3

T_W1 = 0
WOB = 98304
OST = 98304
CS1 = 131072 + 16384
S_RB, S_CB, S_RB2, S_T0F = 100, 101, 3, 51

def roles(a):
    T = S_A
    a(f"s_lshr_b32 s{S_RB}, s{S_H}, 3")
    a(f"s_and_b32 s{S_CB}, s{S_H}, 7")
    a(f"s_lshr_b32 s{S_RB2}, s{S_H}, 4")
    a(f"s_and_b32 s{T+4}, s{S_H}, 15")
    a(f"s_mul_i32 s{T+4}, s{T+4}, {8*21846}")
    a(f"s_lshr_b32 s{S_T0F}, s{T+4}, 16")

def flag(a, cfg, bidx, uniq):
    T = S_A
    a(f"s_lshl_b32 s{T+4}, s{S_J}, 7")
    a(f"s_add_u32 s{T+4}, s{T+4}, {WS_TFLAG + bidx*1024}")
    a(f"s_lshl_b32 s{T+5}, s{S_H}, 2")
    a(f"s_add_u32 s{T+5}, s{T+5}, s{T+4}")
    team_flag(a, cfg, T+5, uniq)

def wait_flags(a, bidx, n, team16, uniq):
    T = S_A
    a(f"s_lshl_b32 s{T+4}, s{S_J}, 7")
    a(f"s_add_u32 s{T+4}, s{T+4}, {WS_TFLAG + bidx*1024}")
    if team16:
        a(f"s_lshl_b32 s{T+5}, s{S_RB2}, 6")
        a(f"s_add_u32 s{T+4}, s{T+4}, s{T+5}")
    a(f"v_and_b32 v2, {n-1}, v{V_LANE}")
    a("v_lshlrev_b32 v2, 2, v2")
    poll(a, 2, 3, T+4, uniq)


E_WOB, E_W1B = 0, 65536
V_WOV, V_W1V = 16, 17
WOO, WOM, W1O_, W1M_ = S_A+15, S_A+16, S_A+17, S_A+18
def wo_w1_setup(a):
    L = V_LANE; T = S_A; HWI = T+1
    a(f"v_lshrrev_b32 v{V_WOV}, 3, v{L}")
    a(f"v_lshlrev_b32 v{V_WOV}, 10, v{V_WOV}")
    a(f"v_bfe_u32 v18, v{L}, 4, 1")
    a(f"v_lshlrev_b32 v18, 1, v18")
    a(f"v_bfe_u32 v19, v{L}, 1, 2")
    a(f"v_xor_b32 v19, v19, v18")
    a(f"v_lshl_add_u32 v{V_WOV}, v19, 5, v{V_WOV}")
    a(f"v_and_b32 v19, 1, v{L}")
    a(f"v_lshl_add_u32 v{V_WOV}, v19, 4, v{V_WOV}")
    a(f"s_lshl_b32 s{WOO}, s{HWI}, 17")
    a(f"s_lshl_b32 s{T+6}, s{S_CB}, 7")
    a(f"s_add_u32 s{WOO}, s{WOO}, s{T+6}")
    a(f"s_lshl_b32 s{WOM}, s{HWI}, 14")
    a(f"s_mov_b32 s{T+7}, 0x1556")
    a(f"v_mul_u32_u24 v{V_W1V}, s{T+7}, v{L}")
    a(f"v_lshrrev_b32 v{V_W1V}, 16, v{V_W1V}")
    a(f"v_mul_u32_u24 v18, 12, v{V_W1V}")
    a(f"v_sub_u32 v18, v{L}, v18")
    a(f"v_mul_u32_u24 v{V_W1V}, 2752, v{V_W1V}")
    a(f"v_lshl_add_u32 v{V_W1V}, v18, 4, v{V_W1V}")
    a(f"s_mul_i32 s{W1O_}, s{HWI}, {5*2752}")
    a(f"s_lshl_b32 s{T+6}, s{S_T0F}, 6")
    a(f"s_add_u32 s{W1O_}, s{W1O_}, s{T+6}")
    a(f"s_mul_i32 s{W1M_}, s{HWI}, 960")
def wo_dma(a, i):
    T = S_A
    a(f"s_add_u32 m0, s{WOM}, {E_WOB + i*1024}")
    a(f"s_add_u32 s{T+7}, s{WOO}, {i*8*1024}")
    a(f"buffer_load_dwordx4 v{V_WOV}, s[{S_WO}:{S_WO+3}], s{T+7} offen lds")
def w1_dma(a, k):
    T = S_A; HWI = T+1
    if k < 25:
        a(f"s_add_u32 m0, s{W1M_}, {E_W1B + k*4*960}")
        a(f"s_add_u32 s{T+7}, s{W1O_}, {k*4*5*2752}")
        a(f"buffer_load_dwordx4 v{V_W1V}, s[{S_W1}:{S_W1+3}], s{T+7} offen lds")
    else:
        a(f"s_cmp_eq_u32 s{HWI}, 3")
        a(f"s_mov_b32 s{T+8}, {E_W1B + 25*4*960}")
        a(f"s_mov_b32 s{T+7}, {25*4*5*2752}")
        a(f"s_cselect_b32 s{T+8}, {E_W1B + 24*4*960}, s{T+8}")
        a(f"s_cselect_b32 s{T+7}, {24*4*5*2752}, s{T+7}")
        a(f"s_add_u32 m0, s{W1M_}, s{T+8}")
        a(f"s_add_u32 s{T+7}, s{T+7}, s{W1O_}")
        a(f"s_cmp_eq_u32 s{HWI}, 2")
        a(f"s_cselect_b32 exec_lo, 0xffffff, -1")
        a(f"s_cselect_b32 exec_hi, 0, -1")
        a(f"buffer_load_dwordx4 v{V_W1V}, s[{S_W1}:{S_W1+3}], s{T+7} offen lds")
        a("s_mov_b64 exec, -1")


def w1_late(a, m):
    T = S_A; HWI = T+1
    if m < 11:
        a(f"s_add_u32 m0, s{W1M_}, {E_W1B + (67 + 3*m)*960}")
        a(f"s_add_u32 s{T+7}, s{W1O_}, {(67 + 3*m)*5*2752}")
        a(f"buffer_load_dwordx4 v{V_W1V}, s[{S_W1}:{S_W1+3}], s{T+7} offen lds")
    else:
        a(f"s_cmp_eq_u32 s{HWI}, 3")
        a(f"s_mov_b32 s{T+8}, {E_W1B + (67 + 33)*960}")
        a(f"s_mov_b32 s{T+7}, {(67 + 33)*5*2752}")
        a(f"s_cselect_b32 s{T+8}, {E_W1B + (67 + 30)*960}, s{T+8}")
        a(f"s_cselect_b32 s{T+7}, {(67 + 30)*5*2752}, s{T+7}")
        a(f"s_add_u32 m0, s{W1M_}, s{T+8}")
        a(f"s_add_u32 s{T+7}, s{T+7}, s{W1O_}")
        a(f"s_cmp_eq_u32 s{HWI}, 2")
        a(f"s_cselect_b32 exec_lo, 0xffffff, -1")
        a(f"s_cselect_b32 exec_hi, 0, -1")
        a(f"buffer_load_dwordx4 v{V_W1V}, s[{S_W1}:{S_W1+3}], s{T+7} offen lds")
        a("s_mov_b64 exec, -1")

def tail_cw(a, cfg, bar):
    L = V_LANE; T = S_A
    EARLY = 'early' in cfg.exp
    global WOB, OST, CS1, T_W1
    if EARLY: WOB, OST, CS1, T_W1 = E_WOB, 0, 0, E_W1B
    WS = f"s[{S_WS}:{S_WS+3}]"
    roles(a)
    FT, TT = T+11, T+12
    a(f"s_lshr_b32 s{FT}, s{S_W}, 1")
    a(f"s_and_b32 s{TT}, s{S_W}, 1")
    TILE = T+13
    a(f"s_lshl_b32 s{TILE}, s{S_J}, 3")
    a(f"s_lshl_b32 s{T+5}, s{S_RB}, 1")
    a(f"s_add_u32 s{TILE}, s{TILE}, s{T+5}")
    a(f"s_add_u32 s{TILE}, s{TILE}, s{TT}")
    a(f"v_lshrrev_b32 v9, 5, v{L}")
    a(f"v_bfe_u32 v11, v{L}, 2, 2")
    a(f"v_lshl_add_u32 v9, v9, 2, v11")
    a(f"v_lshlrev_b32 v10, 7, v9")
    a(f"v_bfe_u32 v9, v{L}, 4, 1")
    a(f"s_lshl_b32 s{T+5}, s{FT}, 1")
    a(f"v_or_b32 v9, s{T+5}, v9")
    a(f"v_bfe_u32 v11, v{L}, 3, 1")
    a(f"v_lshlrev_b32 v11, 1, v11")
    a(f"v_xor_b32 v9, v9, v11")
    a(f"v_lshl_add_u32 v10, v9, 5, v10")
    a(f"v_and_b32 v9, 3, v{L}")
    a(f"v_lshl_add_u32 v10, v9, 3, v10")
    a(f"v_add_u32 v10, {WOB}, v10")
    a(f"s_lshl_b32 s{T+5}, s{TT}, 15")
    a(f"s_add_u32 s{T+5}, s{T+5}, {OST}")
    a(f"v_add_u32 v8, s{T+5}, v{V_L16}")
    for n in range(8):
        a(f"v_lshlrev_b32 v{64+2*n}, 16, v{XR+n}")
        a(f"v_and_b32 v{65+2*n}, 0xffff0000, v{XR+n}")
    HO, SO = T+14, T+15
    a(f"s_lshl_b32 s{T+5}, s{S_CB}, 1")
    a(f"s_add_u32 s{T+5}, s{T+5}, s{FT}")
    a(f"s_lshl_b32 s{SO}, s{TILE}, 4")
    a(f"s_add_u32 s{SO}, s{SO}, s{T+5}")
    a(f"s_lshl_b32 s{SO}, s{SO}, 8")
    a(f"s_add_u32 s{SO}, s{SO}, {WS_HS3}")
    a(f"s_lshl_b32 s{HO}, s{TILE}, 5")
    a(f"s_lshl_b32 s{T+5}, s{T+5}, 1")
    a(f"s_add_u32 s{HO}, s{HO}, s{T+5}")
    a(f"s_lshl_b32 s{HO}, s{HO}, 10")
    a(f"s_add_u32 s{HO}, s{HO}, {WS_HF}")
    if not EARLY: bar(a, "c", "TB")
    WOR = 80
    for ks in range(32):
        if ks and ks % 7 == 0: a("s_waitcnt lgkmcnt(0)")
        a(f"ds_read_b64_tr_b16 v[{WOR+4*ks}:{WOR+4*ks+1}], v10 offset:{ks*2048}")
        a(f"ds_read_b64_tr_b16 v[{WOR+4*ks+2}:{WOR+4*ks+3}], v10 offset:{ks*2048+1024}")
    a("s_waitcnt lgkmcnt(0)")
    bar(a, "c", "TC")
    stamp(a, cfg, 16)
    for st in range(4):
        bar(a, "c", f"TD{st}")
        ksl = list(range(8*st, 8*st+8))
        for q in range(3): a(f"ds_read_b128 v[{16+4*q}:{19+4*q}], v8 offset:{ksl[q]*1024}")
        for q, ks in enumerate(ksl):
            if q + 3 < 8: a(f"ds_read_b128 v[{16+4*((q+3)%4)}:{19+4*((q+3)%4)}], v8 offset:{ksl[q+3]*1024}")
            a(f"s_waitcnt lgkmcnt({min(3, 7-q)})")
            b = 16 + 4*(q % 4)
            a(f"v_mfma_f32_32x32x16_bf16 v[48:63], v[{WOR+4*ks}:{WOR+4*ks+3}], v[{b}:{b+3}], " + ("0" if ks == 0 else "v[48:63]"))
    stamp(a, cfg, 17)
    a(f"v_and_b32 v8, 31, v{L}")
    a("v_lshlrev_b32 v8, 3, v8")
    a("s_nop 7")
    a("s_nop 1")
    for n in range(8): pk_add(a, 48+2*n, 48+2*n, 64+2*n)
    for n in range(8): a(f"v_cvt_pk_bf16_f32 v{32+n}, v{48+2*n}, v{49+2*n}")
    mode_store(a, [f"buffer_store_dwordx4 v[32:35], v{V_L16}, {WS}, s{HO} offen {{sc}}",
                   f"buffer_store_dwordx4 v[36:39], v{V_L16}, {WS}, s{HO} offen offset:1024 {{sc}}"], "h3")
    for n in range(8):
        a(f"v_lshlrev_b32 v{48+2*n}, 16, v{32+n}")
        a(f"v_and_b32 v{49+2*n}, 0xffff0000, v{32+n}")
    a("v_pk_mul_f32 v[16:17], v[48:49], v[48:49]")
    pk_add(a, 18, 48, 50)
    for n in range(1, 8):
        a(f"v_pk_fma_f32 v[16:17], v[{48+2*n}:{49+2*n}], v[{48+2*n}:{49+2*n}], v[16:17]")
    for n in range(2, 8): pk_add(a, 18, 18, 48+2*n)
    a("v_add_f32 v40, v18, v19")
    a("v_add_f32 v41, v16, v17")
    a("s_nop 0")
    a("v_mov_b32 v42, v40")
    a("v_mov_b32 v43, v41")
    a("s_nop 1")
    a("v_permlane32_swap_b32 v40, v42")
    a("v_permlane32_swap_b32 v41, v43")
    a("s_nop 0")
    pk_add(a, 40, 40, 42)
    a("s_mov_b64 exec, 0xffffffff")
    mode_store(a, [f"buffer_store_dwordx2 v[40:41], v8, {WS}, s{SO} offen {{sc}}"], "hs3")
    a("s_mov_b64 exec, -1")
    TILE1, HL, SL, GO = T+13, T+17, T+18, T+16
    a(f"s_lshl_b32 s{TILE1}, s{S_J}, 3")
    a(f"s_lshl_b32 s{T+5}, s{S_RB2}, 2")
    a(f"s_add_u32 s{TILE1}, s{TILE1}, s{T+5}")
    a(f"s_add_u32 s{TILE1}, s{TILE1}, s{S_W}")
    a(f"s_lshl_b32 s{HL}, s{TILE1}, 15")
    a(f"s_add_u32 s{HL}, s{HL}, {WS_HF}")
    a(f"s_lshl_b32 s{SL}, s{TILE1}, 12")
    a(f"s_add_u32 s{SL}, s{SL}, {WS_HS3}")
    a(f"s_mul_i32 s{GO}, s{TILE1}, 86")
    a(f"s_lshl_b32 s{T+5}, s{S_T0F}, 1")
    a(f"s_add_u32 s{GO}, s{GO}, s{T+5}")
    a(f"s_lshl_b32 s{GO}, s{GO}, 10")
    a(f"s_add_u32 s{GO}, s{GO}, {WS_GF}")
    a(f"v_and_b32 v12, 31, v{L}")
    a("v_lshlrev_b32 v12, 3, v12")
    a(f"v_lshrrev_b32 v14, 5, v{L}")
    a("v_lshl_add_u32 v12, v14, 11, v12")
    tr_addr192(a, 13, 14, 15)
    if T_W1: a(f"v_add_u32 v13, {T_W1}, v13")
    a(f"v_add_u32 v11, {16*3072}, v13")
    a(f"v_lshrrev_b32 v9, 5, v{L}")
    a("v_lshlrev_b32 v9, 4, v9")
    a(f"v_add_u32 v9, {CS1}, v9")
    a("s_waitcnt vmcnt(0)")
    bar(a, "c", "TG")
    stamp(a, cfg, 18)
    bar(a, "c", "TH")
    stamp(a, cfg, 19)
    HF, ACC, WB = 16, 144, [192, 204, 216]
    STR = 228
    def h_load(ks):
        if ks and ks % 4 == 0: a(f"s_add_u32 s{HL}, s{HL}, 4096")
        a(f"buffer_load_dwordx4 v[{HF+4*ks}:{HF+4*ks+3}], v{V_L16}, {WS}, s{HL} offen offset:{(ks%4)*1024} sc1")
    def w1l(ks):
        b = WB[ks % 3]
        va = 13 if ks < 16 else 11
        L_ = []
        for ft in range(3):
            L_.append(f"ds_read_b64_tr_b16 v[{b+4*ft}:{b+4*ft+1}], v{va} offset:{(ks%16)*3072 + ft*64}")
            L_.append(f"ds_read_b64_tr_b16 v[{b+4*ft+2}:{b+4*ft+3}], v{va} offset:{(ks%16)*3072 + ft*64 + 1536}")
        return L_
    PD = 8
    issued = []
    for ks in range(PD): h_load(ks); issued.append(("h", ks))
    for i_ in w1l(0) + w1l(1): a(i_)
    for ks in range(32):
        n_y = len(issued) - 1 - issued.index(("h", ks))
        a(f"s_waitcnt vmcnt({n_y}) lgkmcnt({6 if ks < 31 else 0})")
        b = WB[ks % 3]
        fill = w1l(ks + 2) if ks + 2 < 32 else []
        for ft in range(3):
            a(f"v_mfma_f32_32x32x16_bf16 v[{ACC+16*ft}:{ACC+16*ft+15}], v[{b+4*ft}:{b+4*ft+3}], v[{HF+4*ks}:{HF+4*ks+3}], " + ("0" if ks == 0 else f"v[{ACC+16*ft}:{ACC+16*ft+15}]"))
            for i_ in fill[2*ft:2*ft+2]: a(i_)
            if ft == 0:
                if ks + PD < 32:
                    h_load(ks + PD); issued.append(("h", ks + PD))
                elif ks - (32 - PD) < 8:
                    q = ks - (32 - PD)
                    a(f"buffer_load_dwordx2 v[{STR+2*q}:{STR+2*q+1}], v12, {WS}, s{SL} offen offset:{q*256} sc1")
                    issued.append(("s", q))
    stamp(a, cfg, 20)
    for n in range(12):
        if n == 7: a("s_waitcnt lgkmcnt(4)")
        a(f"ds_read_b128 v[{16+4*n}:{19+4*n}], v9 offset:{n*32}")
    a("s_waitcnt vmcnt(0)")
    for n in range(4): pk_add(a, STR+2*n, STR+2*n, STR+8+2*n)
    for n in range(2): pk_add(a, STR+2*n, STR+2*n, STR+4+2*n)
    pk_add(a, STR, STR, STR+2)
    a("s_waitcnt lgkmcnt(4)")
    for n in range(12):
        if n == 7: a("s_waitcnt lgkmcnt(4)")
        a(f"ds_read_b128 v[{64+4*n}:{67+4*n}], v9 offset:{384 + n*32}")
    a(f"v_mov_b32 v{STR+2}, v{STR}")
    a(f"v_mov_b32 v{STR+3}, v{STR+1}")
    a("s_nop 1")
    a(f"v_permlane32_swap_b32 v{STR}, v{STR+2}")
    a(f"v_permlane32_swap_b32 v{STR+1}, v{STR+3}")
    a("s_nop 0")
    pk_add(a, STR, STR, STR+2)
    a(f"v_mul_f32 v{STR}, 0x3b000000, v{STR}")
    a(f"v_mul_f32 v{STR+1}, 0x3b000000, v{STR+1}")
    a(f"v_fma_f32 v{STR+1}, -v{STR}, v{STR}, v{STR+1}")
    a(f"v_add_f32 v{STR+1}, 0x3727c5ac, v{STR+1}")
    a(f"v_rsq_f32 v{STR+2}, v{STR+1}")
    a("s_nop 0")
    a(f"v_mul_f32 v{STR+4}, v{STR}, v{STR+2}")
    a("s_waitcnt lgkmcnt(0)")
    for part in range(6):
        r0 = 4 * part
        for n in range(r0, r0+4):
            a(f"v_pk_fma_f32 v[{64+2*n}:{65+2*n}], v[{16+2*n}:{17+2*n}], v[{STR+4}:{STR+5}], v[{64+2*n}:{65+2*n}] op_sel_hi:[1,0,1] neg_lo:[0,1,0] neg_hi:[0,1,0]")
        for n in range(r0, r0+4):
            a(f"v_pk_fma_f32 v[{ACC+2*n}:{ACC+2*n+1}], v[{ACC+2*n}:{ACC+2*n+1}], v[{STR+2}:{STR+3}], v[{64+2*n}:{65+2*n}] op_sel_hi:[1,0,1]")
        for i in range(2*r0, 2*r0+8):
            a(f"v_max_f32 v{ACC+i}, 0, v{ACC+i}")
        for n in range(r0, r0+4):
            a(f"v_pk_mul_f32 v[{ACC+2*n}:{ACC+2*n+1}], v[{ACC+2*n}:{ACC+2*n+1}], v[{ACC+2*n}:{ACC+2*n+1}]")
        for n in range(r0, r0+4):
            a(f"v_cvt_pk_bf16_f32 v{112+n}, v{ACC+2*n}, v{ACC+2*n+1}")
        if part == 4: a(f"s_add_u32 s{GO}, s{GO}, 4096")
        mode_store(a, [f"buffer_store_dwordx4 v[{112+r0}:{115+r0}], v{V_L16}, {WS}, s{GO} offen offset:{(part%4)*1024} {{sc}}"], f"g3{part}")
    GS, GM = T+17, T+18
    a(f"s_lshl_b32 s{T+5}, s{S_J}, 3")
    a(f"s_lshl_b32 s{T+6}, s{S_RB}, 1")
    a(f"s_add_u32 s{T+5}, s{T+5}, s{T+6}")
    a(f"s_and_b32 s{T+6}, s{S_W}, 1")
    a(f"s_add_u32 s{T+5}, s{T+5}, s{T+6}")
    a(f"s_mul_i32 s{T+5}, s{T+5}, 86")
    a(f"s_lshr_b32 s{T+7}, s{S_W}, 1")
    a(f"s_mul_i32 s{T+8}, s{T+7}, 43")
    a(f"s_add_u32 s{T+5}, s{T+5}, s{T+8}")
    a(f"s_lshl_b32 s{T+5}, s{T+5}, 10")
    a(f"s_add_u32 s{GS}, s{T+5}, {WS_GF}")
    a(f"s_lshl_b32 s{GM}, s{T+7}, 14")
    a(f"s_lshl_b32 s{T+6}, s{T+6}, 10")
    a(f"s_add_u32 s{GM}, s{GM}, s{T+6}")
    a("s_waitcnt vmcnt(0)")
    bar(a, "c", "TJ")
    stamp(a, cfg, 21)
    bar(a, "c", "TK")
    stamp(a, cfg, 22)
    gi = []
    def g_stage(st):
        n = 8 if st < 5 else 3
        slot = st % 5
        for q in range(n):
            a(f"s_add_u32 m0, s{GM}, {slot*32768 + q*2048}")
            a(f"s_add_u32 s{T+7}, s{GS}, {(8*st+q)*1024}")
            a(f"buffer_load_dwordx4 v{V_L16}, {WS}, s{T+7} offen sc1 lds")
        gi.extend([st] * n)
    def g_wait(st):
        a(f"s_waitcnt vmcnt({len(gi) - 1 - max(i for i, x in enumerate(gi) if x == st)})")
    g_stage(0); g_stage(1); g_stage(2)
    g_wait(0); bar(a, "c", "F0")
    g_stage(3)
    g_wait(1); bar(a, "c", "F1")
    g_stage(4); g_stage(5)
    g_wait(2); bar(a, "c", "F2")
    g_wait(3); bar(a, "c", "F3")
    g_wait(4); bar(a, "c", "F4")
    g_wait(5); bar(a, "c", "F5")

def tail_hw(a, cfg, bar):
    if 'early' in cfg.exp: return tail_hw_early(a, cfg, bar)
    L = V_LANE; T = S_A
    WS = f"s[{S_WS}:{S_WS+3}]"
    HWI = T+1
    roles(a)
    a(f"s_cmp_lg_u32 s{HWI}, 0")
    a("s_cbranch_scc1 L3_nf_o")
    flag(a, cfg, 2, "o3")
    a.label("L3_nf_o")
    a(f"v_lshrrev_b32 v10, 3, v{L}")
    a(f"v_lshlrev_b32 v10, 10, v10")
    a(f"v_bfe_u32 v11, v{L}, 4, 1")
    a(f"v_lshlrev_b32 v11, 1, v11")
    a(f"v_bfe_u32 v9, v{L}, 1, 2")
    a(f"v_xor_b32 v9, v9, v11")
    a(f"v_lshl_add_u32 v10, v9, 5, v10")
    a(f"v_and_b32 v9, 1, v{L}")
    a(f"v_lshl_add_u32 v10, v9, 4, v10")
    a(f"s_lshl_b32 s{T+5}, s{HWI}, 17")
    a(f"s_lshl_b32 s{T+6}, s{S_CB}, 7")
    a(f"s_add_u32 s{T+5}, s{T+5}, s{T+6}")
    a(f"s_lshl_b32 s{T+6}, s{HWI}, 14")
    for i in range(16):
        a(f"s_add_u32 m0, s{T+6}, {WOB + i*1024}")
        a(f"s_add_u32 s{T+7}, s{T+5}, {i*8*1024}")
        a(f"buffer_load_dwordx4 v10, s[{S_WO}:{S_WO+3}], s{T+7} offen lds")
    a(f"s_mov_b32 s{T+7}, 0x1556")
    a(f"v_mul_u32_u24 v47, s{T+7}, v{L}")
    a(f"v_lshrrev_b32 v47, 16, v47")
    a(f"v_mul_u32_u24 v46, 12, v47")
    a(f"v_sub_u32 v46, v{L}, v46")
    a(f"v_mul_u32_u24 v47, 2752, v47")
    a(f"v_lshl_add_u32 v47, v46, 4, v47")
    W1O, W1M = T+17, T+18
    a(f"s_mul_i32 s{W1O}, s{HWI}, {5*2752}")
    a(f"s_lshl_b32 s{T+6}, s{S_T0F}, 6")
    a(f"s_add_u32 s{W1O}, s{W1O}, s{T+6}")
    a(f"s_mul_i32 s{W1M}, s{HWI}, 960")
    NW1 = 26
    def w1_dma(k):
        if k < 25:
            a(f"s_add_u32 m0, s{W1M}, {T_W1 + k*4*960}")
            a(f"s_add_u32 s{T+7}, s{W1O}, {k*4*5*2752}")
            a(f"buffer_load_dwordx4 v47, s[{S_W1}:{S_W1+3}], s{T+7} offen lds")
        else:
            a(f"s_cmp_eq_u32 s{HWI}, 3")
            a(f"s_mov_b32 s{T+8}, {25*4*960}")
            a(f"s_mov_b32 s{T+7}, {25*4*5*2752}")
            a(f"s_cselect_b32 s{T+8}, {24*4*960}, s{T+8}")
            a(f"s_cselect_b32 s{T+7}, {24*4*5*2752}, s{T+7}")
            a(f"s_add_u32 m0, s{W1M}, s{T+8}")
            a(f"s_add_u32 s{T+7}, s{T+7}, s{W1O}")
            a(f"s_cmp_eq_u32 s{HWI}, 2")
            a(f"s_cselect_b32 exec_lo, 0xffffff, -1")
            a(f"s_cselect_b32 exec_hi, 0, -1")
            a(f"buffer_load_dwordx4 v47, s[{S_W1}:{S_W1+3}], s{T+7} offen lds")
            a("s_mov_b64 exec, -1")
    a("s_waitcnt vmcnt(0)")
    bar(a, "h", "TB")
    OG, OM = T+9, T+10
    a(f"s_lshl_b32 s{T+5}, s{S_J}, 3")
    a(f"s_lshl_b32 s{T+6}, s{S_RB}, 1")
    a(f"s_add_u32 s{T+5}, s{T+5}, s{T+6}")
    a(f"s_lshl_b32 s{T+5}, s{T+5}, 5")
    a(f"s_lshl_b32 s{T+6}, s{HWI}, 1")
    a(f"s_add_u32 s{T+5}, s{T+5}, s{T+6}")
    a(f"s_lshl_b32 s{T+5}, s{T+5}, 10")
    a(f"s_add_u32 s{OG}, s{T+5}, {WS_OF}")
    a(f"s_lshl_b32 s{OM}, s{T+6}, 10")
    a(f"s_add_u32 s{OM}, s{OM}, {OST}")
    NA = 8
    NB = 16 if 'nb16' in cfg.exp else 12
    a(f"s_cmp_lg_u32 s{HWI}, 0")
    a("s_cbranch_scc1 L3_o_np")
    wait_flags(a, 2, 32, False, "o3")
    a("s_branch L3_o_c")
    a.label("L3_o_np")
    for k in range(NB): w1_dma(k)
    a.label("L3_o_c")
    bar(a, "h", "TC")
    oi = []
    for st in range(4):
        for tt in range(2):
            for e in range(2):
                a(f"s_add_u32 m0, s{OM}, {tt*32768 + (8*st + e)*1024}")
                a(f"s_add_u32 s{T+7}, s{OG}, {tt*32768 + (8*st + e)*1024}")
                a(f"buffer_load_dwordx4 v{V_L16}, {WS}, s{T+7} offen sc1 lds")
                oi.append(st)
    a(f"s_cmp_lg_u32 s{HWI}, 0")
    a("s_cbranch_scc1 L3_o_w1b")
    for k in range(NA): w1_dma(k)
    a("s_branch L3_o_w1c")
    a.label("L3_o_w1b")
    for k in range(NB, NB + NA): w1_dma(k)
    a.label("L3_o_w1c")
    for st in range(4):
        a(f"s_waitcnt vmcnt({15 - (4*st + 3) + NA})")
        bar(a, "h", f"TD{st}")
    a(f"s_cmp_lg_u32 s{HWI}, 0")
    a("s_cbranch_scc1 L3_o_w1d")
    for k in range(NA, NW1): w1_dma(k)
    a("s_branch L3_o_w1e")
    a.label("L3_o_w1d")
    for k in range(NB + NA, NW1): w1_dma(k)
    a.label("L3_o_w1e")
    FT, KH = T+11, T+12
    a(f"s_lshr_b32 s{FT}, s{HWI}, 1")
    a(f"s_and_b32 s{KH}, s{HWI}, 1")
    a("s_waitcnt vmcnt(0)")
    bar(a, "h", "TG")
    a(f"s_cmp_lg_u32 s{HWI}, 0")
    a("s_cbranch_scc1 L3_h_cs")
    flag(a, cfg, 3, "h3")
    a(f"v_lshlrev_b32 v8, 3, v{L}")
    a(f"v_add_u32 v8, {CS1 + 384}, v8")
    a(f"v_lshlrev_b32 v4, 16, v{B1R}")
    a(f"v_and_b32 v5, 0xffff0000, v{B1R}")
    a(f"v_cmp_gt_u32 vcc, 48, v{L}")
    a(f"s_and_saveexec_b64 s[{T+6}:{T+7}], vcc")
    a("ds_write_b64 v8, v[4:5]")
    a("s_mov_b64 exec, -1")
    wait_flags(a, 3, 16, True, "h3")
    a("s_branch L3_h_j")
    a.label("L3_h_cs")
    tr_addr192(a, 10, 11, 9)
    a(f"s_sub_u32 s{T+5}, s{HWI}, 1")
    a(f"s_lshl_b32 s{T+6}, s{T+5}, 6")
    a(f"v_add_u32 v10, s{T+6}, v10")
    a(f"v_add_u32 v11, {16*3072}, v10")
    def csrd(ks):
        b = 32 + 4 * (ks % 8)
        va = 10 if ks < 16 else 11
        a(f"ds_read_b64_tr_b16 v[{b}:{b+1}], v{va} offset:{(ks%16)*3072}")
        a(f"ds_read_b64_tr_b16 v[{b+2}:{b+3}], v{va} offset:{(ks%16)*3072+1536}")
    for r in range(4): a(f"v_mov_b32 v{4+r}, 0x3f803f80")
    for ks in range(7): csrd(ks)
    for ks in range(32):
        if ks + 7 < 32: a(f"s_waitcnt lgkmcnt(12)")
        else: a(f"s_waitcnt lgkmcnt({2*(31-ks)})")
        b = 32 + 4 * (ks % 8)
        a(f"v_mfma_f32_32x32x16_bf16 v[16:31], v[{b}:{b+3}], v[4:7], " + ("0" if ks == 0 else "v[16:31]"))
        if ks + 7 < 32: csrd(ks + 7)
    a(f"s_lshl_b32 s{T+6}, s{T+5}, 7")
    a(f"s_add_u32 s{T+6}, s{T+6}, {CS1}")
    a(f"v_lshrrev_b32 v9, 5, v{L}")
    a("v_lshlrev_b32 v9, 4, v9")
    a(f"v_add_u32 v9, s{T+6}, v9")
    a(f"s_mov_b32 exec_lo, 1")
    a(f"s_mov_b32 exec_hi, 1")
    a("s_nop 7")
    for jj in range(4):
        a(f"ds_write_b128 v9, v[{16+4*jj}:{19+4*jj}] offset:{jj*32}")
    a("s_mov_b64 exec, -1")
    a.label("L3_h_j")
    a("s_waitcnt lgkmcnt(0)")
    bar(a, "h", "TH")
    if 'wbl2a' in cfg.exp:
        a(f"s_lshl_b32 s{T+5}, s{S_H}, 2")
        a(f"s_add_u32 s{T+5}, s{T+5}, s{HWI}")
        a(f"s_cmp_lg_u32 s{T+5}, 3")
        a("s_cbranch_scc1 L3_nowb1")
        a("buffer_wbl2 sc1")
        a.label("L3_nowb1")
    XO = T+16
    a(f"s_lshl_b32 s{T+5}, s{S_J}, 3")
    a(f"s_lshl_b32 s{T+6}, s{S_RB}, 1")
    a(f"s_add_u32 s{T+5}, s{T+5}, s{T+6}")
    a(f"s_add_u32 s{T+5}, s{T+5}, s{KH}")
    a(f"s_lshl_b32 s{T+6}, s{S_CB}, 1")
    a(f"s_add_u32 s{T+6}, s{T+6}, s{FT}")
    a(f"s_lshl_b32 s{T+7}, s{T+5}, 5")
    a(f"s_lshl_b32 s{T+8}, s{T+6}, 1")
    a(f"s_add_u32 s{T+7}, s{T+7}, s{T+8}")
    a(f"s_lshl_b32 s{T+7}, s{T+7}, 10")
    a(f"s_add_u32 s{T+7}, s{T+7}, {WS_HF}")
    a(f"buffer_load_dwordx4 v[60:63], v{V_L16}, {WS}, s{T+7} offen sc1")
    a(f"buffer_load_dwordx4 v[64:67], v{V_L16}, {WS}, s{T+7} offen offset:1024 sc1")
    a(f"s_lshl_b32 s{XO}, s{T+5}, 15")
    a(f"s_lshl_b32 s{T+6}, s{T+6}, 6")
    a(f"s_add_u32 s{XO}, s{XO}, s{T+6}")
    a(f"s_lshl_b32 s{T+5}, s{KH}, 14")
    a(f"v_add_u32 v8, s{T+5}, v{V_L16}")
    a(f"v_add_u32 v9, 0x10000, v8")
    a(f"v_add_u32 v10, 0x20000, v8")
    bar(a, "h", "TJ")
    a(f"s_cmp_lg_u32 s{HWI}, 0")
    a("s_cbranch_scc1 L3_g_np")
    flag(a, cfg, 4, "g3")
    wait_flags(a, 4, 16, True, "g3")
    a.label("L3_g_np")
    a("s_waitcnt vmcnt(0)")
    bar(a, "h", "TK")
    if 'wbl2' in cfg.exp:
        a(f"s_lshl_b32 s{T+5}, s{S_H}, 2")
        a(f"s_add_u32 s{T+5}, s{T+5}, s{HWI}")
        a(f"s_cmp_lg_u32 s{T+5}, 3")
        a("s_cbranch_scc1 L3_nowb")
        a("buffer_wbl2 sc1")
        a.label("L3_nowb")
    GB = [16+32, 16+32+8]
    ACC = 16
    GBUF = [48, 56]
    GBUF = [48, 4]
    BUF = [[48, 52], [56, 4], [12, 68 - 0]]
    BUF = [[48, 52], [56, 4], [12, 68]]
    def g_reads(i):
        st, q = i // 8, i % 8
        slot = st % 5
        off = slot * 32768 + q * 2048
        va, o = (8, off) if off < 65536 - 2048 else ((9, off - 65536) if off < 131072 - 2048 else (10, off - 131072))
        b = BUF[i % 3]
        a(f"ds_read_b128 v[{b[0]}:{b[0]+3}], v{va} offset:{o}")
        a(f"ds_read_b128 v[{b[1]}:{b[1]+3}], v{va} offset:{o+1024}")
    for st in range(6):
        bar(a, "h", f"F{st}")
        il = list(range(8*st, min(8*st + 8, 43)))
        g_reads(il[0]); g_reads(il[1])
        for q, i in enumerate(il):
            if q + 2 < len(il): g_reads(il[q+2])
            left = min(len(il) - 1, q + 2) - q
            a(f"s_waitcnt lgkmcnt({2*left})")
            b = BUF[i % 3]
            for tt in range(2):
                a(f"v_mfma_f32_32x32x16_bf16 v[{ACC+16*tt}:{ACC+16*tt+15}], v[{W2R+4*i}:{W2R+4*i+3}], v[{b[tt]}:{b[tt]+3}], " + ("0" if i == 0 else f"v[{ACC+16*tt}:{ACC+16*tt+15}]"))
    stamp(a, cfg, 23)
    a(f"s_lshl_b32 s{T+5}, s{HWI}, 12")
    a(f"v_add_u32 v8, s{T+5}, v{V_L16}")
    a(f"s_xor_b32 s{T+5}, s{T+5}, 4096")
    a(f"v_add_u32 v9, s{T+5}, v{V_L16}")
    a("s_nop 4")
    a("s_barrier")
    a(f"s_cmp_eq_u32 s{KH}, 0")
    a("s_cbranch_scc0 L3_f_k1")
    for kh in range(2):
        if kh == 1: a.label("L3_f_k1")
        send = ACC + 16 * (1 - kh); keep = ACC + 16 * kh
        for n in range(4): a(f"ds_write_b128 v8, v[{send+4*n}:{send+4*n+3}] offset:{n*1024}")
        for n in range(8):
            a(f"v_lshlrev_b32 v{128+2*n}, 16, v{B2R+n}")
            a(f"v_and_b32 v{128+2*n+1}, 0xffff0000, v{B2R+n}")
        for n in range(8): pk_add(a, 80+2*n, keep+2*n, 128+2*n)
        for n in range(8):
            a(f"v_lshlrev_b32 v{128+2*n}, 16, v{60+n}")
            a(f"v_and_b32 v{128+2*n+1}, 0xffff0000, v{60+n}")
        for n in range(8): pk_add(a, 80+2*n, 80+2*n, 128+2*n)
        if kh == 0: a("s_branch L3_f_j")
    a.label("L3_f_j")
    a("s_waitcnt lgkmcnt(0)")
    a("s_barrier")
    for n in range(4): a(f"ds_read_b128 v[{96+4*n}:{99+4*n}], v9 offset:{n*1024}")
    a(f"v_and_b32 v8, 31, v{L}")
    a("v_lshlrev_b32 v8, 10, v8")
    a(f"v_lshrrev_b32 v9, 5, v{L}")
    a("v_lshl_add_u32 v8, v9, 4, v8")
    a("s_waitcnt lgkmcnt(0)")
    for n in range(8): pk_add(a, 80+2*n, 80+2*n, 96+2*n)
    for n in range(8): a(f"v_cvt_pk_bf16_f32 v{112+n}, v{80+2*n}, v{81+2*n}")
    a("s_nop 1")
    a("v_permlane32_swap_b32 v112, v114")
    a("v_permlane32_swap_b32 v113, v115")
    a("v_permlane32_swap_b32 v116, v118")
    a("v_permlane32_swap_b32 v117, v119")
    a("s_nop 0")
    a(f"buffer_store_dwordx4 v[112:115], v8, s[{S_OUT}:{S_OUT+3}], s{XO} offen")
    a(f"buffer_store_dwordx4 v[116:119], v8, s[{S_OUT}:{S_OUT+3}], s{XO} offen offset:32")
    stamp(a, cfg, 24)

def tail_hw_early(a, cfg, bar):
    L = V_LANE; T = S_A
    WS = f"s[{S_WS}:{S_WS+3}]"
    HWI = T+1
    global OST, CS1, T_W1
    OST, CS1, T_W1 = 0, 0, E_W1B
    OG, OM = T+9, T+10
    CSA = 64 - 0 if False else 0
    CSA = 16 + 0
    a(f"s_lshl_b32 s{T+5}, s{S_J}, 3")
    a(f"s_lshl_b32 s{T+6}, s{S_RB}, 1")
    a(f"s_add_u32 s{T+5}, s{T+5}, s{T+6}")
    a(f"s_lshl_b32 s{T+5}, s{T+5}, 5")
    a(f"s_lshl_b32 s{T+6}, s{HWI}, 1")
    a(f"s_add_u32 s{T+5}, s{T+5}, s{T+6}")
    a(f"s_lshl_b32 s{T+5}, s{T+5}, 10")
    a(f"s_add_u32 s{OG}, s{T+5}, {WS_OF}")
    a(f"s_lshl_b32 s{OM}, s{T+6}, 10")
    a(f"s_add_u32 s{OM}, s{OM}, {OST}")
    a(f"s_cmp_lg_u32 s{HWI}, 0")
    a("s_cbranch_scc1 L3e_o_np")
    flag(a, cfg, 2, "o3e")
    wait_flags(a, 2, 32, False, "o3e")
    a("s_branch L3e_o_c")
    a.label("L3e_o_np")
    for m in range(12): w1_late(a, m)
    tr_addr192(a, 10, 11, 9)
    a(f"s_sub_u32 s{T+5}, s{HWI}, 1")
    a(f"s_lshl_b32 s{T+6}, s{T+5}, 6")
    a(f"s_add_u32 s{T+6}, s{T+6}, {T_W1}")
    a(f"v_add_u32 v10, s{T+6}, v10")
    a(f"v_add_u32 v11, {16*3072}, v10")
    def csrd(ks):
        b = 32 + 4 * (ks % 8)
        va = 10 if ks < 16 else 11
        a(f"ds_read_b64_tr_b16 v[{b}:{b+1}], v{va} offset:{(ks%16)*3072}")
        a(f"ds_read_b64_tr_b16 v[{b+2}:{b+3}], v{va} offset:{(ks%16)*3072+1536}")
    def cs_range(k0, k1):
        for ks in range(k0, min(k0 + 7, k1)): csrd(ks)
        for ks in range(k0, k1):
            if ks + 7 < k1: a(f"s_waitcnt lgkmcnt(12)")
            else: a(f"s_waitcnt lgkmcnt({2*(k1-1-ks)})")
            b = 32 + 4 * (ks % 8)
            a(f"v_mfma_f32_32x32x16_bf16 v[64-0:64-0], 0" if False else f"v_mfma_f32_32x32x16_bf16 v[{CSA}:{CSA+15}], v[{b}:{b+3}], v[4:7], " + ("0" if ks == 0 else f"v[{CSA}:{CSA+15}]"))
            if ks + 7 < k1: csrd(ks + 7)
    for r in range(4): a(f"v_mov_b32 v{4+r}, 0x3f803f80")
    cs_range(0, 21)
    a.label("L3e_o_c")
    bar(a, "h", "TC")
    for st in range(4):
        for tt in range(2):
            for e in range(2):
                a(f"s_add_u32 m0, s{OM}, {tt*32768 + (8*st + e)*1024}")
                a(f"s_add_u32 s{T+7}, s{OG}, {tt*32768 + (8*st + e)*1024}")
                a(f"buffer_load_dwordx4 v{V_L16}, {WS}, s{T+7} offen sc1 lds")
    for st in range(4):
        a(f"s_waitcnt vmcnt({15 - (4*st + 3)})")
        bar(a, "h", f"TD{st}")
    FT, KH = T+11, T+12
    a(f"s_lshr_b32 s{FT}, s{HWI}, 1")
    a(f"s_and_b32 s{KH}, s{HWI}, 1")
    a(f"s_cmp_eq_u32 s{HWI}, 0")
    a("s_cbranch_scc1 L3e_b1")
    cs_range(21, 32)
    a(f"s_sub_u32 s{T+5}, s{HWI}, 1")
    a(f"s_lshl_b32 s{T+6}, s{T+5}, 7")
    a(f"s_add_u32 s{T+6}, s{T+6}, {CS1}")
    a(f"v_lshrrev_b32 v9, 5, v{L}")
    a("v_lshlrev_b32 v9, 4, v9")
    a(f"v_add_u32 v9, s{T+6}, v9")
    a(f"s_mov_b32 exec_lo, 1")
    a(f"s_mov_b32 exec_hi, 1")
    a("s_nop 7")
    for jj in range(4):
        a(f"ds_write_b128 v9, v[{CSA+4*jj}:{CSA+4*jj+3}] offset:{jj*32}")
    a("s_mov_b64 exec, -1")
    a("s_branch L3e_csd")
    a.label("L3e_b1")
    a(f"v_lshlrev_b32 v8, 3, v{L}")
    a(f"v_add_u32 v8, {CS1 + 384}, v8")
    a(f"v_lshlrev_b32 v4, 16, v{B1R}")
    a(f"v_and_b32 v5, 0xffff0000, v{B1R}")
    a(f"v_cmp_gt_u32 vcc, 48, v{L}")
    a(f"s_and_saveexec_b64 s[{T+6}:{T+7}], vcc")
    a("ds_write_b64 v8, v[4:5]")
    a("s_mov_b64 exec, -1")
    a.label("L3e_csd")
    a("s_waitcnt lgkmcnt(0)")
    bar(a, "h", "TG")
    a(f"s_cmp_lg_u32 s{HWI}, 0")
    a("s_cbranch_scc1 L3e_h_j")
    flag(a, cfg, 3, "h3e")
    wait_flags(a, 3, 16, True, "h3e")
    a.label("L3e_h_j")
    bar(a, "h", "TH")
    XO = T+16
    a(f"s_lshl_b32 s{T+5}, s{S_J}, 3")
    a(f"s_lshl_b32 s{T+6}, s{S_RB}, 1")
    a(f"s_add_u32 s{T+5}, s{T+5}, s{T+6}")
    a(f"s_add_u32 s{T+5}, s{T+5}, s{KH}")
    a(f"s_lshl_b32 s{T+6}, s{S_CB}, 1")
    a(f"s_add_u32 s{T+6}, s{T+6}, s{FT}")
    a(f"s_lshl_b32 s{T+7}, s{T+5}, 5")
    a(f"s_lshl_b32 s{T+8}, s{T+6}, 1")
    a(f"s_add_u32 s{T+7}, s{T+7}, s{T+8}")
    a(f"s_lshl_b32 s{T+7}, s{T+7}, 10")
    a(f"s_add_u32 s{T+7}, s{T+7}, {WS_HF}")
    a(f"buffer_load_dwordx4 v[60:63], v{V_L16}, {WS}, s{T+7} offen sc1")
    a(f"buffer_load_dwordx4 v[64:67], v{V_L16}, {WS}, s{T+7} offen offset:1024 sc1")
    a(f"s_lshl_b32 s{XO}, s{T+5}, 15")
    a(f"s_lshl_b32 s{T+6}, s{T+6}, 6")
    a(f"s_add_u32 s{XO}, s{XO}, s{T+6}")
    a(f"s_lshl_b32 s{T+5}, s{KH}, 14")
    a(f"v_add_u32 v8, s{T+5}, v{V_L16}")
    a(f"v_add_u32 v9, 0x10000, v8")
    a(f"v_add_u32 v10, 0x20000, v8")
    bar(a, "h", "TJ")
    a(f"s_cmp_lg_u32 s{HWI}, 0")
    a("s_cbranch_scc1 L3e_g_np")
    flag(a, cfg, 4, "g3e")
    wait_flags(a, 4, 16, True, "g3e")
    a.label("L3e_g_np")
    a("s_waitcnt vmcnt(0)")
    bar(a, "h", "TK")
    if 'wbl2' in cfg.exp:
        a(f"s_lshl_b32 s{T+5}, s{S_H}, 2")
        a(f"s_add_u32 s{T+5}, s{T+5}, s{HWI}")
        a(f"s_cmp_lg_u32 s{T+5}, 3")
        a("s_cbranch_scc1 L3e_nowb")
        a("buffer_wbl2 sc1")
        a.label("L3e_nowb")
    GB = [16+32, 16+32+8]
    ACC = 16
    GBUF = [48, 56]
    GBUF = [48, 4]
    BUF = [[48, 52], [56, 4], [12, 68 - 0]]
    BUF = [[48, 52], [56, 4], [12, 68]]
    def g_reads(i):
        st, q = i // 8, i % 8
        slot = st % 5
        off = slot * 32768 + q * 2048
        va, o = (8, off) if off < 65536 - 2048 else ((9, off - 65536) if off < 131072 - 2048 else (10, off - 131072))
        b = BUF[i % 3]
        a(f"ds_read_b128 v[{b[0]}:{b[0]+3}], v{va} offset:{o}")
        a(f"ds_read_b128 v[{b[1]}:{b[1]+3}], v{va} offset:{o+1024}")
    for st in range(6):
        bar(a, "h", f"F{st}")
        il = list(range(8*st, min(8*st + 8, 43)))
        g_reads(il[0]); g_reads(il[1])
        for q, i in enumerate(il):
            if q + 2 < len(il): g_reads(il[q+2])
            left = min(len(il) - 1, q + 2) - q
            a(f"s_waitcnt lgkmcnt({2*left})")
            b = BUF[i % 3]
            for tt in range(2):
                a(f"v_mfma_f32_32x32x16_bf16 v[{ACC+16*tt}:{ACC+16*tt+15}], v[{W2R+4*i}:{W2R+4*i+3}], v[{b[tt]}:{b[tt]+3}], " + ("0" if i == 0 else f"v[{ACC+16*tt}:{ACC+16*tt+15}]"))
    stamp(a, cfg, 23)
    a(f"s_lshl_b32 s{T+5}, s{HWI}, 12")
    a(f"v_add_u32 v8, s{T+5}, v{V_L16}")
    a(f"s_xor_b32 s{T+5}, s{T+5}, 4096")
    a(f"v_add_u32 v9, s{T+5}, v{V_L16}")
    a("s_nop 4")
    a("s_barrier")
    a(f"s_cmp_eq_u32 s{KH}, 0")
    a("s_cbranch_scc0 L3e_f_k1")
    for kh in range(2):
        if kh == 1: a.label("L3e_f_k1")
        send = ACC + 16 * (1 - kh); keep = ACC + 16 * kh
        for n in range(4): a(f"ds_write_b128 v8, v[{send+4*n}:{send+4*n+3}] offset:{n*1024}")
        for n in range(8):
            a(f"v_lshlrev_b32 v{128+2*n}, 16, v{B2R+n}")
            a(f"v_and_b32 v{128+2*n+1}, 0xffff0000, v{B2R+n}")
        for n in range(8): pk_add(a, 80+2*n, keep+2*n, 128+2*n)
        for n in range(8):
            a(f"v_lshlrev_b32 v{128+2*n}, 16, v{60+n}")
            a(f"v_and_b32 v{128+2*n+1}, 0xffff0000, v{60+n}")
        for n in range(8): pk_add(a, 80+2*n, 80+2*n, 128+2*n)
        if kh == 0: a("s_branch L3e_f_j")
    a.label("L3e_f_j")
    a("s_waitcnt lgkmcnt(0)")
    a("s_barrier")
    for n in range(4): a(f"ds_read_b128 v[{96+4*n}:{99+4*n}], v9 offset:{n*1024}")
    a(f"v_and_b32 v8, 31, v{L}")
    a("v_lshlrev_b32 v8, 10, v8")
    a(f"v_lshrrev_b32 v9, 5, v{L}")
    a("v_lshl_add_u32 v8, v9, 4, v8")
    a("s_waitcnt lgkmcnt(0)")
    for n in range(8): pk_add(a, 80+2*n, 80+2*n, 96+2*n)
    for n in range(8): a(f"v_cvt_pk_bf16_f32 v{112+n}, v{80+2*n}, v{81+2*n}")
    a("s_nop 1")
    a("v_permlane32_swap_b32 v112, v114")
    a("v_permlane32_swap_b32 v113, v115")
    a("v_permlane32_swap_b32 v116, v118")
    a("v_permlane32_swap_b32 v117, v119")
    a("s_nop 0")
    a(f"buffer_store_dwordx4 v[112:115], v8, s[{S_OUT}:{S_OUT+3}], s{XO} offen")
    a(f"buffer_store_dwordx4 v[116:119], v8, s[{S_OUT}:{S_OUT+3}], s{XO} offen offset:32")
    stamp(a, cfg, 24)
```

```python
from asmlib import *
import gen as G
from gen import *
from tail import tr_addr, tr_addr192, mode_store, pk_add

ONES = 155648
VOTE = 163824
STG = 131072
S_ = [16, 32]; C_ = [48, 64]; O_ = [80, 96]; P_ = 112; KF = [120, 124]; VF = [128, 136]
VK, VV, VINC = 144, 145, 146
XR = 148
Q_ = [240, 244]
W2R = 80
B2R = 72
B1R = 71
WS_HS3 = WS_HST

class Bar:
    def __init__(self): self.seq = {"c": [], "h": []}
    def __call__(self, a, role, name):
        a("s_barrier"); self.seq[role].append(name)
    def check(self, upto=None):
        c, h = self.seq["c"], self.seq["h"]
        n = len(c)
        assert c == h[:n], (c, h)

def p1_end(a, cfg, bar):
    L = V_LANE; T = S_A; TMP, TMP2 = T+9, T+10
    W = f"s[{S_WS}:{S_WS+3}]"
    a(f"s_lshl_b32 s{TMP2}, s{S_G}, 7")
    a(f"s_add_u32 s{TMP}, s{TMP}, s{TMP2}")
    a(f"s_lshl_b32 s{T+13}, s{S_H}, 3")
    a(f"s_add_u32 s{T+13}, s{T+13}, s{S_J}")
    a(f"s_cmp_ge_u32 s{S_W}, 4")
    a("s_cbranch_scc1 L3_hw_start")
    a(f"s_lshl_b32 s{T+14}, s{T+13}, 13")
    a(f"s_lshl_b32 s{T+12}, s{S_W}, 11")
    a(f"s_add_u32 s{T+14}, s{T+14}, s{T+12}")
    a(f"s_add_u32 s{T+14}, s{T+14}, {WS_QF}")
    a(f"v_mov_b32 v{VK}, v{V_L16}")
    a(f"v_and_b32 v4, 15, v{L}")
    a(f"v_lshlrev_b32 v4, 4, v4")
    a(f"v_lshrrev_b32 v5, 5, v{L}")
    a(f"v_lshl_add_u32 v4, v5, 8, v4")
    a(f"v_add_u32 v4, 8192, v4")
    a(f"v_and_b32 v5, 31, v{L}")
    a(f"v_subrev_u32 v6, 20, v5")
    a(f"v_cmp_gt_u32 vcc, 8, v6")
    ZR = 'zrows' in cfg.exp
    a(f"v_mov_b32 v7, {ONES + (16 if ZR else 0)}")
    a(f"v_mov_b32 v6, {ONES + 80}")
    a(f"v_cndmask_b32 v7, v7, v6, vcc")
    if ZR:
        a(f"v_cmp_eq_u32 vcc, 16, v5")
        a(f"v_mov_b32 v6, {ONES}")
        a("s_nop 0")
        a(f"v_cndmask_b32 v7, v7, v6, vcc")
    a(f"v_cmp_gt_u32 vcc, 16, v5")
    a(f"v_mov_b32 v6, 16384")
    a("s_nop 0")
    a(f"v_cndmask_b32 v{VV}, v7, v4, vcc")
    a(f"v_cndmask_b32 v{VINC}, 0, v6, vcc")
    for x in range(2):
        for r in range(16): a(f"v_mov_b32 v{O_[x]+r}, 0")
    for r in range(8): a(f"v_mov_b32 v{P_+r}, 0")
    for r in range(16): a(f"v_mov_b32 v{VF[0]+r}, 0")
    a(f"v_and_b32 v2, 31, v{L}")
    a("v_lshlrev_b32 v2, 2, v2")
    poll(a, 2, 3, TMP, "p1c")
    stamp(a, cfg, 13)
    a(f"buffer_load_dwordx4 v[240:243], v{V_L16}, {W}, s{T+14} offen sc1")
    a(f"buffer_load_dwordx4 v[244:247], v{V_L16}, {W}, s{T+14} offen offset:1024 sc1")
    a(f"s_lshl_b32 s{T+4}, s{S_J}, 8")
    a(f"s_lshr_b32 s{T+5}, s{S_H}, 3")
    a(f"s_lshl_b32 s{T+5}, s{T+5}, 6")
    a(f"s_add_u32 s{T+4}, s{T+4}, s{T+5}")
    a(f"s_and_b32 s{T+5}, s{S_W}, 1")
    a(f"s_lshl_b32 s{T+5}, s{T+5}, 5")
    a(f"s_add_u32 s{T+4}, s{T+4}, s{T+5}")
    a(f"s_lshl_b32 s{T+4}, s{T+4}, 10")
    a(f"s_and_b32 s{T+5}, s{S_H}, 7")
    a(f"s_lshl_b32 s{T+5}, s{T+5}, 7")
    a(f"s_add_u32 s{T+4}, s{T+4}, s{T+5}")
    a(f"s_lshr_b32 s{T+5}, s{S_W}, 1")
    a(f"s_lshl_b32 s{T+5}, s{T+5}, 6")
    a(f"s_add_u32 s{T+4}, s{T+4}, s{T+5}")
    a(f"v_and_b32 v2, 31, v{L}")
    a(f"v_lshlrev_b32 v2, 10, v2")
    a(f"v_lshrrev_b32 v3, 5, v{L}")
    a(f"v_lshl_add_u32 v2, v3, 3, v2")
    for jp in range(4):
        a(f"buffer_load_dwordx2 v[{XR+2*jp}:{XR+2*jp+1}], v2, s[{S_X}:{S_X+3}], s{T+4} offen offset:{16*jp}")
    remote_flag(a, cfg, "c")
    a("s_waitcnt vmcnt(5)")
    bar(a, "c", "S0")
    stamp(a, cfg, 14)

def remote_flag(a, cfg, uniq):
    T = S_A; TMP, TMP2 = T+9, T+10
    a(f"s_lshl_b32 s{TMP}, s{S_H}, 3")
    a(f"s_add_u32 s{TMP}, s{TMP}, s{S_W}")
    a(f"s_lshl_b32 s{TMP}, s{TMP}, 5")
    a(f"s_lshl_b32 s{TMP2}, s{S_J}, 2")
    a(f"s_add_u32 s{TMP}, s{TMP}, s{TMP2}")
    a(f"s_add_u32 s{TMP}, s{TMP}, {WS_KVFLAG}")
    flag_store(a, S_TAG, TMP, "sc1")

def attn_cw(a, cfg, bar):
    L = V_LANE; T = S_A
    W = f"s[{S_WS}:{S_WS+3}]"
    a(f"ds_read_b128 v[{KF[0]}:{KF[0]+3}], v{VK}")
    a(f"ds_read_b128 v[{VF[0]}:{VF[0]+3}], v{VV}")
    a(f"ds_read_b128 v[{VF[0]+4}:{VF[0]+7}], v{VV} offset:512")
    a("s_waitcnt lgkmcnt(2)")
    mfma32(a, S_[0], KF[0], Q_[0], "0")
    mfma32(a, S_[1], KF[0], Q_[1], "0")
    a(f"s_mov_b32 s{S_BLK}, 0")
    a("s_nop 7")
    a("s_nop 1")
    maxtree(a, S_[0], 2)
    maxtree(a, S_[1], 3)
    halfmax(a, 2, 4)
    halfmax(a, 3, 4)
    for x in range(2):
        a(f"v_sub_f32 v{C_[x]}, 0, v{2+x}")
        for r in range(1, 16): a(f"v_mov_b32 v{C_[x]+r}, v{C_[x]}")
    a("s_waitcnt lgkmcnt(0)")
    mfma32(a, S_[0], KF[0], Q_[0], C_[0])
    a("s_nop 7")
    a("s_nop 3")
    a.label("L3_ca")
    for u in range(16):
        n, x = u >> 1, u & 1
        cur = S_[u % 2]; nxt = S_[(u + 1) % 2]
        e = lambda i: a(f"v_exp_f32 v{cur+i}, v{cur+i}")
        c = lambda m: a(f"v_cvt_pk_bf16_f32 v{P_+m}, v{cur+2*m}, v{cur+2*m+1}")
        if u == 14:
            a("s_barrier")
            a(f"v_add_u32 v{VK}, 16384, v{VK}")
            a(f"v_add_u32 v{VV}, v{VINC}, v{VV}")
        e(0); e(1)
        pn, px = ((u - 1) >> 1) % 2, (u - 1) & 1
        mfma32(a, O_[px], VF[pn] + 4, P_ + 4, O_[px])
        e(2); c(0); e(3); e(4); c(1)
        n1, x1 = (u + 1) >> 1, (u + 1) & 1
        if x == 1: a("s_waitcnt lgkmcnt(0)")
        mfma32(a, nxt, KF[n1 % 2], Q_[x1], C_[x1])
        if x == 0:
            off = ((n + 1) % 8) * 1024
            kb, vb = KF[(n + 1) % 2], VF[(n + 1) % 2]
            a(f"ds_read_b128 v[{kb}:{kb+3}], v{VK} offset:{off}")
            a(f"ds_read_b128 v[{vb}:{vb+3}], v{VV} offset:{off}")
            a(f"ds_read_b128 v[{vb+4}:{vb+7}], v{VV} offset:{off+512}")
        e(5); e(6); c(2); e(7); e(8); c(3); e(9); e(10)
        mfma32(a, O_[x], VF[n % 2], P_, O_[x])
        c(4); e(11); e(12); c(5); e(13); e(14); e(15); c(6); c(7)
    a(f"s_add_u32 s{S_BLK}, s{S_BLK}, 1")
    a(f"s_cmp_lt_u32 s{S_BLK}, 8")
    a("s_cbranch_scc1 L3_ca")
    for k in range(8): bar.seq["c"].append(f"B{k}")
    a("s_nop 1")
    mfma32(a, O_[1], VF[1] + 4, P_ + 4, O_[1])
    a("s_waitcnt lgkmcnt(0)")
    stamp(a, cfg, 8)
    a.label("L3_chk")
    a("s_nop 7")
    a("s_nop 3")
    if 'zrows' in cfg.exp:
        for x in range(2):
            a(f"v_mov_b32 v{2+x}, v{O_[x]+8}")
        a("s_nop 1")
        for x in range(2):
            a(f"v_permlane32_swap_b32 v{O_[x]+8}, v{2+x}")
        a("s_nop 0")
    a("v_mov_b32 v4, 0x5d800000")
    a(f"v_cmp_nle_f32 vcc, v{O_[0]+8}, v4")
    a(f"s_mov_b64 s[{T+4}:{T+5}], vcc")
    a(f"v_cmp_nle_f32 vcc, v{O_[1]+8}, v4")
    a(f"s_or_b64 vcc, vcc, s[{T+4}:{T+5}]")
    EARLY = 'early' in cfg.exp
    if EARLY:
        a(f"s_cmp_lg_u32 s{S_RERUN}, 0")
        a("s_cbranch_scc1 L3_ok")
        a("s_cbranch_vccz L3_ok")
        a(f"s_mov_b32 s{S_RERUN}, 2")
        a(f"v_mov_b32 v2, {VOTE}")
        a("v_mov_b32 v3, 1")
        a("ds_write_b32 v2, v3")
        a("s_branch L3_ok")
        a.label("L3_redo")
    else:
        a(f"s_cmp_lg_u32 s{S_RERUN}, 0")
        a("s_cbranch_scc1 L3_ok")
        a("s_cbranch_vccz L3_ok")
    a(f"s_mov_b32 s{S_RERUN}, 1")
    a("v_mov_b32 v2, 0xff800000")
    a("v_mov_b32 v3, 0xff800000")
    for ps in range(2):
        a(f"v_mov_b32 v6, v{V_L16}")
        a(f"v_lshlrev_b32 v7, 3, v{VINC}")
        a(f"v_sub_u32 v7, v{VV}, v7")
        a(f"s_mov_b32 s{S_BLK}, 0")
        a.label(f"L3_re{ps}")
        for i in range(8):
            a(f"ds_read_b128 v[{KF[0]}:{KF[0]+3}], v6 offset:{i*1024}")
            if ps == 1:
                a(f"ds_read_b128 v[{VF[0]}:{VF[0]+3}], v7 offset:{i*1024}")
                a(f"ds_read_b128 v[{VF[0]+4}:{VF[0]+7}], v7 offset:{i*1024+512}")
            a("s_waitcnt lgkmcnt(0)")
            for x in range(2):
                mfma32(a, S_[x], KF[0], Q_[x], "0" if ps == 0 else C_[x])
            a("s_nop 7")
            a("s_nop 3")
            for x in range(2):
                if ps == 0:
                    for k in range(0, 16, 2):
                        a(f"v_max3_f32 v{2+x}, v{2+x}, v{S_[x]+k}, v{S_[x]+k+1}")
                else:
                    for k in range(16): a(f"v_exp_f32 v{S_[x]+k}, v{S_[x]+k}")
                    a("s_nop 0")
                    for m in range(8): a(f"v_cvt_pk_bf16_f32 v{P_+m}, v{S_[x]+2*m}, v{S_[x]+2*m+1}")
                    a("s_nop 1")
                    mfma32(a, O_[x], VF[0], P_, O_[x])
                    mfma32(a, O_[x], VF[0] + 4, P_ + 4, O_[x])
        a("v_add_u32 v6, 16384, v6")
        a(f"v_add_u32 v7, v{VINC}, v7")
        a(f"s_add_u32 s{S_BLK}, s{S_BLK}, 1")
        a(f"s_cmp_lt_u32 s{S_BLK}, 8")
        a(f"s_cbranch_scc1 L3_re{ps}")
        if ps == 0:
            halfmax(a, 2, 4)
            halfmax(a, 3, 4)
            for x in range(2):
                a(f"v_sub_f32 v{C_[x]}, 0, v{2+x}")
                for r in range(1, 16): a(f"v_mov_b32 v{C_[x]+r}, v{C_[x]}")
                for r in range(16): a(f"v_mov_b32 v{O_[x]+r}, 0")
    a("s_branch L3_chk")
    a.label("L3_ok")
    a(f"s_lshl_b32 s{T+4}, s{S_J}, 3")
    a(f"s_lshl_b32 s{T+5}, s{S_W}, 1")
    a(f"s_add_u32 s{T+4}, s{T+4}, s{T+5}")
    a(f"s_lshl_b32 s{T+4}, s{T+4}, 5")
    a(f"s_add_u32 s{T+4}, s{T+4}, s{S_H}")
    a(f"s_lshl_b32 s{T+4}, s{T+4}, 10")
    a(f"s_add_u32 s{T+4}, s{T+4}, {WS_OF}")
    a(f"s_add_u32 s{T+5}, s{T+4}, 32768")
    for x in range(2):
        a(f"v_rcp_f32 v2, v{O_[x]+8}")
        a("s_nop 0")
        for r in range(0, 8, 2):
            a(f"v_pk_mul_f32 v[{O_[x]+r}:{O_[x]+r+1}], v[{O_[x]+r}:{O_[x]+r+1}], v[2:3] op_sel_hi:[1,0]")
        for m in range(4):
            a(f"v_cvt_pk_bf16_f32 v{4+4*x+m}, v{O_[x]+2*m}, v{O_[x]+2*m+1}")
        mode_store(a, [f"buffer_store_dwordx4 v[{4+4*x}:{7+4*x}], v{V_L16}, {W}, s{T+4+x} offen {{sc}}"], f"o{x}")
    a("s_waitcnt vmcnt(0) lgkmcnt(0)")
    stamp(a, cfg, 15)
    if EARLY:
        a(f"s_cmp_eq_u32 s{S_RERUN}, 1")
        a("s_cbranch_scc1 L3_c_rec2")
        bar(a, "c", "TA")
        a(f"v_mov_b32 v2, {VOTE}")
        a("ds_read_b32 v3, v2")
        a("s_waitcnt lgkmcnt(0)")
        a("v_cmp_ne_u32 vcc, 0, v3")
        a("s_cbranch_vccz L3_c_go")
        a("s_barrier")
        a(f"s_cmp_eq_u32 s{S_RERUN}, 2")
        a("s_cbranch_scc1 L3_redo")
        a.label("L3_c_rec2")
        a("s_barrier")
        a("s_barrier")
        a.label("L3_c_go")
    else:
        bar(a, "c", "TA")

def attn_hw(a, cfg, bar):
    L = V_LANE; T = S_A; TMP = T+9
    W = f"s[{S_WS}:{S_WS+3}]"
    HWI = T+1
    a.label("L3_hw_start")
    a(f"s_sub_u32 s{HWI}, s{S_W}, 4")
    a(f"s_lshl_b32 s{T+13}, s{T+13}, 14")
    a(f"s_lshl_b32 s{T+2}, s{HWI}, 11")
    a(f"s_add_u32 s{T+13}, s{T+13}, s{T+2}")
    a(f"s_add_u32 s{T+13}, s{T+13}, {WS_KVL}")
    a(f"v_lshlrev_b32 v4, 4, v{L}")
    a(f"s_add_u32 s{T+4}, s{T+2}, {ONES}")
    a(f"v_add_u32 v4, s{T+4}, v4")
    if 'zrows' in cfg.exp:
        a(f"v_and_b32 v5, 15, v{L}")
        a(f"v_cmp_eq_u32 vcc, 0, v5")
        a(f"v_mov_b32 v6, 0x3f803f80")
        a("s_nop 0")
        a(f"v_cndmask_b32 v8, 0, v6, vcc")
        for r in range(9, 12): a(f"v_mov_b32 v{r}, v8")
    else:
        for r in range(8, 12): a(f"v_mov_b32 v{r}, 0x3f803f80")
    a("ds_write_b128 v4, v[8:11]")
    a("ds_write_b128 v4, v[8:11] offset:1024")
    a(f"v_and_b32 v2, 31, v{L}")
    a("v_lshlrev_b32 v2, 2, v2")
    poll(a, 2, 3, TMP, "p1h")
    def kv4(goff_s, lds_imm, sc="sc1"):
        a(f"s_add_u32 m0, s{T+2}, {lds_imm}")
        a(f"s_add_u32 s{T+6}, s{goff_s}, 8192")
        a(f"buffer_load_dwordx4 v{V_L16}, {W}, s{goff_s} offen {sc} lds")
        a(f"s_add_u32 m0, s{T+2}, {lds_imm + 1024}")
        a(f"s_add_u32 s{T+7}, s{goff_s}, 1024")
        a(f"buffer_load_dwordx4 v{V_L16}, {W}, s{T+7} offen {sc} lds")
        a(f"s_add_u32 m0, s{T+2}, {lds_imm + 8192}")
        a(f"s_add_u32 s{T+7}, s{T+6}, 1024")
        a(f"buffer_load_dwordx4 v{V_L16}, {W}, s{T+6} offen {sc} lds")
        a(f"s_add_u32 m0, s{T+2}, {lds_imm + 9216}")
        a("s_nop 0")
        a(f"buffer_load_dwordx4 v{V_L16}, {W}, s{T+7} offen {sc} lds")
    kv4(T+13, 0)
    remote_flag(a, cfg, "h")
    a(f"s_lshl_b32 s{T}, s{S_H}, 17")
    a(f"s_add_u32 s{T}, s{T}, {WS_KV}")
    a(f"s_add_u32 s{T}, s{T}, s{T+2}")
    a("s_waitcnt vmcnt(1) lgkmcnt(0)")
    bar(a, "h", "S0")
    a(f"s_and_b32 s{T+4}, s{S_H}, 28")
    a(f"s_add_u32 s{T+4}, s{T+4}, s{HWI}")
    a(f"s_lshl_b32 s{T+4}, s{T+4}, 8")
    a(f"s_add_u32 s{T+3}, s{T+4}, {WS_KVFLAG}")
    a(f"v_bfe_u32 v4, v{L}, 4, 1")
    a(f"v_bfe_u32 v5, v{L}, 3, 1")
    a(f"s_and_b32 s{T+5}, s{S_H}, 3")
    a(f"s_and_b32 s{T+6}, s{S_H}, 2")
    a(f"v_lshlrev_b32 v6, 2, v4")
    a(f"v_add_u32 v7, s{T+5}, v6")
    a(f"v_add_u32 v6, s{T+6}, v6")
    a(f"v_add_u32 v6, v6, v4")
    a(f"v_cmp_eq_u32 vcc, 0, v5")
    a(f"v_and_b32 v2, 7, v{L}")
    a("v_lshlrev_b32 v2, 2, v2")
    a(f"v_cndmask_b32 v6, v6, v7, vcc")
    a(f"v_lshl_add_u32 v2, v6, 5, v2")
    stamp(a, cfg, 5)
    poll(a, 2, 3, T+3, "kv3")
    stamp(a, cfg, 6)
    issued = []
    def I(name, n): issued.extend([name] * n)
    def younger(name): return len(issued) - 1 - max(i for i, x in enumerate(issued) if x == name)
    def kv(b):
        a(f"s_add_u32 s{T+4}, s{S_J}, {b}")
        a(f"s_and_b32 s{T+4}, s{T+4}, 7")
        a(f"s_lshl_b32 s{T+4}, s{T+4}, 14")
        a(f"s_add_u32 s{T+4}, s{T+4}, s{T}")
        kv4(T+4, b*16384); I(f"kv{b}", 4)
    W2O, STB = T+10, T+11
    def w2setup():
        a(f"s_and_b32 s{W2O}, s{HWI}, 1")
        a(f"s_mul_i32 s{W2O}, s{W2O}, {43*16*1024}")
        a(f"s_and_b32 s{T+4}, s{S_H}, 7")
        a(f"s_lshl_b32 s{T+4}, s{T+4}, 7")
        a(f"s_add_u32 s{W2O}, s{W2O}, s{T+4}")
        a(f"s_lshr_b32 s{T+4}, s{HWI}, 1")
        a(f"s_lshl_b32 s{T+4}, s{T+4}, 6")
        a(f"s_add_u32 s{W2O}, s{W2O}, s{T+4}")
        a(f"s_mul_i32 s{STB}, s{HWI}, 6144")
        a(f"s_add_u32 s{STB}, s{STB}, {STG}")
        a(f"v_lshrrev_b32 v13, 2, v{L}")
        a(f"v_lshlrev_b32 v12, 10, v13")
        a(f"v_and_b32 v13, 3, v{L}")
        a(f"v_lshl_add_u32 v12, v13, 4, v12")
        tr_addr(a, 13, 0, 14, 15)
        a(f"v_add_u32 v13, s{STB}, v13")
    def R(r):
        fr = list(range(6*r, min(6*r + 6, 43)))
        for q, i in enumerate(fr):
            a(f"s_add_u32 m0, s{STB}, {q*1024}")
            a(f"s_add_u32 s{T+4}, s{W2O}, {i*16*1024}")
            a(f"buffer_load_dwordx4 v12, s[{S_W2}:{S_W2+3}], s{T+4} offen lds")
        I(f"R{r}", len(fr))
    def RD(r):
        fr = list(range(6*r, min(6*r + 6, 43)))
        a(f"s_waitcnt vmcnt({younger(f'R{r}')})")
        for q, i in enumerate(fr):
            d = W2R + 4*i
            a(f"ds_read_b64_tr_b16 v[{d}:{d+1}], v13 offset:{q*1024}")
            a(f"ds_read_b64_tr_b16 v[{d+2}:{d+3}], v13 offset:{q*1024+512}")
        a("s_waitcnt lgkmcnt(0)")
    def warm(mat, n):
        a(f"s_lshl_b32 s{T+4}, s{S_H}, 2")
        a(f"s_add_u32 s{T+4}, s{T+4}, s{HWI}")
        if mat in ("w1", "w2"):
            sr_ = S_W1 if mat == "w1" else S_W2
            a(f"s_mul_i32 s{T+5}, s{T+4}, 11008")
            a(f"s_and_b32 s{T+5}, s{T+5}, 0xffffff80")
            a(f"s_add_u32 s{T+5}, s{T+5}, {n*1024}")
            a(f"buffer_load_dwordx4 v[8:11], v{V_L16}, s[{sr_}:{sr_+3}], s{T+5} offen")
        else:
            a(f"s_lshl_b32 s{T+5}, s{T+4}, 12")
            a(f"s_add_u32 s{T+5}, s{T+5}, {n*1024}")
            a(f"buffer_load_dwordx4 v[8:11], v{V_L16}, s[{S_WO}:{S_WO+3}], s{T+5} offen")
        I("wm", 1)
    def pretouch(e, what="all"):
        a(f"s_lshl_b32 s{T+4}, s{S_H}, 3")
        a(f"s_lshl_b32 s{T+5}, s{HWI}, 1")
        a(f"s_add_u32 s{T+4}, s{T+4}, s{T+5}")
        a(f"s_add_u32 s{T+4}, s{T+4}, {e}")
        if what in ("all", "oh"):
            a(f"s_lshl_b32 s{T+5}, s{S_J}, 18")
            a(f"s_lshl_b32 s{T+6}, s{T+4}, 10")
            a(f"s_add_u32 s{T+5}, s{T+5}, s{T+6}")
            a(f"s_add_u32 s{T+6}, s{T+5}, {WS_OF}")
            a(f"buffer_load_dwordx4 v[8:11], v{V_L16}, {W}, s{T+6} offen")
            a(f"s_add_u32 s{T+6}, s{T+5}, {WS_HF}")
            a(f"buffer_load_dwordx4 v[8:11], v{V_L16}, {W}, s{T+6} offen")
            a(f"s_lshl_b32 s{T+5}, s{S_J}, 15")
            a(f"s_lshl_b32 s{T+6}, s{T+4}, 7")
            a(f"s_add_u32 s{T+5}, s{T+5}, s{T+6}")
            a(f"s_add_u32 s{T+5}, s{T+5}, {WS_HS3}")
            a("s_mov_b64 exec, 0xff")
            a(f"buffer_load_dwordx4 v[8:11], v{V_L16}, {W}, s{T+5} offen")
            a("s_mov_b64 exec, -1")
            I("pt", 3)
        if what in ("all", "g"):
            a(f"s_mul_i32 s{T+5}, s{S_J}, {8*86*1024}")
            a(f"s_mul_i32 s{T+6}, s{T+4}, 2752")
            a(f"s_and_b32 s{T+6}, s{T+6}, 0xffffff80")
            a(f"s_add_u32 s{T+5}, s{T+5}, s{T+6}")
            a(f"s_add_u32 s{T+5}, s{T+5}, {WS_GF}")
            for q in range(3):
                a(f"buffer_load_dwordx4 v[8:11], v{V_L16}, {W}, s{T+5} offen offset:{q*1024}")
            I("pt", 3)
    def small():
        a(f"s_and_b32 s{T+4}, s{S_H}, 7")
        a(f"s_lshl_b32 s{T+4}, s{T+4}, 7")
        a(f"s_lshr_b32 s{T+5}, s{HWI}, 1")
        a(f"s_lshl_b32 s{T+5}, s{T+5}, 6")
        a(f"s_add_u32 s{T+4}, s{T+4}, s{T+5}")
        a(f"v_lshrrev_b32 v3, 5, v{L}")
        a(f"v_lshlrev_b32 v3, 3, v3")
        for jp in range(4):
            a(f"buffer_load_dwordx2 v[{B2R+2*jp}:{B2R+2*jp+1}], v3, s[{S_B2}:{S_B2+3}], s{T+4} offen offset:{16*jp}")
        a(f"s_and_b32 s{T+4}, s{S_H}, 15")
        a(f"s_mul_i32 s{T+4}, s{T+4}, {8*21846}")
        a(f"s_lshr_b32 s{T+4}, s{T+4}, 16")
        a(f"s_lshl_b32 s{T+4}, s{T+4}, 6")
        a(f"v_lshlrev_b32 v2, 2, v{L}")
        a(f"buffer_load_dword v{B1R}, v2, s[{S_B1}:{S_B1+3}], s{T+4} offen")
        I("sm", 5)
    def B(k, need, st=None):
        a(f"s_waitcnt vmcnt({younger(need)})")
        bar(a, "h", f"B{k}")
        if st is not None: stamp(a, cfg, st)
    if 'early' in cfg.exp:
        import tail3
        tail3.roles(a)
        def WOp(lo, hi):
            for i in range(lo, hi): tail3.wo_dma(a, i)
            I("wo", hi - lo)
        def W1p(ks):
            for k in ks: tail3.w1_dma(a, k)
            I("w1", len(ks))
        kv(1); kv(2); kv(3); w2setup(); tail3.wo_w1_setup(a)
        B(0, "kv1", 10)
        kv(4)
        B(1, "kv2", 11)
        kv(5); small()
        B(2, "kv3", 9)
        kv(6)
        for n in range(11): warm("w2", n)
        B(3, "kv4", 12)
        R(0); kv(7); RD(0); R(1)
        B(4, "kv5")
        RD(1); R(2); RD(2); R(3)
        pretouch(0, "oh"); pretouch(1, "oh")
        B(5, "kv6")
        RD(3); R(4); WOp(0, 8); RD(4); R(5); WOp(8, 16)
        B(6, "kv7")
        RD(5); R(6); W1p(range(0, 8)); RD(6); R(7); W1p(range(8, 12))
        pretouch(0, "g"); pretouch(1, "g")
        a("s_nop 0")
        bar(a, "h", "B7")
        RD(7); W1p(range(12, 17))
        a("s_waitcnt vmcnt(0)")
        bar(a, "h", "TA")
        a(f"v_mov_b32 v2, {VOTE}")
        a("ds_read_b32 v3, v2")
        a("s_waitcnt lgkmcnt(0)")
        a("v_cmp_ne_u32 vcc, 0, v3")
        a("s_cbranch_vccz L3_h_go")
        a(f"s_cmp_ge_u32 s{S_W}, 0")
        for b in range(8):
            if b == 0:
                a(f"s_lshl_b32 s{T+4}, s{S_H}, 3")
                a(f"s_add_u32 s{T+4}, s{T+4}, s{S_J}")
                a(f"s_lshl_b32 s{T+4}, s{T+4}, 14")
                a(f"s_add_u32 s{T+4}, s{T+4}, s{T+2}")
                a(f"s_add_u32 s{T+4}, s{T+4}, {WS_KVL}")
            else:
                a(f"s_add_u32 s{T+4}, s{S_J}, {b}")
                a(f"s_and_b32 s{T+4}, s{T+4}, 7")
                a(f"s_lshl_b32 s{T+4}, s{T+4}, 14")
                a(f"s_add_u32 s{T+4}, s{T+4}, s{T}")
            kv4(T+4, b*16384)
        a("s_waitcnt vmcnt(0)")
        a("s_barrier")
        a("s_barrier")
        for i in range(16): tail3.wo_dma(a, i)
        for k in range(17): tail3.w1_dma(a, k)
        a("s_waitcnt vmcnt(0)")
        a("s_barrier")
        a.label("L3_h_go")
    elif 'sch2' in cfg.exp:
        kv(1); kv(2); kv(3); w2setup()
        B(0, "kv1", 10)
        kv(4)
        B(1, "kv2", 11)
        kv(5); small()
        B(2, "kv3", 9)
        kv(6)
        for n in range(11): warm("w2", n)
        B(3, "kv4", 12)
        R(0); kv(7); RD(0); R(1)
        B(4, "kv5")
        RD(1); R(2); RD(2); R(3)
        for n in range(11): warm("w1", n)
        B(5, "kv6")
        RD(3); R(4); RD(4); R(5)
        for n in range(4): warm("wo", n)
        pretouch(0); pretouch(1)
        B(6, "kv7")
        RD(5); R(6); RD(6); R(7)
        bar(a, "h", "B7")
        RD(7)
        bar(a, "h", "TA")
    else:
        kv(1); kv(2); kv(3); w2setup()
        B(0, "kv1", 10)
        kv(4); R(0)
        B(1, "kv2", 11)
        RD(0); kv(5); R(1); small()
        B(2, "kv3", 9)
        RD(1); kv(6); R(2)
        B(3, "kv4", 12)
        RD(2); kv(7); R(3)
        for n in range(6): warm("w1", n)
        B(4, "kv5")
        RD(3); R(4)
        for n in range(6, 11): warm("w1", n)
        for n in range(4): warm("wo", n)
        B(5, "kv6")
        RD(4); R(5); pretouch(0); pretouch(1)
        B(6, "kv7")
        RD(5); R(6)
        a("s_nop 0")
        bar(a, "h", "B7")
        RD(6); R(7); RD(7)
        bar(a, "h", "TA")
    return issued

def build_v3(a, cfg):
    bar = Bar()
    p1_end(a, cfg, bar)
    attn_cw(a, cfg, bar)
    import tail3
    tail3.tail_cw(a, cfg, bar)
    a("s_branch L3_done")
    attn_hw(a, cfg, bar)
    tail3.tail_hw(a, cfg, bar)
    bar.check()
    a.label("L3_done")
```

```python
import sys
from asmlib import *

NAME = "sequential_preLN__mha_block__dense_activation_squared_relu__prompt"
KNAME = NAME + "_kernel"

WS_EPOCH = 0x0
WS_KVFLAG = 0x1000
WS_LFLAG = 0x12000
WS_TFLAG = 0x10000
WS_KV = 0x100000
WS_OF = 0x500000
WS_HF = 0x700000
WS_GF = 0x900000
WS_QF = 0x1000000
WS_KVL = 0x1200000
WS_W2F = 0x1600000
WS_W2FLAG = 0x14000
WS_HST = 0xE80000
WS_STAMP = 0xF00000
WS_SIZE = 0x1800000

S_X, S_WQKV, S_WS, S_WO, S_W1, S_W2, S_OUT, S_B1, S_B2 = 4, 8, 12, 16, 20, 24, 28, 32, 36
S_DBG = 40
S_J, S_H, S_W, S_TAG, S_FAST = 42, 43, 44, 45, 46
S_RERUN = 47
S_VMASK = 48
S_T0 = 50
S_KA = 52
S_BLK = 74
S_XCC = 75
S_MODE = 99
S_A = 76
S_STAMP = 96
S_STB = 98

LDS_SIZE = 163840

class Cfg:
    stamps = False
    stop_after = None
    p1_prefetch = False
    p1_detail = False
    force_slow = False
    f2_detail = False
    at_detail = False
    dbgt = False
    rt = False
    v3 = True
    ustamps = False
    exp = 'rotj_nowl2_late23_S3_zrows_sch2_early'
    skip_p1 = False
    attn_variant = 1
    prio = 0

DBG_MAP = {40: 11, 41: 12, 0: 13, 4: 14, 18: 15, 1: 1, 2: 2, 14: 3, 12: 4, 8: 5, 16: 6, 19: 7, 21: 8, 22: 9, 24: 10}
def stamp(a, cfg, idx):
    if cfg.dbgt and idx in DBG_MAP:
        lab = f"L_dbg{idx}_{len(a.lines)}"
        a(f"s_lshl_b32 s{S_STAMP}, s{S_W}, 8")
        a(f"s_or_b32 s{S_STAMP}, s{S_STAMP}, s2")
        a(f"s_cmp_lg_u32 s{S_STAMP}, 41")
        a(f"s_cbranch_scc1 {lab}")
        a(f"s_memrealtime s[{S_STAMP}:{S_STAMP+1}]")
        a("s_waitcnt lgkmcnt(0)")
        if idx == 29: a(f"s_not_b32 s{S_STAMP}, s{S_STAMP}")
        a(f"v_mov_b32 v254, s{S_STAMP}")
        a(f"v_mov_b32 v255, {DBG_MAP[idx]*4}")
        a("s_mov_b64 exec, 1")
        a(f"global_atomic_umax v255, v254, s[{S_KA+18}:{S_KA+19}]")
        a("s_mov_b64 exec, -1")
        a.label(lab)
        return
    if not cfg.stamps: return
    a(f"{'s_memrealtime' if cfg.rt else 's_memtime'} s[{S_STAMP}:{S_STAMP+1}]")
    a("s_waitcnt lgkmcnt(0)")
    a(f"v_writelane_b32 v255, s{S_STAMP}, {idx}")

def stamp_flush(a, cfg):
    if not cfg.stamps: return
    a(f"s_memrealtime s[{S_STAMP}:{S_STAMP+1}]")
    a("s_waitcnt lgkmcnt(0)")
    a(f"v_writelane_b32 v255, s{S_STAMP}, 31")
    a(f"s_lshl_b32 s{S_STB}, s2, 3")
    a(f"s_add_u32 s{S_STB}, s{S_STB}, s{S_W}")
    a(f"s_lshl_b32 s{S_STB}, s{S_STB}, 7")
    a(f"s_add_u32 s{S_STB}, s{S_STB}, {WS_STAMP}")
    a(f"v_lshlrev_b32 v254, 2, v{V_LANE}")
    a("s_mov_b64 exec, 0xffffffff")
    a(f"buffer_store_dword v255, v254, s[{S_WS}:{S_WS+3}], s{S_STB} offen")
    a("s_mov_b64 exec, -1")

V_Q = 240
V_XRES = 244
V_B2 = 248
V_L16 = 252
V_LANE = 253

def srd(a, s, lo, hi, size):
    a(f"s_mov_b32 s{s}, s{lo}")
    a(f"s_mov_b32 s{s+1}, s{hi}")
    a(f"s_mov_b32 s{s+2}, {size}")
    a(f"s_mov_b32 s{s+3}, 0x00020000")

def prologue(a, cfg):
    a("s_cmp_ge_u32 s2, 256")
    a("s_cbranch_scc1 L_end")
    a(f"s_load_dwordx16 s[{S_KA}:{S_KA+15}], s[0:1], 0")
    a(f"s_load_dwordx4 s[{S_KA+16}:{S_KA+19}], s[0:1], 64")
    a(f"s_load_dwordx2 s[{S_KA+20}:{S_KA+21}], s[0:1], 80")
    a(f"v_and_b32 v{V_LANE}, 63, v0")
    a("v_lshrrev_b32 v2, 6, v0")
    a(f"v_lshlrev_b32 v{V_L16}, 4, v{V_LANE}")
    a(f"v_readfirstlane_b32 s{S_W}, v2")
    a(f"s_and_b32 s{S_J}, s2, 7")
    a(f"s_lshr_b32 s{S_H}, s2, 3")
    a(f"s_mov_b32 s{S_VMASK}, 0x0000ffff")
    a(f"s_mov_b32 s{S_VMASK+1}, 0x0000ffff")
    a(f"s_getreg_b32 s{S_XCC}, hwreg(HW_REG_XCC_ID, 0, 4)")
    a(f"s_mov_b32 s{S_RERUN}, 0")
    if cfg.dbgt: a(f"s_memrealtime s[90:91]")
    if cfg.stamps:
        a(f"s_memrealtime s[{S_STAMP}:{S_STAMP+1}]")
        a("s_waitcnt lgkmcnt(0)")
        a(f"v_writelane_b32 v255, s{S_STAMP}, 30")
        stamp(a, cfg, 29)

P1_SLOT = 32768
P1_MISC = 131072
P1_CS = P1_MISC
P1_ST = P1_MISC + 4096
P1_PR = P1_MISC + 1024
P1_CSV = P1_MISC + 512
S_G, S_Q4, S_AH, S_TT = 100, 101, 3, 51

def phase1(a, cfg):
    L = V_LANE
    T = S_A
    TMP, TMP2, XO, WO_, M0B = T+9, T+10, T+4, T+1, T+2
    a(f"s_lshr_b32 s{S_G}, s{S_H}, 2")
    a(f"s_and_b32 s{S_Q4}, s{S_H}, 3")
    a(f"s_and_b32 s{S_AH}, s{S_W}, 3")
    a(f"s_lshr_b32 s{S_TT}, s{S_W}, 2")
    a(f"v_lshrrev_b32 v10, 3, v{L}")
    a(f"v_and_b32 v11, 7, v{L}")
    a(f"v_lshrrev_b32 v12, 4, v{L}")
    a(f"s_and_b32 s{TMP}, s{S_W}, 1")
    a(f"s_lshl_b32 s{TMP}, s{TMP}, 2")
    a(f"v_add_u32 v13, s{TMP}, v12")
    a(f"v_xor_b32 v13, v11, v13")
    a(f"v_lshlrev_b32 v13, 4, v13")
    a(f"v_lshl_add_u32 v2, v10, 10, v13")
    a(f"v_mul_u32_u24 v10, 3072, v10")
    a(f"v_and_b32 v12, 1, v12")
    a(f"v_lshrrev_b32 v13, 1, v11")
    a(f"v_and_b32 v14, 1, v11")
    a(f"v_lshl_add_u32 v10, v14, 4, v10")
    a(f"v_xor_b32 v14, v13, v12")
    a(f"v_lshl_add_u32 v3, v14, 5, v10")
    a(f"v_xor_b32 v14, 2, v14")
    a(f"v_lshl_add_u32 v4, v14, 5, v10")
    a(f"v_add_u32 v4, 1024, v4")
    a(f"v_lshlrev_b32 v12, 1, v12")
    a(f"v_xor_b32 v14, v13, v12")
    a(f"v_lshl_add_u32 v5, v14, 5, v10")
    a(f"v_add_u32 v5, 2048, v5")
    a(f"s_lshl_b32 s{XO}, s{S_J}, 8")
    a(f"s_lshl_b32 s{TMP}, s{S_Q4}, 6")
    a(f"s_add_u32 s{XO}, s{XO}, s{TMP}")
    a(f"s_lshl_b32 s{TMP}, s{S_W}, 3")
    a(f"s_add_u32 s{XO}, s{XO}, s{TMP}")
    a(f"s_lshl_b32 s{XO}, s{XO}, 10")
    a(f"s_mul_i32 s{WO_}, s{TMP}, 3072")
    a(f"s_lshl_b32 s{TMP}, s{S_G}, 7")
    a(f"s_add_u32 s{WO_}, s{WO_}, s{TMP}")
    a(f"s_lshl_b32 s{M0B}, s{S_W}, 10")
    a("s_waitcnt lgkmcnt(0)")
    k = S_KA
    srd(a, S_X, k, k+1, 2097152)
    srd(a, S_WQKV, k+2, k+3, 1572864)
    srd(a, S_WS, k+20, k+21, WS_SIZE)
    if cfg.dbgt:
        a(f"s_lshl_b32 s{S_STAMP}, s{S_W}, 8")
        a(f"s_or_b32 s{S_STAMP}, s{S_STAMP}, s2")
        a(f"s_cmp_lg_u32 s{S_STAMP}, 41")
        a("s_cbranch_scc1 L_dbgstart")
        a("s_not_b32 s90, s90")
        a("v_mov_b32 v254, s90")
        a("v_mov_b32 v255, 0")
        a("s_mov_b64 exec, 1")
        a(f"global_atomic_umax v255, v254, s[{S_KA+18}:{S_KA+19}]")
        a("s_mov_b64 exec, -1")
        a.label("L_dbgstart")
        stamp(a, cfg, 40)
    C0 = T+12
    if 'rotg' in cfg.exp: a(f"s_mov_b32 s{C0}, s{S_G}")
    elif 'rot0' in cfg.exp: a(f"s_mov_b32 s{C0}, 0")
    elif 'rotj' in cfg.exp: a(f"s_mov_b32 s{C0}, s{S_J}")
    elif 'rotk' in cfg.exp:
        a(f"s_add_u32 s{C0}, s{S_J}, s{S_G}")
    else:
        a(f"s_lshl_b32 s{C0}, s{S_Q4}, 1")
        a(f"s_add_u32 s{C0}, s{C0}, s{S_G}")
    NT = 'nt ' if 'nt1' in cfg.exp else ''
    def group(c):
        base = (c % 4) * P1_SLOT
        a(f"s_add_u32 s{TMP2}, s{C0}, {c}")
        a(f"s_and_b32 s{TMP2}, s{TMP2}, 7")
        a(f"s_lshl_b32 s{TMP}, s{TMP2}, 7")
        a(f"s_add_u32 s{TMP}, s{TMP}, s{XO}")
        a(f"s_add_u32 m0, s{M0B}, {base}")
        a(f"s_mul_i32 s{TMP2}, s{TMP2}, {64*3072}")
        a(f"buffer_load_dwordx4 v2, s[{S_X}:{S_X+3}], s{TMP} offen {NT}lds")
        a(f"s_add_u32 m0, s{M0B}, {base+8192}")
        a(f"s_add_u32 s{TMP}, s{WO_}, s{TMP2}")
        a(f"buffer_load_dwordx4 v3, s[{S_WQKV}:{S_WQKV+3}], s{TMP} offen {NT}lds")
        a(f"s_add_u32 m0, s{M0B}, {base+16384}")
        a("s_nop 0")
        a(f"buffer_load_dwordx4 v4, s[{S_WQKV}:{S_WQKV+3}], s{TMP} offen {NT}lds")
        a(f"s_add_u32 m0, s{M0B}, {base+24576}")
        a("s_nop 0")
        a(f"buffer_load_dwordx4 v5, s[{S_WQKV}:{S_WQKV+3}], s{TMP} offen {NT}lds")
    SPN = [0]
    def sib_prefetch_l(c):
        SPN[0] += 1
        sib_prefetch(f"{c}", c, SPN[0])
    def sib_prefetch(_, c, u):
        a(f"s_add_u32 s{TMP2}, s{C0}, {c}")
        a(f"s_and_b32 s{TMP2}, s{TMP2}, 7")
        a(f"s_cmp_ge_u32 s{S_W}, 6")
        a(f"s_cbranch_scc1 L_sp{u}_x")
        a(f"s_mul_i32 s{TMP}, s{S_Q4}, 6")
        a(f"s_add_u32 s{TMP}, s{TMP}, s{S_W}")
        a(f"s_mul_i32 s{TMP2}, s{TMP2}, {64*3072}")
        a(f"s_and_b32 s{T+13}, s{TMP}, 7")
        a(f"s_mul_i32 s{T+13}, s{T+13}, {8*3072}")
        a(f"s_add_u32 s{TMP2}, s{TMP2}, s{T+13}")
        a(f"s_lshr_b32 s{TMP}, s{TMP}, 3")
        a(f"s_lshl_b32 s{TMP}, s{TMP}, 10")
        a(f"s_add_u32 s{TMP2}, s{TMP2}, s{TMP}")
        a(f"s_lshl_b32 s{TMP}, s{S_G}, 7")
        a(f"s_add_u32 s{TMP2}, s{TMP2}, s{TMP}")
        a(f"buffer_load_dwordx4 v[40:43], v47, s[{S_WQKV}:{S_WQKV+3}], s{TMP2} offen")
        a(f"s_branch L_sp{u}_d")
        a.label(f"L_sp{u}_x")
        a(f"s_lshl_b32 s{TMP2}, s{TMP2}, 7")
        a(f"s_lshl_b32 s{TMP}, s{S_J}, 8")
        a(f"s_lshl_b32 s{T+13}, s{S_Q4}, 6")
        a(f"s_add_u32 s{TMP}, s{TMP}, s{T+13}")
        a(f"s_lshl_b32 s{T+13}, s{S_G}, 3")
        a(f"s_add_u32 s{TMP}, s{TMP}, s{T+13}")
        a(f"s_lshl_b32 s{TMP}, s{TMP}, 10")
        a(f"s_add_u32 s{TMP2}, s{TMP2}, s{TMP}")
        a(f"buffer_load_dwordx4 v[40:43], v46, s[{S_X}:{S_X+3}], s{TMP2} offen")
        a.label(f"L_sp{u}_d")
    if 'roll' in cfg.exp:
        a(f"v_lshrrev_b32 v47, 3, v{L}")
        a(f"v_and_b32 v46, 7, v{L}")
        a(f"v_lshlrev_b32 v46, 4, v46")
        a(f"v_lshl_add_u32 v45, v47, 10, v46")
        a(f"v_mul_u32_u24 v47, 3072, v47")
        a(f"v_add_u32 v47, v47, v46")
        a(f"v_mov_b32 v46, v45")
    a("v_mov_b32 v30, 0")
    a(f"buffer_load_dword v31, v30, s[{S_WS}:{S_WS+3}], 0 offen")
    group(0)
    if 'g0only' in cfg.exp:
        stamp(a, cfg, 0)
        a("s_waitcnt vmcnt(3)"); stamp(a, cfg, 2)
        a("s_waitcnt vmcnt(2)"); stamp(a, cfg, 3)
        a("s_waitcnt vmcnt(0)"); stamp(a, cfg, 4)
        a("s_barrier"); stamp(a, cfg, 1)
        return
    if cfg.p1_prefetch:
        a(f"s_cmp_ge_u32 s{S_W}, 6")
        a("s_cbranch_scc1 L_p1_pfx")
        a(f"s_and_b32 s{TMP}, s{S_W}, 1")
        a(f"s_lshl_b32 s{TMP}, s{TMP}, 6")
        a(f"s_lshl_b32 s{TMP2}, s{S_Q4}, 7")
        a(f"s_add_u32 s{TMP}, s{TMP}, s{TMP2}")
        a(f"s_mul_i32 s{TMP}, s{TMP}, 3072")
        a(f"s_lshr_b32 s{TMP2}, s{S_W}, 1")
        a(f"s_lshl_b32 s{TMP2}, s{TMP2}, 10")
        a(f"s_add_u32 s{TMP}, s{TMP}, s{TMP2}")
        a(f"s_lshl_b32 s{TMP2}, s{S_G}, 7")
        a(f"s_add_u32 s{TMP}, s{TMP}, s{TMP2}")
        a(f"v_mul_u32_u24 v40, 3072, v{L}")
        a(f"buffer_load_dword v41, v40, s[{S_WQKV}:{S_WQKV+3}], s{TMP} offen")
        a(f"buffer_load_dword v42, v40, s[{S_WQKV}:{S_WQKV+3}], s{TMP} offen offset:64")
        a("s_branch L_p1_pfd")
        a.label("L_p1_pfx")
        a(f"s_lshl_b32 s{TMP}, s{S_J}, 8")
        a(f"s_lshl_b32 s{TMP2}, s{S_Q4}, 6")
        a(f"s_add_u32 s{TMP}, s{TMP}, s{TMP2}")
        a(f"s_lshl_b32 s{TMP2}, s{S_G}, 3")
        a(f"s_add_u32 s{TMP}, s{TMP}, s{TMP2}")
        a(f"s_lshl_b32 s{TMP}, s{TMP}, 10")
        a(f"v_lshlrev_b32 v40, 7, v{L}")
        a(f"buffer_load_dword v41, v40, s[{S_X}:{S_X+3}], s{TMP} offen")
        a(f"buffer_load_dword v42, v40, s[{S_X}:{S_X+3}], s{TMP} offen offset:64")
        a.label("L_p1_pfd")
    if 'nowl2' not in cfg.exp:
        a(f"s_lshl_b32 s{TMP}, s{S_H}, 3")
        a(f"s_add_u32 s{TMP}, s{TMP}, s{S_W}")
        a(f"s_mul_i32 s{TMP}, s{TMP}, 6144")
        for i in range(4):
            a(f"buffer_load_dwordx4 v[40:43], v{V_L16}, s[{S_WQKV}:{S_WQKV+3}], s{TMP} offen offset:{i*1024}")
        a(f"s_add_u32 s{TMP}, s{TMP}, 4096")
        for i in range(2):
            a(f"buffer_load_dwordx4 v[40:43], v{V_L16}, s[{S_WQKV}:{S_WQKV+3}], s{TMP} offen offset:{i*1024}")
        a(f"s_lshl_b32 s{TMP}, s{S_J}, 8")
        a(f"s_lshl_b32 s{TMP2}, s{S_Q4}, 6")
        a(f"s_add_u32 s{TMP}, s{TMP}, s{TMP2}")
        a(f"s_lshl_b32 s{TMP2}, s{S_G}, 3")
        a(f"s_add_u32 s{TMP}, s{TMP}, s{TMP2}")
        a(f"s_add_u32 s{TMP}, s{TMP}, s{S_W}")
        a(f"s_lshl_b32 s{TMP}, s{TMP}, 10")
        a(f"buffer_load_dwordx4 v[40:43], v{V_L16}, s[{S_X}:{S_X+3}], s{TMP} offen")
    a("s_barrier")
    if cfg.dbgt: stamp(a, cfg, 41)
    if 'nowl2' in cfg.exp: group(1)
    if 'roll' in cfg.exp:
        sib_prefetch_l(4); sib_prefetch_l(5)
    if 'sibpf' in cfg.exp:
        a(f"s_add_u32 s{TMP2}, s{C0}, s{S_Q4}")
        a(f"s_add_u32 s{TMP2}, s{TMP2}, 4")
        a(f"s_and_b32 s{TMP2}, s{TMP2}, 7")
        a(f"s_mul_i32 s{TMP2}, s{TMP2}, {64*3072}")
        a(f"s_add_u32 s{TMP}, s{WO_}, s{TMP2}")
        for vv in (3, 4, 5):
            a(f"buffer_load_dwordx4 v[40:43], v{vv}, s[{S_WQKV}:{S_WQKV+3}], s{TMP} offen")
        a(f"s_add_u32 s{TMP2}, s{C0}, s{S_G}")
        a(f"s_and_b32 s{TMP2}, s{TMP2}, 7")
        a(f"s_lshl_b32 s{TMP}, s{TMP2}, 7")
        a(f"s_add_u32 s{TMP}, s{TMP}, s{XO}")
        a(f"buffer_load_dwordx4 v[40:43], v2, s[{S_X}:{S_X+3}], s{TMP} offen")
    a(f"v_and_b32 v20, 31, v{L}")
    a(f"v_lshrrev_b32 v21, 5, v{L}")
    a(f"v_bfe_u32 v22, v{L}, 1, 3")
    a(f"v_xor_b32 v22, v21, v22")
    a(f"v_lshlrev_b32 v22, 4, v22")
    a(f"v_lshl_add_u32 v22, v20, 7, v22")
    a(f"s_lshl_b32 s{TMP}, s{S_TT}, 12")
    a(f"v_add_u32 v8, s{TMP}, v22")
    a(f"v_xor_b32 v9, 32, v8")
    a(f"v_xor_b32 v10, 64, v8")
    a(f"v_xor_b32 v11, 96, v8")
    a(f"s_lshl_b32 s{TMP}, s{S_AH}, 5")
    a(f"v_xor_b32 v7, s{TMP}, v8")
    a(f"v_bfe_u32 v20, v{L}, 2, 2")
    a(f"v_lshl_add_u32 v23, v21, 3, v20")
    a(f"v_lshlrev_b32 v23, 7, v23")
    a(f"v_and_b32 v22, 3, v{L}")
    a(f"v_lshl_add_u32 v23, v22, 3, v23")
    a(f"v_bfe_u32 v24, v{L}, 3, 1")
    a(f"v_bfe_u32 v25, v{L}, 4, 1")
    a(f"v_lshlrev_b32 v26, 1, v25")
    a(f"v_xor_b32 v26, v26, v24")
    a(f"v_xor_b32 v26, s{S_AH}, v26")
    a(f"v_lshl_add_u32 v12, v26, 5, v23")
    a(f"v_lshl_add_u32 v12, v25, 13, v12")
    a(f"v_add_u32 v12, 8192, v12")
    a(f"s_and_b32 s{TMP}, s{S_AH}, 2")
    a(f"v_lshlrev_b32 v26, 1, v24")
    a(f"v_or_b32 v25, s{TMP}, v25")
    a(f"v_xor_b32 v26, v26, v25")
    a(f"v_lshl_add_u32 v13, v26, 5, v23")
    a(f"v_add_u32 v13, 24576, v13")
    a("v_mov_b32 v18, 0x3f803f80")
    for r in (14, 15, 16, 17, 22, 23): a(f"v_mov_b32 v{r}, 0")
    for r in range(48, 80): a(f"v_mov_b32 v{r}, 0")
    if 'nowl2' in cfg.exp and 'late23' not in cfg.exp:
        a("s_barrier")
        group(2); group(3)
    if 'tlb' in cfg.exp:
        a(f"s_cmp_lg_u32 s{S_W}, 7")
        a("s_cbranch_scc1 L_p1_notlb")
        a(f"v_lshlrev_b32 v40, 14, v{L}")
        a(f"s_lshl_b32 s{TMP}, s{S_H}, 20")
        a(f"buffer_load_dword v42, v40, s[{S_WS}:{S_WS+3}], s{TMP} offen")
        a(f"v_lshlrev_b32 v40, 10, v{L}")
        a(f"s_lshl_b32 s{TMP}, s{S_H}, 16")
        a(f"buffer_load_dword v43, v40, s[{S_KA+16}:{S_KA+19}], s{TMP} offen") if False else None
        a.label("L_p1_notlb")
    NPT = 5 if 'ptkv' in cfg.exp else 3
    a(f"s_cmp_ge_u32 s{S_W}, {NPT}")
    a("s_cbranch_scc1 L_p1_nopt")
    a(f"s_lshl_b32 s{TMP}, s{S_H}, 3")
    a(f"s_add_u32 s{TMP}, s{TMP}, s{S_J}")
    a(f"s_lshl_b32 s{TMP2}, s{TMP}, 14")
    a(f"s_lshl_b32 s{TMP}, s{TMP}, 13")
    a(f"s_add_u32 s{TMP}, s{TMP}, {WS_QF}")
    a(f"s_cmp_eq_u32 s{S_W}, 0")
    a("s_cbranch_scc1 L_p1_ptgo")
    a(f"s_sub_u32 s{TMP}, s{S_W}, 1")
    a(f"s_and_b32 s{T+13}, s{TMP}, 1")
    a(f"s_lshl_b32 s{T+13}, s{T+13}, 13")
    a(f"s_add_u32 s{TMP2}, s{TMP2}, s{T+13}")
    a(f"s_cmp_lt_u32 s{TMP}, 2")
    a(f"s_mov_b32 s{TMP}, {WS_KV}")
    a(f"s_cselect_b32 s{TMP}, {WS_KVL}, s{TMP}")
    a(f"s_add_u32 s{TMP}, s{TMP}, s{TMP2}")
    a.label("L_p1_ptgo")
    a(f"v_lshlrev_b32 v44, 7, v{L}")
    a(f"buffer_load_dword v45, v44, s[{S_WS}:{S_WS+3}], s{TMP} offen")
    a.label("L_p1_nopt")
    a(f"s_lshl_b32 s92, s{S_G}, 2")
    a(f"s_add_u32 s92, s92, s{S_AH}")
    a(f"s_lshl_b32 s92, s92, 3")
    a(f"s_add_u32 s92, s92, s{S_J}")
    a(f"s_lshl_b32 s93, s{S_Q4}, 1")
    a(f"s_add_u32 s93, s93, s{S_TT}")
    a(f"s_lshl_b32 s93, s93, 10")
    a(f"s_lshl_b32 s94, s92, 14")
    a(f"s_add_u32 s94, s94, s93")
    a(f"s_lshl_b32 s92, s92, 13")
    a(f"s_add_u32 s92, s92, s93")
    a(f"s_add_u32 s92, s92, {WS_QF}")
    a(f"s_add_u32 s93, s94, {WS_KVL}")
    a(f"s_add_u32 s94, s94, {WS_KV}")
    a(f"v_bfe_u32 v144, v{L}, 4, 1")
    a(f"s_and_b32 s{TMP2}, s{S_AH}, 1")
    a(f"v_subrev_u32 v144, s{TMP2}, v144")
    a(f"v_lshlrev_b32 v144, 17, v144")
    a(f"v_and_b32 v145, 15, v{L}")
    a(f"v_lshlrev_b32 v145, 4, v145")
    a(f"v_lshrrev_b32 v146, 5, v{L}")
    a(f"v_lshl_add_u32 v145, v146, 8, v145")
    a(f"v_add_u32 v144, v144, v145")
    a(f"v_add_u32 v144, {8192 + 0x20000}, v144")
    srd(a, S_WO, k+4, k+5, 524288)
    srd(a, S_W1, k+8, k+9, 1409024)
    srd(a, S_B1, k+10, k+11, 2752)
    srd(a, S_W2, k+12, k+13, 1409024)
    srd(a, S_B2, k+14, k+15, 1024)
    srd(a, S_OUT, k+16, k+17, 2097152)
    a(f"s_mov_b32 s{S_DBG}, s{k+18}")
    a(f"s_mov_b32 s{S_DBG+1}, s{k+19}")
    if 'tlb' in cfg.exp:
        a(f"s_cmp_lg_u32 s{S_W}, 6")
        a("s_cbranch_scc1 L_p1_notlb2")
        a(f"v_lshlrev_b32 v40, 10, v{L}")
        a(f"s_lshl_b32 s{TMP}, s{S_H}, 16")
        for srd_, dst in ((S_OUT, 42), (S_W1, 43), (S_W2, 44), (S_WO, 45)):
            a(f"buffer_load_dword v{dst}, v40, s[{srd_}:{srd_+3}], s{TMP} offen")
        a.label("L_p1_notlb2")
    stamp(a, cfg, 0)
    a(f"s_waitcnt vmcnt({((4 if 'late23' in cfg.exp else 12) + (4 if 'sibpf' in cfg.exp else 0) + (2 if 'roll' in cfg.exp else 0)) if 'nowl2' in cfg.exp else 7})")
    a(f"v_readfirstlane_b32 s{S_TAG}, v31")
    a("s_waitcnt lgkmcnt(0)")
    a(f"s_mul_i32 s{S_TAG}, s{S_TAG}, 1664525")
    a(f"s_add_u32 s{S_TAG}, s{S_TAG}, 1013904223")
    a("s_barrier")
    stamp(a, cfg, 1)
    XB = [80 + 4*i for i in range(4)]
    XS = 96
    WQ = [112 + 8*i for i in range(4)]; WVr = [116 + 8*i for i in range(4)]
    def reads_l(c, ks, owner):
        o = (c % 4) * P1_SLOT
        L_ = []
        L_.append(f"ds_read_b128 v[{XB[ks]}:{XB[ks]+3}], v{8+ks} offset:{o % 65536}" if o < 65536 else f"ds_read_b128 v[{XB[ks]}:{XB[ks]+3}], v{148+ks} offset:{o-65536}")
        qa = 12 if o < 65536 else 152
        oo = (o % 65536) + ks*2048
        L_.append(f"ds_read_b64_tr_b16 v[{WQ[ks]}:{WQ[ks]+1}], v{qa} offset:{oo}")
        L_.append(f"ds_read_b64_tr_b16 v[{WQ[ks]+2}:{WQ[ks]+3}], v{qa} offset:{oo+512}")
        if owner:
            va = 13 if o < 65536 else 153
            L_.append(f"ds_read_b64_tr_b16 v[{WVr[ks]}:{WVr[ks]+1}], v{va} offset:{oo}")
            L_.append(f"ds_read_b64_tr_b16 v[{WVr[ks]+2}:{WVr[ks]+3}], v{va} offset:{oo+512}")
        return L_
    def reads(c, ks, owner):
        for i_ in reads_l(c, ks, owner): a(i_)
    ONES = 156; CSV = 160
    def sread_l(c, owner):
        o = (c % 4) * P1_SLOT
        xs = XS + 4 * (c % 2)
        L_ = [f"ds_read_b128 v[{xs}:{xs+3}], v{7 if o < 65536 else 154} offset:{o % 65536}"]
        if not owner:
            va = 6 if o < 65536 else 155
            for q in range(2):
                b = 176 + 8 * (c % 2) + 4 * q
                L_.append(f"ds_read_b64_tr_b16 v[{b}:{b+1}], v{va} offset:{(o % 65536) + q*2048}")
                L_.append(f"ds_read_b64_tr_b16 v[{b+2}:{b+3}], v{va} offset:{(o % 65536) + q*2048 + 512}")
        return L_
    def sread(c, owner):
        for i_ in sread_l(c, owner): a(i_)
    def stats_l(c, r):
        t = 36 + 2 * (r & 1)
        xs = XS + 4 * (c % 2)
        return [f"v_lshlrev_b32 v{t}, 16, v{xs+r}", f"v_and_b32 v{t+1}, 0xffff0000, v{xs+r}", f"v_fmac_f32 v14, v{t}, v{t}",
                f"v_add_f32 v22, v22, v{t}", f"v_fmac_f32 v15, v{t+1}, v{t+1}", f"v_add_f32 v23, v23, v{t+1}"]
    def compute(c, ks, owner, fill):
        x = XB[ks]
        M = [f"v_mfma_f32_32x32x16_bf16 v[48:63], v[{WQ[ks]}:{WQ[ks]+3}], v[{x}:{x+3}], v[48:63]"]
        if owner:
            M.append(f"v_mfma_f32_32x32x16_bf16 v[64:79], v[{x}:{x+3}], v[{WVr[ks]}:{WVr[ks]+3}], v[64:79]")
        else:
            M.append(f"v_mfma_f32_32x32x16_bf16 v[64:79], v[{WQ[ks]}:{WQ[ks]+3}], v[{ONES}:{ONES+3}], v[64:79]")
            if ks < 2:
                b = 176 + 8 * (c % 2) + 4 * ks
                M.append(f"v_mfma_f32_32x32x16_bf16 v[{CSV}:{CSV+15}], v[{ONES}:{ONES+3}], v[{b}:{b+3}], v[{CSV}:{CSV+15}]")
        F = list(fill) + stats_l(c, ks)
        k_ = len(M)
        per = (len(F) + k_ - 1) // k_
        for i_, m_ in enumerate(M):
            a(m_)
            for f_ in F[i_*per:(i_+1)*per]:
                if callable(f_): f_()
                else: a(f_)
    a(f"s_and_b32 s{TMP}, s{S_AH}, 1")
    a(f"s_lshl_b32 s{TMP}, s{TMP}, 12")
    a(f"v_add_u32 v6, s{TMP}, v13")
    for i in range(4): a(f"v_add_u32 v{148+i}, 0x10000, v{8+i}")
    a("v_add_u32 v152, 0x10000, v12")
    a("v_add_u32 v153, 0x10000, v13")
    a("v_add_u32 v154, 0x10000, v7")
    a("v_add_u32 v155, 0x10000, v6")
    for r in range(4): a(f"v_mov_b32 v{ONES+r}, 0x3f803f80")
    for r in range(16): a(f"v_mov_b32 v{CSV+r}, 0")
    a(f"s_cmp_lg_u32 s{S_W}, 0")
    a("s_cbranch_scc1 L_p1_nohello")
    a(f"s_lshl_b32 s{TMP}, s{S_J}, 7")
    a(f"s_lshl_b32 s{TMP2}, s{S_H}, 2")
    a(f"s_add_u32 s{TMP}, s{TMP}, s{TMP2}")
    a(f"s_add_u32 s{TMP}, s{TMP}, {WS_TFLAG}")
    a(f"s_add_u32 s{TMP2}, s{S_TAG}, s{S_XCC}")
    a(f"s_add_u32 s{TMP2}, s{TMP2}, 1")
    a(f"v_mov_b32 v28, s{TMP2}")
    a("v_mov_b32 v29, 0")
    a("s_mov_b64 exec, 1")
    a(f"buffer_store_dword v28, v29, s[{S_WS}:{S_WS+3}], s{TMP} offen sc1")
    a("s_mov_b64 exec, -1")
    a.label("L_p1_nohello")
    a(f"s_and_b32 s{TMP}, s{S_AH}, 1")
    a(f"s_cmp_eq_u32 s{TMP}, s{S_TT}")
    a("s_cbranch_scc0 L_p1_nonowner")
    for owner in (True, False):
        n = 5 if owner else 3
        m = 1 if owner else 5
        if not owner: a.label("L_p1_nonowner")
        sread(0, owner); reads(0, 0, owner); reads(0, 1, owner)
        roll = 'roll' in cfg.exp
        RL = 5 if 'roll5' in cfg.exp else 6
        vm = ['g0']*4 + ['g1']*4
        if roll: vm += ['sp'] * 2
        def yng(name): return len(vm) - 1 - max(i for i, x in enumerate(vm) if x == name)
        for c in range(8):
            last = c == 7
            a(f"s_waitcnt lgkmcnt({n})")
            l23 = c == 0 and 'late23' in cfg.exp
            f0 = []
            if l23: f0.append(lambda: group(2)); vm += ['g2']*4
            compute(c, 0, owner, f0 + reads_l(c, 2, owner))
            a(f"s_waitcnt lgkmcnt({n})")
            f1 = []
            if l23: f1.append(lambda: group(3)); vm += ['g3']*4
            if roll and c + RL <= 7:
                f1.append((lambda cc: (lambda: sib_prefetch_l(cc)))(c + RL)); vm += ['sp']
            compute(c, 1, owner, f1 + reads_l(c, 3, owner))
            if not last:
                a(f"s_waitcnt vmcnt({yng(f'g{c+1}')}) lgkmcnt({n})")
                if 'nobar' not in cfg.exp: a("s_barrier")
                compute(c, 2, owner, sread_l(c + 1, owner) + reads_l(c + 1, 0, owner))
                a(f"s_waitcnt lgkmcnt({m+n})")
                fill = reads_l(c + 1, 1, owner)
                if c >= 1 and c + 3 <= 7 and 'nodma' not in cfg.exp:
                    fill = fill + [(lambda cc: (lambda: group(cc)))(c + 3)]
                    vm += [f'g{c+3}']*4
                if c == 4:
                    def hello_load():
                        a(f"s_lshl_b32 s{TMP}, s{S_J}, 7")
                        a(f"s_add_u32 s{TMP}, s{TMP}, {WS_TFLAG}")
                        a(f"v_and_b32 v28, 31, v{L}")
                        a("v_lshlrev_b32 v28, 2, v28")
                        a(f"buffer_load_dword v29, v28, s[{S_WS}:{S_WS+3}], s{TMP} offen sc1")
                    fill = fill + [hello_load]; vm += ['hl']
                compute(c, 3, owner, fill)
            else:
                a(f"s_waitcnt lgkmcnt({n})")
                compute(c, 2, owner, [])
                a("s_waitcnt lgkmcnt(0)")
                compute(c, 3, owner, [])
        if owner: a("s_branch L_p1_joined")
    a.label("L_p1_joined")
    stamp(a, cfg, 2)
    p1_epilogue(a, cfg)

def p1_epilogue(a, cfg):
    L = V_LANE
    T = S_A
    TMP, TMP2 = T+9, T+10
    a(f"v_lshrrev_b32 v21, 5, v{L}")
    a("v_add_f32 v22, v22, v23")
    a("v_add_f32 v16, v14, v15")
    a(f"v_and_b32 v25, 31, v{L}")
    a("v_mov_b32 v23, v22")
    a("v_mov_b32 v17, v16")
    a(f"v_lshlrev_b32 v25, 2, v25")
    a(f"s_lshl_b32 s{TMP}, s{S_TT}, 10")
    a("v_permlane32_swap_b32 v22, v23")
    a("v_permlane32_swap_b32 v16, v17")
    a(f"s_add_u32 s{TMP}, s{TMP}, {P1_ST}")
    a(f"v_lshl_add_u32 v26, v25, 1, s{TMP}")
    a(f"s_lshl_b32 s{TMP2}, s{S_AH}, 8")
    a(f"v_add_u32 v27, s{TMP2}, v26")
    a("v_add_f32 v22, v22, v23")
    a("v_add_f32 v23, v16, v17")
    a("s_mov_b64 exec, 0xffffffff")
    a("ds_write_b64 v27, v[22:23]")
    a(f"s_and_b32 s{TMP2}, s{S_AH}, 1")
    a(f"s_cmp_eq_u32 s{TMP2}, s{S_TT}")
    a("s_cbranch_scc1 L_p1_e1")
    a(f"s_lshl_b32 s{TMP}, s{S_AH}, 7")
    a(f"s_add_u32 s{TMP}, s{TMP}, {P1_CSV}")
    a(f"v_add_u32 v27, s{TMP}, v25")
    a("ds_write_b32 v27, v160")
    a(f"s_lshl_b32 s{TMP}, s{S_AH}, 7")
    a(f"s_add_u32 s{TMP}, s{TMP}, {P1_CS}")
    a("s_mov_b64 exec, -1")
    a(f"v_lshlrev_b32 v27, 4, v21")
    a(f"v_add_u32 v27, s{TMP}, v27")
    a("s_mov_b32 exec_lo, 1")
    a("s_mov_b32 exec_hi, 1")
    for jj in range(4):
        a(f"ds_write_b128 v27, v[{64+4*jj}:{67+4*jj}] offset:{jj*32}")
    a.label("L_p1_e1")
    a("s_mov_b64 exec, -1")
    a(f"s_lshl_b32 s{TMP}, s{S_J}, 7")
    a(f"s_add_u32 s{TMP}, s{TMP}, {WS_TFLAG}")
    a(f"s_add_u32 s{TMP2}, s{S_TAG}, 1")
    a(f"s_mov_b32 s{T+11}, 0")
    a("s_waitcnt vmcnt(0)")
    a.label("L_p1_hchk")
    a(f"v_subrev_u32 v29, s{TMP2}, v29")
    a("v_cmp_lt_u32 vcc, 15, v29")
    a("s_cbranch_vccz L_p1_hok")
    a(f"s_add_u32 s{T+11}, s{T+11}, 1")
    a(f"s_cmp_gt_u32 s{T+11}, 0x100000")
    a("s_cbranch_scc1 L_p1_hok")
    a(f"buffer_load_dword v29, v28, s[{S_WS}:{S_WS+3}], s{TMP} offen sc1")
    a("s_waitcnt vmcnt(0)")
    a("s_branch L_p1_hchk")
    a.label("L_p1_hok")
    a(f"v_cmp_ne_u32 vcc, s{S_XCC}, v29")
    a(f"s_cmp_eq_u64 vcc, 0")
    a(f"s_cselect_b32 s{S_FAST}, 1, 0")
    if cfg.force_slow: a(f"s_mov_b32 s{S_FAST}, 0")
    a("s_waitcnt lgkmcnt(0)")
    a("s_barrier")
    stamp(a, cfg, 3)
    for q in range(4):
        a(f"ds_read_b64 v[{36+2*q}:{37+2*q}], v26 offset:{q*256}")
    a(f"s_lshl_b32 s{TMP}, s{S_AH}, 7")
    a(f"s_add_u32 s{TMP}, s{TMP}, {P1_CS}")
    a(f"v_lshlrev_b32 v20, 4, v21")
    a(f"v_add_u32 v20, s{TMP}, v20")
    for jj in range(4):
        a(f"ds_read_b128 v[{80+4*jj}:{83+4*jj}], v20 offset:{jj*32}")
    a(f"s_and_b32 s{TMP}, s{S_AH}, 2")
    a(f"s_lshl_b32 s{TMP}, s{TMP}, 7")
    a(f"s_add_u32 s{TMP}, s{TMP}, {P1_CSV}")
    a(f"v_add_u32 v27, s{TMP}, v25")
    a("ds_read_b32 v19, v27")
    a("ds_read_b32 v18, v27 offset:128")
    QO, KL, KR = 92, 93, 94
    a("s_waitcnt lgkmcnt(6)")
    a("v_pk_add_f32 v[36:37], v[36:37], v[38:39]")
    a("v_pk_add_f32 v[40:41], v[40:41], v[42:43]")
    a("v_pk_add_f32 v[36:37], v[36:37], v[40:41]")
    a("v_mul_f32 v14, 0x3b000000, v36")
    a("v_mul_f32 v16, 0x3b000000, v37")
    a("v_fma_f32 v16, -v14, v14, v16")
    a("v_add_f32 v16, 0x3727c5ac, v16")
    a("v_rsq_f32 v16, v16")
    a(f"s_lshl_b32 s{TMP}, s{S_W}, 8")
    a(f"s_add_u32 s{TMP}, s{TMP}, {P1_PR}")
    a(f"v_add_u32 v25, s{TMP}, v25")
    a("v_mul_f32 v17, v14, v16")
    a("v_mul_f32 v15, 0x3eb8aa3b, v16")
    a(f"v_lshlrev_b32 v23, 4, v21")
    a(f"v_add_u32 v23, s{TMP}, v23")
    if cfg.p1_detail: stamp(a, cfg, 25)
    a("ds_write_b32 v25, v16")
    a("ds_write_b32 v25, v17 offset:128")
    a("s_waitcnt lgkmcnt(2)")
    a("v_add_f32 v19, v19, v18")
    for i in range(8, 16, 2):
        a(f"v_pk_fma_f32 v[{48+i}:{49+i}], v[{80+i}:{81+i}], v[14:15], v[{48+i}:{49+i}] op_sel_hi:[1,0,1] neg_lo:[0,1,0] neg_hi:[0,1,0]")
    for i in range(8, 16, 2):
        a(f"v_pk_mul_f32 v[{48+i}:{49+i}], v[{48+i}:{49+i}], v[16:17] op_sel_hi:[1,0]")
    for n in range(4):
        a(f"v_cvt_pk_bf16_f32 v{28+n}, v{56+2*n}, v{57+2*n}")
    W = f"s[{S_WS}:{S_WS+3}]"
    def mstore(ins, uniq):
        a(f"s_cmp_eq_u32 s{S_FAST}, 0")
        a(f"s_cbranch_scc1 L_p1s_{uniq}_s")
        for i_ in ins: a(i_.format(sc=""))
        a(f"s_branch L_p1s_{uniq}_d")
        a.label(f"L_p1s_{uniq}_s")
        for i_ in ins: a(i_.format(sc="sc1"))
        a.label(f"L_p1s_{uniq}_d")
    mstore([f"buffer_store_dwordx4 v[28:31], v{V_L16}, {W}, s{KL} offen {{sc}}"], "k")
    if cfg.p1_detail: stamp(a, cfg, 26)
    a("s_waitcnt lgkmcnt(0)")
    for jj in range(4):
        a(f"ds_read_b128 v[{96+4*jj}:{99+4*jj}], v23 offset:{jj*32}")
        a(f"ds_read_b128 v[{112+4*jj}:{115+4*jj}], v23 offset:{128+jj*32}")
    for i in range(0, 8, 2):
        a(f"v_pk_fma_f32 v[{48+i}:{49+i}], v[{80+i}:{81+i}], v[14:15], v[{48+i}:{49+i}] op_sel_hi:[1,0,1] neg_lo:[0,1,0] neg_hi:[0,1,0]")
    for i in range(0, 8, 2):
        a(f"v_pk_mul_f32 v[{48+i}:{49+i}], v[{48+i}:{49+i}], v[14:15] op_sel:[0,1] op_sel_hi:[1,1]")
    for n in range(4):
        a(f"v_cvt_pk_bf16_f32 v{32+n}, v{48+2*n}, v{49+2*n}")
    mstore([f"buffer_store_dwordx4 v[32:35], v{V_L16}, {W}, s{QO} offen {{sc}}"], "q")
    if cfg.p1_detail: stamp(a, cfg, 27)
    a(f"s_sub_u32 s{T+13}, s{KL}, 0x20000")
    a(f"s_sub_u32 s{T+14}, s{KR}, 0x20000")
    a(f"s_and_b32 s{TMP2}, s{S_AH}, 1")
    a(f"s_cmp_eq_u32 s{TMP2}, s{S_TT}")
    a("s_cbranch_scc0 L_p1_st_n")
    a("s_waitcnt lgkmcnt(0)")
    for hf in range(2):
        for i in range(8*hf, 8*hf+8, 2):
            a(f"v_pk_mul_f32 v[{112+i}:{113+i}], v[{112+i}:{113+i}], v[18:19] op_sel:[0,1] op_sel_hi:[1,1]")
        for i in range(8*hf, 8*hf+8, 2):
            a(f"v_pk_fma_f32 v[{64+i}:{65+i}], v[{64+i}:{65+i}], v[{96+i}:{97+i}], v[{112+i}:{113+i}] neg_lo:[0,0,1] neg_hi:[0,0,1]")
        for n in range(4*hf, 4*hf+4):
            a(f"v_cvt_pk_bf16_f32 v{40+n}, v{64+2*n}, v{65+2*n}")
        mstore([f"buffer_store_dwordx4 v[{40+4*hf}:{43+4*hf}], v144, {W}, s{T+13} offen offset:{512*hf} {{sc}}"], f"v{hf}")
    late = 'lateR' in cfg.exp
    def remote_stores(owner):
        a(f"buffer_store_dwordx4 v[28:31], v{V_L16}, {W}, s{KR} offen sc1")
        if owner:
            a(f"buffer_store_dwordx4 v[40:43], v144, {W}, s{T+14} offen sc1")
            a(f"buffer_store_dwordx4 v[44:47], v144, {W}, s{T+14} offen offset:512 sc1")
    def local_flag(uniq):
        a(f"s_lshl_b32 s{TMP}, s{S_J}, 10")
        a(f"s_add_u32 s{TMP}, s{TMP}, {WS_LFLAG}")
        a(f"s_lshl_b32 s{TMP2}, s{S_H}, 3")
        a(f"s_add_u32 s{TMP2}, s{TMP2}, s{S_W}")
        a(f"s_lshl_b32 s{TMP2}, s{TMP2}, 2")
        a(f"s_add_u32 s{TMP2}, s{TMP2}, s{TMP}")
        team_flag(a, cfg, TMP2, uniq)
    if 'barR' in cfg.exp: a("s_barrier")
    if not late: remote_stores(True)
    if cfg.p1_detail: stamp(a, cfg, 28)
    a(f"s_waitcnt vmcnt({0 if late else 3})")
    if late:
        local_flag("p1o"); remote_stores(True)
    a("s_branch L_p1_st_done")
    a.label("L_p1_st_n")
    if 'barR' in cfg.exp: a("s_barrier")
    if not late: remote_stores(False)
    if cfg.p1_detail: stamp(a, cfg, 28)
    a(f"s_waitcnt vmcnt({0 if late else 1}) lgkmcnt(0)")
    if late:
        local_flag("p1n"); remote_stores(False)
    a.label("L_p1_st_done")
    stamp(a, cfg, 4)
    if not late: local_flag("p1")
    if cfg.v3:
        import v3
        v3.build_v3(a, cfg)
        return
    attn_presetup(a)
    a(f"s_lshl_b32 s{T+13}, s{S_H}, 3")
    a(f"s_add_u32 s{T+13}, s{T+13}, s{S_J}")
    a(f"s_lshl_b32 s{T+14}, s{T+13}, 13")
    a(f"s_lshl_b32 s{T+13}, s{T+13}, 14")
    a(f"s_lshl_b32 s{T+11}, s{S_W}, 10")
    a(f"s_and_b32 s{T+12}, s{S_W}, 6")
    a(f"s_lshl_b32 s{T+12}, s{T+12}, 10")
    a(f"s_add_u32 s{T+14}, s{T+14}, s{T+12}")
    a(f"s_add_u32 s{T+14}, s{T+14}, {WS_QF}")
    a(f"s_add_u32 s{T+13}, s{T+13}, s{T+11}")
    a(f"s_add_u32 s{T+13}, s{T+13}, {WS_KVL}")
    a(f"s_lshl_b32 s{TMP2}, s{S_G}, 7")
    a(f"s_add_u32 s{TMP}, s{TMP}, s{TMP2}")
    a(f"v_and_b32 v2, 31, v{L}")
    a("v_lshlrev_b32 v2, 2, v2")
    poll(a, 2, 3, TMP, "p1l")
    stamp(a, cfg, 13)
    a(f"s_mov_b32 m0, s{T+11}")
    a(f"buffer_load_dwordx4 v[{V_Q}:{V_Q+3}], v{V_L16}, s[{S_WS}:{S_WS+3}], s{T+14} offen sc1")
    a(f"buffer_load_dwordx4 v[244:247], v{V_L16}, s[{S_WS}:{S_WS+3}], s{T+14} offen offset:1024 sc1")
    a(f"buffer_load_dwordx4 v{V_L16}, s[{S_WS}:{S_WS+3}], s{T+13} offen sc1 lds")
    a(f"s_add_u32 m0, m0, 8192")
    a(f"s_add_u32 s{T+13}, s{T+13}, 8192")
    a(f"buffer_load_dwordx4 v{V_L16}, s[{S_WS}:{S_WS+3}], s{T+13} offen sc1 lds")
    a(f"s_lshl_b32 s{TMP}, s{S_H}, 3")
    a(f"s_add_u32 s{TMP}, s{TMP}, s{S_W}")
    a(f"s_lshl_b32 s{TMP}, s{TMP}, 5")
    a(f"s_lshl_b32 s{TMP2}, s{S_J}, 2")
    a(f"s_add_u32 s{TMP}, s{TMP}, s{TMP2}")
    a(f"s_add_u32 s{TMP}, s{TMP}, {WS_KVFLAG}")
    flag_store(a, S_TAG, TMP, "sc1")
    a("s_waitcnt vmcnt(1)")
    a("s_barrier")
    stamp(a, cfg, 14)

def team_flag(a, cfg, off_s, uniq):
    a(f"v_mov_b32 v2, s{S_TAG}")
    a("v_mov_b32 v3, 0")
    a("s_mov_b64 exec, 1")
    a(f"s_cmp_eq_u32 s{S_FAST}, 0")
    a(f"s_cbranch_scc1 L_tf_{uniq}_s")
    a(f"buffer_store_dword v2, v3, s[{S_WS}:{S_WS+3}], s{off_s} offen")
    a(f"s_branch L_tf_{uniq}_d")
    a.label(f"L_tf_{uniq}_s")
    a(f"buffer_store_dword v2, v3, s[{S_WS}:{S_WS+3}], s{off_s} offen sc1")
    a.label(f"L_tf_{uniq}_d")
    a("s_mov_b64 exec, -1")

def poll(a, vaddr, vtmp, off_s, uniq):
    C = S_A + 19
    a(f"s_mov_b32 s{C}, 0")
    a.label(f"L_poll_{uniq}")
    a(f"buffer_load_dword v{vtmp}, v{vaddr}, s[{S_WS}:{S_WS+3}], s{off_s} offen sc1")
    a(f"s_add_u32 s{C}, s{C}, 1")
    a("s_waitcnt vmcnt(0)")
    a(f"v_cmp_ne_u32 vcc, s{S_TAG}, v{vtmp}")
    a(f"s_cmp_gt_u32 s{C}, 0x100000")
    a(f"s_cbranch_scc1 L_poll_{uniq}_x")
    a(f"s_cbranch_vccnz L_poll_{uniq}")
    a.label(f"L_poll_{uniq}_x")

A_S = [16, 32]; A_C = [48, 64]; A_O = [80, 96]; A_P = 112; A_KF = [120, 124]; A_VF = [128, 136]
A_VK = [144, 145]; A_VV = [146, 147]
V_QB = 244
V_W2V, V_W2T, V_DUM = 148, 149, 150
def mfma32(a, d, x, y, c):
    cs = c if isinstance(c, str) else f"v[{c}:{c+15}]"
    a(f"v_mfma_f32_32x32x16_bf16 v[{d}:{d+15}], v[{x}:{x+3}], v[{y}:{y+3}], {cs}")

def maxtree(a, src, dst):
    a(f"v_max3_f32 v{dst}, v{src}, v{src+1}, v{src+2}")
    for i in range(3, 15, 2):
        a(f"v_max3_f32 v{dst}, v{dst}, v{src+i}, v{src+i+1}")
    a(f"v_max_f32 v{dst}, v{dst}, v{src+15}")

def halfmax(a, r, t):
    a(f"v_mov_b32 v{t}, v{r}")
    a("s_nop 1")
    a(f"v_permlane32_swap_b32 v{r}, v{t}")
    a("s_nop 0")
    a(f"v_max_f32 v{r}, v{r}, v{t}")

def attn_presetup(a):
    L = V_LANE
    T = S_A
    a(f"s_and_b32 s{T+4}, s{S_W}, 1")
    a(f"s_lshl_b32 s{T+4}, s{T+4}, 12")
    a(f"v_add_u32 v{A_VK[0]}, s{T+4}, v{V_L16}")
    a(f"v_and_b32 v4, 15, v{L}")
    a(f"v_lshlrev_b32 v4, 4, v4")
    a(f"v_lshrrev_b32 v5, 5, v{L}")
    a(f"v_lshl_add_u32 v4, v5, 8, v4")
    a(f"v_add_u32 v4, 8192, v4")
    a(f"v_add_u32 v{A_VV[0]}, s{T+4}, v4")
    a(f"v_add_u32 v{A_VK[1]}, 0x10000, v{A_VK[0]}")
    a(f"v_add_u32 v{A_VV[1]}, 0x10000, v{A_VV[0]}")
    a(f"v_and_b32 v5, 31, v{L}")
    a(f"v_cmp_eq_u32 vcc, 16, v5")
    a(f"v_mov_b32 v4, 0x3f803f80")
    a("s_nop 0")
    a(f"v_cndmask_b32 v{A_VF[0]}, 0, v4, vcc")
    for r in range(1, 16):
        a(f"v_mov_b32 v{A_VF[0]+r}, v{A_VF[0]}")
    for x in range(2):
        for r in range(16): a(f"v_mov_b32 v{A_O[x]+r}, 0")
    for r in range(8): a(f"v_mov_b32 v{A_P+r}, 0")

USTAMPS = [0, 6, 7, 14, 15, 22, 23, 30, 38, 46, 54]
def attention(a, cfg):
    L = V_LANE
    T = S_A
    Q = [V_Q, V_QB]
    act = make_act(a, cfg)
    if cfg.skip_p1:
        keepu = set()
        if 'bar' in cfg.exp: keepu |= {6, 14, 22, 30}
        if 'w2h' in cfg.exp: keepu |= {24, 32, 38, 44, 50, 55, 60, 61}
        if 'wrm' in cfg.exp: keepu |= {33, 34, 35, 39, 40, 41, 45, 46, 47}
        if 'kvd' in cfg.exp: keepu |= {2, 4, 7, 10, 13, 16}
        act = {k: v for k, v in act.items() if k[0]*8 + k[1] in keepu}
    if cfg.skip_p1: attn_presetup(a)
    a(f"ds_read_b128 v[{A_KF[1]}:{A_KF[1]+3}], v{V_L16}")
    a(f"ds_read_b128 v[{A_KF[0]}:{A_KF[0]+3}], v{A_VK[0]}")
    a(f"s_mov_b64 exec, s[{S_VMASK}:{S_VMASK+1}]")
    a(f"ds_read_b128 v[{A_VF[0]}:{A_VF[0]+3}], v{A_VV[0]}")
    a(f"ds_read_b128 v[{A_VF[0]+4}:{A_VF[0]+7}], v{A_VV[0]} offset:512")
    a("s_mov_b64 exec, -1")
    a(f"s_lshl_b32 s{T}, s{S_H}, 17")
    a(f"s_add_u32 s{T}, s{T}, {WS_KV}")
    a(f"s_lshl_b32 s{T+1}, s{S_W}, 10")
    a(f"s_add_u32 s{T}, s{T}, s{T+1}")
    a(f"s_add_u32 s{T+2}, s{T+1}, 0")
    a("s_waitcnt lgkmcnt(3)")
    mfma32(a, A_S[0], A_KF[1], Q[0], "0")
    mfma32(a, A_S[1], A_KF[1], Q[1], "0")
    a("s_nop 7")
    a("s_nop 2")
    maxtree(a, A_S[0], 2)
    maxtree(a, A_S[1], 3)
    halfmax(a, 2, 4)
    halfmax(a, 3, 4)
    for x in range(2):
        a(f"v_sub_f32 v{A_C[x]}, 0, v{2+x}")
        for r in range(1, 16): a(f"v_mov_b32 v{A_C[x]+r}, v{A_C[x]}")
    a("s_waitcnt lgkmcnt(0)")
    mfma32(a, A_S[0], A_KF[0], Q[0], A_C[0])
    a("s_nop 7")
    a("s_nop 3")
    P = A_P
    def kv_off(n):
        s_, i = n >> 2, n & 3
        hi = 1 if s_ >= 4 else 0
        return hi, (s_ - 4*hi) * 16384 + i * 1024
    for u in range(64):
        n, x = u >> 1, u & 1
        cur = A_S[u % 2]; nxt = A_S[(u + 1) % 2]
        e = lambda i: a(f"v_exp_f32 v{cur+i}, v{cur+i}")
        c = lambda m: a(f"v_cvt_pk_bf16_f32 v{P+m}, v{cur+2*m}, v{cur+2*m+1}")
        if cfg.ustamps and u in USTAMPS:
            a(f"s_memtime s[{52+2*USTAMPS.index(u)}:{53+2*USTAMPS.index(u)}]")
        for fn in act.get((u >> 3, u & 7), []): fn()
        if cfg.stamps and cfg.at_detail and u % 8 == 0 and u: stamp(a, cfg, 15 + u // 8)
        e(0); e(1)
        if u > 0:
            pn, px = (u - 1) >> 1, (u - 1) & 1
            mfma32(a, A_O[px], A_VF[pn % 2] + 4, P + 4, A_O[px])
        e(2); c(0); e(3); e(4); c(1)
        if u < 63:
            n1, x1 = (u + 1) >> 1, (u + 1) & 1
            if x == 1: a("s_waitcnt lgkmcnt(0)")
            mfma32(a, nxt, A_KF[n1 % 2], Q[x1], A_C[x1])
        if x == 0 and n + 1 < 32:
            hi, off = kv_off(n + 1)
            kb, vb = A_KF[(n + 1) % 2], A_VF[(n + 1) % 2]
            a(f"ds_read_b128 v[{kb}:{kb+3}], v{A_VK[hi]} offset:{off}")
            a(f"s_mov_b64 exec, s[{S_VMASK}:{S_VMASK+1}]")
            a(f"ds_read_b128 v[{vb}:{vb+3}], v{A_VV[hi]} offset:{off}")
            a(f"ds_read_b128 v[{vb+4}:{vb+7}], v{A_VV[hi]} offset:{off+512}")
            a("s_mov_b64 exec, -1")
        e(5); e(6); c(2); e(7); e(8); c(3); e(9); e(10)
        mfma32(a, A_O[x], A_VF[n % 2], P, A_O[x])
        c(4); e(11); e(12); c(5); e(13); e(14); e(15); c(6); c(7)
    a("s_nop 1")
    mfma32(a, A_O[1], A_VF[1] + 4, P + 4, A_O[1])
    stamp(a, cfg, 8)
    if cfg.ustamps:
        a("s_waitcnt lgkmcnt(0)")
        for i_ in range(len(USTAMPS)): a(f"v_writelane_b32 v255, s{52+2*i_}, {16+i_}")
    a.label("L_at_chk")
    a("s_nop 7")
    a("s_nop 3")
    for x in range(2):
        a(f"v_mov_b32 v{2+x}, v{A_O[x]+8}")
        a(f"v_mov_b32 v{4+x}, v{A_O[x]+8}")
    a("s_nop 1")
    a("v_permlane32_swap_b32 v2, v4")
    a("v_permlane32_swap_b32 v3, v5")
    a("v_mov_b32 v4, 0x5d800000")
    a("v_max_f32 v5, v2, v3")
    a("v_cmp_nle_f32 vcc, v2, v4")
    a(f"s_mov_b64 s[{T+4}:{T+5}], vcc")
    a("v_cmp_nle_f32 vcc, v3, v4")
    a(f"s_or_b64 vcc, vcc, s[{T+4}:{T+5}]")
    a(f"s_cmp_lg_u32 s{S_RERUN}, 0")
    a("s_cbranch_scc1 L_at_ok")
    a("s_cbranch_vccz L_at_ok")
    a(f"s_mov_b32 s{S_RERUN}, 1")
    a("v_mov_b32 v2, 0xff800000")
    a("v_mov_b32 v3, 0xff800000")
    for ps in range(2):
        a(f"v_mov_b32 v6, v{A_VK[0]}")
        a(f"v_mov_b32 v7, v{A_VV[0]}")
        a(f"s_mov_b32 s{S_BLK}, 0")
        a.label(f"L_at_re{ps}")
        for i in range(4):
            a(f"ds_read_b128 v[{A_KF[0]}:{A_KF[0]+3}], v6 offset:{i*1024}")
            if ps == 1:
                a(f"s_mov_b64 exec, s[{S_VMASK}:{S_VMASK+1}]")
                a(f"ds_read_b128 v[{A_VF[0]}:{A_VF[0]+3}], v7 offset:{i*1024}")
                a(f"ds_read_b128 v[{A_VF[0]+4}:{A_VF[0]+7}], v7 offset:{i*1024+512}")
                a("s_mov_b64 exec, -1")
            a("s_waitcnt lgkmcnt(0)")
            for x in range(2):
                mfma32(a, A_S[x], A_KF[0], Q[x], "0" if ps == 0 else A_C[x])
            a("s_nop 7")
            a("s_nop 3")
            for x in range(2):
                if ps == 0:
                    for k in range(0, 16, 2):
                        a(f"v_max3_f32 v{2+x}, v{2+x}, v{A_S[x]+k}, v{A_S[x]+k+1}")
                else:
                    for k in range(16): a(f"v_exp_f32 v{A_S[x]+k}, v{A_S[x]+k}")
                    a("s_nop 0")
                    for m in range(8): a(f"v_cvt_pk_bf16_f32 v{P+m}, v{A_S[x]+2*m}, v{A_S[x]+2*m+1}")
                    a("s_nop 1")
                    mfma32(a, A_O[x], A_VF[0], P, A_O[x])
                    mfma32(a, A_O[x], A_VF[0] + 4, P + 4, A_O[x])
        a("v_add_u32 v6, 16384, v6")
        a("v_add_u32 v7, 16384, v7")
        a(f"s_add_u32 s{S_BLK}, s{S_BLK}, 1")
        a(f"s_cmp_lt_u32 s{S_BLK}, 8")
        a(f"s_cbranch_scc1 L_at_re{ps}")
        if ps == 0:
            halfmax(a, 2, 4)
            halfmax(a, 3, 4)
            for x in range(2):
                a(f"v_sub_f32 v{A_C[x]}, 0, v{2+x}")
                for r in range(1, 16): a(f"v_mov_b32 v{A_C[x]+r}, v{A_C[x]}")
                for r in range(16): a(f"v_mov_b32 v{A_O[x]+r}, 0")
    a("s_branch L_at_chk")
    a.label("L_at_ok")
    a("s_barrier")
    a(f"s_mul_i32 s{T+4}, s{S_W}, 3072")
    a(f"v_add_u32 v8, s{T+4}, v{V_L16}")
    a(f"s_xor_b32 s{T+5}, s{S_W}, 1")
    a(f"s_mul_i32 s{T+5}, s{T+5}, 3072")
    a(f"v_add_u32 v9, s{T+5}, v{V_L16}")
    a(f"s_bitcmp1_b32 s{S_W}, 0")
    a("s_cbranch_scc1 L_at_m1")
    for kh in range(2):
        if kh == 1: a.label("L_at_m1")
        keep, send = kh, 1 - kh
        a(f"v_mov_b32 v4, v{2+send}")
        a(f"v_mov_b32 v5, v{A_C[send]}")
        a(f"ds_write_b128 v8, v[{A_O[send]}:{A_O[send]+3}]")
        a(f"ds_write_b128 v8, v[{A_O[send]+4}:{A_O[send]+7}] offset:1024")
        a(f"ds_write_b64 v8, v[4:5] offset:2048")
        for r in range(8): a(f"v_mov_b32 v{16+r}, v{A_O[keep]+r}")
        a(f"v_mov_b32 v24, v{2+keep}")
        a(f"v_mov_b32 v25, v{A_C[keep]}")
        if kh == 0: a("s_branch L_at_m2")
    a.label("L_at_m2")
    a("s_waitcnt lgkmcnt(0)")
    a("s_barrier")
    a("ds_read_b128 v[32:35], v9")
    a("ds_read_b128 v[36:39], v9 offset:1024")
    a("ds_read_b64 v[40:41], v9 offset:2048")
    a("s_waitcnt lgkmcnt(0)")
    a("v_min_f32 v26, v25, v41")
    a("v_sub_f32 v27, v26, v25")
    a("v_sub_f32 v28, v26, v41")
    a("v_exp_f32 v27, v27")
    a("v_exp_f32 v28, v28")
    a("s_nop 0")
    a("v_mul_f32 v24, v24, v27")
    a("v_fmac_f32 v24, v40, v28")
    a("v_rcp_f32 v24, v24")
    a("s_nop 0")
    a("v_mul_f32 v27, v27, v24")
    a("v_mul_f32 v28, v28, v24")
    for r in range(8): a(f"v_mul_f32 v{16+r}, v{16+r}, v27")
    for r in range(8): a(f"v_fmac_f32 v{16+r}, v{32+r}, v28")
    for m in range(4):
        a(f"v_cvt_pk_bf16_f32 v{4+m}, v{16+2*m}, v{17+2*m}")

def flag_store(a, val_s, off_s, sc):
    a(f"v_mov_b32 v2, s{val_s}")
    a("v_mov_b32 v3, 0")
    a("s_mov_b64 exec, 1")
    a(f"buffer_store_dword v2, v3, s[{S_WS}:{S_WS+3}], s{off_s} offen {sc}")
    a("s_mov_b64 exec, -1")

def kv_dma(a, blk):
    T = S_A
    a(f"s_add_u32 s{T+4}, s{S_J}, {blk}")
    a(f"s_and_b32 s{T+4}, s{T+4}, 7")
    a(f"s_lshl_b32 s{T+4}, s{T+4}, 14")
    a(f"s_add_u32 s{T+4}, s{T+4}, s{T}")
    a(f"s_add_u32 m0, s{T+2}, {blk*16384}")
    a(f"s_add_u32 s{T+6}, s{T+4}, 8192")
    a(f"buffer_load_dwordx4 v{V_L16}, s[{S_WS}:{S_WS+3}], s{T+4} offen sc1 lds")
    a(f"s_add_u32 m0, m0, 8192")
    a("s_nop 0")
    a(f"buffer_load_dwordx4 v{V_L16}, s[{S_WS}:{S_WS+3}], s{T+6} offen sc1 lds")

V_W2 = 152
W2_STAGE = 131072
HOOKS = {}

def w2_setup(a):
    T = S_A; L = V_LANE
    a(f"s_and_b32 s{T+10}, s{S_W}, 3")
    a(f"s_mul_i32 s{T+10}, s{T+10}, {22*16*1024}")
    a(f"s_and_b32 s{T+11}, s{S_H}, 7")
    a(f"s_lshl_b32 s{T+11}, s{T+11}, 7")
    a(f"s_add_u32 s{T+10}, s{T+10}, s{T+11}")
    a(f"s_lshr_b32 s{T+11}, s{S_W}, 2")
    a(f"s_lshl_b32 s{T+11}, s{T+11}, 6")
    a(f"s_add_u32 s{T+10}, s{T+10}, s{T+11}")
    a(f"s_lshl_b32 s{T+11}, s{S_W}, 12")
    a(f"s_add_u32 s{T+11}, s{T+11}, {W2_STAGE}")
    a(f"v_lshrrev_b32 v149, 2, v{L}")
    a(f"v_lshlrev_b32 v148, 10, v149")
    a(f"v_and_b32 v149, 3, v{L}")
    a(f"v_lshl_add_u32 v148, v149, 4, v148")
    a(f"v_lshrrev_b32 v149, 5, v{L}")
    a(f"v_bfe_u32 v151, v{L}, 2, 2")
    a(f"v_lshl_add_u32 v149, v149, 2, v151")
    a(f"v_lshlrev_b32 v149, 6, v149")
    a(f"v_bfe_u32 v151, v{L}, 4, 1")
    a(f"v_lshl_add_u32 v149, v151, 5, v149")
    a(f"v_and_b32 v151, 3, v{L}")
    a(f"v_lshl_add_u32 v149, v151, 3, v149")
    a(f"v_add_u32 v149, s{T+11}, v149")


def w2f_produce_a(a):
    T = S_A; L = V_LANE
    a(f"s_lshl_b32 s{T+10}, s{S_W}, 8")
    a(f"s_add_u32 s{T+10}, s{T+10}, s2")
    a(f"s_lshr_b32 s{T+4}, s{T+10}, 4")
    a(f"s_lshl_b32 s{T+4}, s{T+4}, 14")
    a(f"s_and_b32 s{T+5}, s{T+10}, 15")
    a(f"s_lshl_b32 s{T+5}, s{T+5}, 6")
    a(f"s_add_u32 s{T+4}, s{T+4}, s{T+5}")
    a(f"s_lshl_b32 s{T+11}, s{S_W}, 12")
    a(f"s_add_u32 s{T+11}, s{T+11}, {W2_STAGE}")
    a(f"v_lshrrev_b32 v149, 2, v{L}")
    a(f"v_lshlrev_b32 v148, 10, v149")
    a(f"v_and_b32 v149, 3, v{L}")
    a(f"v_lshl_add_u32 v148, v149, 4, v148")
    a(f"s_mov_b32 m0, s{T+11}")
    a(f"v_lshrrev_b32 v149, 5, v{L}")
    a(f"buffer_load_dwordx4 v148, s[{S_W2}:{S_W2+3}], s{T+4} offen lds")
    a(f"v_bfe_u32 v151, v{L}, 2, 2")
    a(f"v_lshl_add_u32 v149, v149, 2, v151")
    a(f"v_lshlrev_b32 v149, 6, v149")
    a(f"v_bfe_u32 v151, v{L}, 4, 1")
    a(f"v_lshl_add_u32 v149, v151, 5, v149")
    a(f"v_and_b32 v151, 3, v{L}")
    a(f"v_lshl_add_u32 v149, v151, 3, v149")
    a(f"v_add_u32 v149, s{T+11}, v149")

def w2f_produce_b(a, younger):
    a(f"s_waitcnt vmcnt({younger})")
    a(f"ds_read_b64_tr_b16 v[{V_W2}:{V_W2+1}], v149")
    a(f"ds_read_b64_tr_b16 v[{V_W2+2}:{V_W2+3}], v149 offset:512")

def w2f_produce_c(a):
    T = S_A
    a(f"s_lshl_b32 s{T+4}, s{T+10}, 10")
    a(f"s_add_u32 s{T+4}, s{T+4}, {WS_W2F}")
    a(f"buffer_store_dwordx4 v[{V_W2}:{V_W2+3}], v{V_L16}, s[{S_WS}:{S_WS+3}], s{T+4} offen sc1")

def w2f_produce_d(a, younger):
    T = S_A
    a(f"s_waitcnt vmcnt({younger})")
    a(f"s_lshl_b32 s{T+4}, s{T+10}, 2")
    a(f"s_add_u32 s{T+4}, s{T+4}, {WS_W2FLAG}")
    flag_store(a, S_TAG, T+4, "sc1")

def w2f_poll(a):
    T = S_A; L = V_LANE
    a(f"s_and_b32 s{T+4}, s{S_W}, 3")
    a(f"s_mul_i32 s{T+4}, s{T+4}, {22*16}")
    a(f"s_and_b32 s{T+5}, s{S_H}, 7")
    a(f"s_lshl_b32 s{T+5}, s{T+5}, 1")
    a(f"s_add_u32 s{T+4}, s{T+4}, s{T+5}")
    a(f"s_lshr_b32 s{T+5}, s{S_W}, 2")
    a(f"s_add_u32 s{T+4}, s{T+4}, s{T+5}")
    a(f"s_lshl_b32 s{T+10}, s{T+4}, 10")
    a(f"s_add_u32 s{T+10}, s{T+10}, {WS_W2F}")
    a(f"s_lshl_b32 s{T+4}, s{T+4}, 2")
    a(f"s_add_u32 s{T+4}, s{T+4}, {WS_W2FLAG}")
    a(f"s_and_b32 s{T+5}, s{S_W}, 3")
    a(f"s_cmp_eq_u32 s{T+5}, 3")
    a(f"s_cselect_b32 s{T+5}, 19, 21")
    a(f"v_min_u32 v2, s{T+5}, v{L}")
    a("v_lshlrev_b32 v2, 6, v2")
    poll(a, 2, 3, T+4, "w2f")
    a(f"s_and_b32 s{T+5}, s{S_W}, 3")
    a(f"s_cmp_eq_u32 s{T+5}, 3")
    a(f"s_cselect_b32 s{T+11}, 0x40000000, 0")

def w2f_load(a, i0, n):
    T = S_A
    for i in range(i0, i0 + n):
        a(f"s_add_u32 s{T+4}, s{T+10}, {i*16384}")
        if i >= 20: a(f"s_add_u32 s{T+4}, s{T+4}, s{T+11}")
        a(f"buffer_load_dwordx4 v[{V_W2+4*i}:{V_W2+4*i+3}], v{V_L16}, s[{S_WS}:{S_WS+3}], s{T+4} offen sc1")

NOW2 = False
def w2_issue(a, r):
    T = S_A
    n = 4 if r < 5 else 2
    if NOW2: return
    for i in range(n):
        a(f"s_add_u32 m0, s{T+11}, {i*1024}")
        a(f"s_add_u32 s{T+4}, s{T+10}, {(r*4+i)*16*1024}")
        a(f"buffer_load_dwordx4 v148, s[{S_W2}:{S_W2+3}], s{T+4} offen lds")

def w2_read(a, r, younger=0):
    n = 4 if r < 5 else 2
    if NOW2: return
    a(f"s_waitcnt vmcnt({younger})")
    for i in range(n):
        d = V_W2 + 4*(r*4+i)
        a(f"ds_read_b64_tr_b16 v[{d}:{d+1}], v149 offset:{i*1024}")
        a(f"ds_read_b64_tr_b16 v[{d+2}:{d+3}], v149 offset:{i*1024+512}")
    a("s_waitcnt lgkmcnt(0)")

def warm(a, srd, piece_bytes, nlanes, vdst):
    T = S_A
    a(f"v_lshlrev_b32 v2, 7, v{V_LANE}")
    a(f"s_lshl_b32 s{T+4}, s{S_H}, 3")
    a(f"s_add_u32 s{T+4}, s{T+4}, s{S_W}")
    a(f"s_mul_i32 s{T+5}, s{T+4}, {piece_bytes}")
    a(f"s_and_b32 s{T+5}, s{T+5}, 0xffffff80")
    if nlanes > 32: a(f"s_mov_b32 exec_hi, {hex((1 << (nlanes-32)) - 1)}")
    else: a(f"s_mov_b64 exec, {hex((1 << nlanes) - 1)}")
    a(f"buffer_load_dword v{vdst}, v2, s[{srd}:{srd+3}], s{T+5} offen")
    a("s_mov_b64 exec, -1")

V_XR = 12
V_B1R = 11
def small_loads(a):
    T = S_A; L = V_LANE
    a(f"s_and_b32 s{T+4}, s{S_H}, 7")
    a(f"s_lshl_b32 s{T+4}, s{T+4}, 6")
    a(f"s_lshr_b32 s{T+5}, s{S_W}, 2")
    a(f"s_lshl_b32 s{T+5}, s{T+5}, 5")
    a(f"s_add_u32 s{T+4}, s{T+4}, s{T+5}")
    a(f"s_and_b32 s{T+5}, s{S_W}, 1")
    a(f"s_lshl_b32 s{T+5}, s{T+5}, 4")
    a(f"s_add_u32 s{T+4}, s{T+4}, s{T+5}")
    a(f"s_lshl_b32 s{T+5}, s{S_J}, 8")
    a(f"s_lshr_b32 s{T+6}, s{S_H}, 3")
    a(f"s_lshl_b32 s{T+6}, s{T+6}, 6")
    a(f"s_add_u32 s{T+5}, s{T+5}, s{T+6}")
    a(f"s_bfe_u32 s{T+6}, s{S_W}, 0x10001")
    a(f"s_lshl_b32 s{T+6}, s{T+6}, 5")
    a(f"s_add_u32 s{T+5}, s{T+5}, s{T+6}")
    a(f"s_lshl_b32 s{T+5}, s{T+5}, 10")
    a(f"s_lshl_b32 s{T+4}, s{T+4}, 1")
    a(f"s_add_u32 s{T+5}, s{T+5}, s{T+4}")
    a(f"v_and_b32 v2, 31, v{L}")
    a(f"v_lshlrev_b32 v2, 10, v2")
    a(f"v_lshrrev_b32 v3, 5, v{L}")
    a(f"v_lshlrev_b32 v3, 3, v3")
    a(f"v_add_u32 v2, v2, v3")
    a(f"buffer_load_dwordx2 v[{V_XR}:{V_XR+1}], v2, s[{S_X}:{S_X+3}], s{T+5} offen")
    a(f"buffer_load_dwordx2 v[{V_XR+2}:{V_XR+3}], v2, s[{S_X}:{S_X+3}], s{T+5} offen offset:16")
    a(f"buffer_load_dwordx2 v[{V_B2}:{V_B2+1}], v3, s[{S_B2}:{S_B2+3}], s{T+4} offen")
    a(f"buffer_load_dwordx2 v[{V_B2+2}:{V_B2+3}], v3, s[{S_B2}:{S_B2+3}], s{T+4} offen offset:16")
    a(f"s_and_b32 s{T+4}, s{S_H}, 15")
    a(f"s_mul_i32 s{T+4}, s{T+4}, {8*21846}")
    a(f"s_lshr_b32 s{T+4}, s{T+4}, 16")
    a(f"s_lshl_b32 s{T+4}, s{T+4}, 6")
    a(f"v_lshlrev_b32 v2, 2, v{L}")
    a(f"buffer_load_dword v{V_B1R}, v2, s[{S_B1}:{S_B1+3}], s{T+4} offen")

NOPT = False
def pretouch_tail(a):
    if NOPT:
        a(f"s_mov_b32 s{S_A+5}, 0x40000000"); a(f"buffer_load_dword v150, v{V_L16}, s[{S_W1}:{S_W1+3}], s{S_A+5} offen"); return
    _pretouch_tail(a)
def _pretouch_tail(a):
    T = S_A; L = V_LANE
    a(f"s_lshl_b32 s{T+4}, s{S_H}, 3")
    a(f"s_add_u32 s{T+4}, s{T+4}, s{S_W}")
    a(f"s_lshl_b32 s{T+5}, s{S_J}, 18")
    a(f"s_lshl_b32 s{T+6}, s{T+4}, 10")
    a(f"s_add_u32 s{T+5}, s{T+5}, s{T+6}")
    a(f"v_and_b32 v2, 7, v{L}")
    a(f"v_lshlrev_b32 v2, 7, v2")
    a(f"v_add_u32 v2, s{T+5}, v2")
    a(f"v_add_u32 v3, {WS_HF}, v2")
    a(f"v_add_u32 v2, {WS_OF}, v2")
    a(f"v_cmp_gt_u32 vcc, 8, v{L}")
    a("s_nop 1")
    a(f"v_cndmask_b32 v2, v3, v2, vcc")
    a(f"s_lshl_b32 s{T+5}, s{S_J}, 16")
    a(f"s_lshl_b32 s{T+6}, s{T+4}, 8")
    a(f"s_add_u32 s{T+5}, s{T+5}, s{T+6}")
    a(f"s_add_u32 s{T+5}, s{T+5}, {WS_HST - 16*128}")
    a(f"v_lshlrev_b32 v3, 7, v{L}")
    a(f"v_add_u32 v4, s{T+5}, v3")
    a(f"v_cmp_gt_u32 vcc, 16, v{L}")
    a(f"s_mul_i32 s{T+5}, s{S_J}, {8*86*1024}")
    a("s_nop 0")
    a(f"v_cndmask_b32 v2, v4, v2, vcc")
    a(f"s_mul_i32 s{T+6}, s{T+4}, 2752")
    a(f"s_and_b32 s{T+6}, s{T+6}, 0xffffff80")
    a(f"s_add_u32 s{T+5}, s{T+5}, s{T+6}")
    a(f"s_add_u32 s{T+5}, s{T+5}, {WS_GF - 18*128}")
    a(f"v_add_u32 v4, s{T+5}, v3")
    a(f"v_cmp_gt_u32 vcc, 18, v{L}")
    a("s_nop 1")
    a(f"v_cndmask_b32 v2, v4, v2, vcc")
    a("v_mov_b32 v3, 0") if False else None
    a("s_mov_b32 exec_hi, 0x1ff")
    a(f"buffer_load_dword v150, v2, s[{S_WS}:{S_WS+3}], 0 offen")
    a("s_mov_b64 exec, -1")

NOWARM = False
def warm_dma(a, mat, n):
    if NOWARM:
        a(f"s_mov_b32 s{S_A+5}, 0x40000000"); a(f"buffer_load_dword v150, v{V_L16}, s[{S_W1}:{S_W1+3}], s{S_A+5} offen"); return
    _warm_dma(a, mat, n)
def _warm_dma(a, mat, n):
    T = S_A
    a(f"s_lshl_b32 s{T+4}, s{S_H}, 3")
    a(f"s_add_u32 s{T+4}, s{T+4}, s{S_W}")
    if mat in ("w1", "w2"):
        srd_ = S_W1 if mat == "w1" else S_W2
        a(f"s_mul_i32 s{T+5}, s{T+4}, 5504")
        a(f"s_and_b32 s{T+5}, s{T+5}, 0xffffff80")
        a(f"s_add_u32 s{T+5}, s{T+5}, {n*1024}")
    else:
        srd_ = S_WO
        a(f"s_lshl_b32 s{T+5}, s{T+4}, 11")
        a(f"s_add_u32 s{T+5}, s{T+5}, {n*1024}")
    a(f"buffer_load_dwordx4 v[6:9], v{V_L16}, s[{srd_}:{srd_+3}], s{T+5} offen")

def make_act(a, cfg):
    T = S_A
    act = {}
    def add(b, t, fn): act.setdefault((b, t), []).append(fn)
    def poll_kv():
        stamp(a, cfg, 5)
        a(f"s_and_b32 s{T+4}, s{S_H}, 28")
        a(f"s_lshr_b32 s{T+5}, s{S_W}, 1")
        a(f"s_add_u32 s{T+4}, s{T+4}, s{T+5}")
        a(f"s_lshl_b32 s{T+4}, s{T+4}, 8")
        a(f"s_add_u32 s{T+3}, s{T+4}, {WS_KVFLAG}")
        a(f"s_and_b32 s{T+4}, s{S_W}, 1")
        a(f"s_lshl_b32 s{T+5}, s{T+4}, 2")
        a(f"s_and_b32 s{T+6}, s{S_H}, 3")
        a(f"s_add_u32 s{T+6}, s{T+6}, s{T+5}")
        a(f"s_and_b32 s{T+7}, s{S_H}, 2")
        a(f"s_add_u32 s{T+7}, s{T+7}, s{T+5}")
        a(f"s_add_u32 s{T+7}, s{T+7}, s{T+4}")
        a(f"s_lshl_b32 s{T+6}, s{T+6}, 5")
        a(f"s_lshl_b32 s{T+7}, s{T+7}, 5")
        a(f"v_and_b32 v2, 7, v{V_LANE}")
        a("v_lshlrev_b32 v2, 2, v2")
        a(f"v_mov_b32 v3, s{T+7}")
        a(f"v_mov_b32 v4, s{T+6}")
        a(f"v_cmp_gt_u32 vcc, 8, v{V_LANE}")
        a("s_nop 1")
        a("v_cndmask_b32 v3, v3, v4, vcc")
        a("v_add_u32 v2, v2, v3")
        poll(a, 2, 3, T+3, "kv")
        stamp(a, cfg, 6)
    def sync(n, st):
        def f():
            a(f"s_waitcnt vmcnt({n})"); a("s_barrier"); stamp(a, cfg, st)
        return f
    sched = []
    def I(u, name, nvm, fn): sched.append((u, 'i', name, nvm, fn))
    def Wt(u, target, fn): sched.append((u, 'w', target, 0, fn))
    def syncw(st):
        def f(n):
            a(f"s_waitcnt vmcnt({n})"); a("s_barrier"); stamp(a, cfg, st)
        return f
    def rd(r):
        def f(younger):
            n = 4 if r < 5 else 2
            a(f"s_waitcnt vmcnt({younger})")
            for i in range(n):
                d = V_W2 + 4*(r*4+i)
                a(f"ds_read_b64_tr_b16 v[{d}:{d+1}], v149 offset:{i*1024}")
                a(f"ds_read_b64_tr_b16 v[{d+2}:{d+3}], v149 offset:{i*1024+512}")
        return f
    wseq = [("w1", i) for i in range(6)] + [("wo", i) for i in range(2)]
    I(1, 'poll', 0, poll_kv)
    kvu = {1: 1, 2: 2, 3: 4, 4: 7, 5: 10, 6: 13, 7: 16}
    for b_, u_ in kvu.items(): I(u_, f'kv{b_}', 2, (lambda bb: (lambda: kv_dma(a, bb)))(b_))
    Wt(6, 'kv1', syncw(10)); Wt(14, 'kv2', syncw(11)); Wt(22, 'kv3', syncw(9)); Wt(30, 'kv7', syncw(12))
    I(17, 'small', 5, lambda: small_loads(a))
    if 'W2F' in cfg.exp:
        I(20, 'p_a', 1, lambda: w2f_produce_a(a))
        Wt(28, 'p_a', lambda y: w2f_produce_b(a, y))
        I(31, 'p_c', 1, lambda: w2f_produce_c(a))
        Wt(39, 'p_c', lambda y: w2f_produce_d(a, y))
        sched.append((39, 'i', 'p_flag', 1, lambda: None))
        for i_, u_ in enumerate([32, 33, 34, 35, 36, 37, 40, 41]): I(u_, f'wm{i_}', 1, (lambda ii: (lambda: warm_dma(a, *wseq[ii])))(i_))
        I(42, 'pt', 1, lambda: pretouch_tail(a))
        I(50, 'w2poll', 0, lambda: w2f_poll(a))
        for k_, u_ in enumerate([51, 52, 53, 54, 55, 56, 57, 58, 59, 60, 61]): I(u_, f'w2l{k_}', 2, (lambda kk: (lambda: w2f_load(a, 2*kk, 2)))(k_))
    else:
        if 'S3' in cfg.exp:
            iss = [24, 32, 40, 48, 54, 60]; rdu = [30, 38, 46, 52, 58, 63]
            wmu = [33, 34, 35, 41, 42, 43, 49, 50]; ptu = 51
        else:
            iss = [24, 34, 42, 48, 54, 60]; rdu = [32, 40, 46, 52, 58, 63]
            wmu = [35, 36, 37, 43, 44, 45, 49, 50]; ptu = 51
        I(iss[0], 'setup', 0, lambda: w2_setup(a))
        for r in range(6):
            I(iss[r], f'R{r}', 4 if r < 5 else 2, (lambda rr: (lambda: w2_issue(a, rr)))(r))
            Wt(rdu[r], f'R{r}', rd(r))
        for i_, u_ in enumerate(wmu): I(u_, f'wm{i_}', 1, (lambda ii: (lambda: warm_dma(a, *wseq[ii])))(i_))
        I(ptu, 'pt', 1, lambda: pretouch_tail(a))
    sched.sort(key=lambda e: (e[0], 0 if e[1] == 'w' else 1))
    issued = []
    for e in sched:
        u_, kind, name, nvm, fn = e
        if kind == 'i':
            issued += [name] * nvm
            add(u_ >> 3, u_ & 7, fn)
        else:
            last = max(i for i, nm in enumerate(issued) if nm == name)
            add(u_ >> 3, u_ & 7, (lambda ff, yy: (lambda: ff(yy)))(fn, len(issued) - 1 - last))
    def wo0():
        a(f"s_lshl_b32 s{T+5}, s{S_W}, 16")
        a(f"s_and_b32 s{T+6}, s{S_H}, 7")
        a(f"s_lshl_b32 s{T+6}, s{T+6}, 7")
        a(f"s_add_u32 s{T+5}, s{T+5}, s{T+6}")
        a(f"s_lshl_b32 s{T+6}, s{S_W}, 12")
        for i in range(4):
            a(f"s_add_u32 m0, s{T+6}, {131072 + i*1024}")
            a(f"s_add_u32 s{T+7}, s{T+5}, {i*16*1024}")
            a(f"buffer_load_dwordx4 v148, s[{S_WO}:{S_WO+3}], s{T+7} offen lds")
    return act

def attn_out(a, cfg, sc):
    T = S_A
    a(f"s_lshl_b32 s{T+4}, s{S_J}, 3")
    a(f"s_add_u32 s{T+4}, s{T+4}, s{S_W}")
    a(f"s_lshl_b32 s{T+4}, s{T+4}, 5")
    a(f"s_add_u32 s{T+4}, s{T+4}, s{S_H}")
    a(f"s_lshl_b32 s{T+4}, s{T+4}, 10")
    a(f"s_add_u32 s{T+4}, s{T+4}, {WS_OF}")
    a(f"buffer_store_dwordx4 v[4:7], v{V_L16}, s[{S_WS}:{S_WS+3}], s{T+4} offen {sc}")

def finish(a, cfg):
    T = S_A
    a(f"s_or_b32 s{T+4}, s2, s{S_W}")
    a(f"s_cmp_lg_u32 s{T+4}, 0")
    a("s_cbranch_scc1 L_fin")
    a(f"s_mov_b32 s{T+4}, {WS_EPOCH}")
    flag_store(a, S_TAG, T+4, "sc1")
    a.label("L_fin")
    stamp_flush(a, cfg)
    a("s_waitcnt vmcnt(0)")
    a.label("L_end")
    a("s_endpgm")

def build(cfg):
    global NOW2
    NOW2 = 'now2' in cfg.exp
    global NOWARM, NOPT
    NOWARM = 'nowarm' in cfg.exp
    NOPT = 'nopt' in cfg.exp
    a = Asm()
    prologue(a, cfg)
    if cfg.skip_p1:
        a("s_waitcnt lgkmcnt(0)")
        srd(a, S_WS, S_KA+20, S_KA+21, WS_SIZE)
        k = S_KA
        srd(a, S_X, k, k+1, 2097152); srd(a, S_WO, k+4, k+5, 524288); srd(a, S_W1, k+8, k+9, 1409024); srd(a, S_B1, k+10, k+11, 2752); srd(a, S_W2, k+12, k+13, 1409024); srd(a, S_B2, k+14, k+15, 1024)
        a(f"s_mov_b32 s{S_RERUN}, 1")
        for r in range(8): a(f"v_mov_b32 v{V_Q+r}, 0x3c003c00")
        if 'rnd' in cfg.exp:
            a(f"s_mov_b32 s{S_A+4}, 0x9e3779b1")
            a(f"v_mul_lo_u32 v2, v0, s{S_A+4}")
            def rnd(dst):
                a(f"v_mul_lo_u32 v2, v2, s{S_A+4}")
                a("v_add_u32 v2, 0x7f4a7c15, v2")
                a(f"v_and_b32 v{dst}, 0xbf7fbf7f, v2")
                a(f"v_or_b32 v{dst}, 0x3e003e00, v{dst}")
            for r in range(8): rnd(V_Q + r)
            a(f"v_lshlrev_b32 v3, 4, v0")
            for i in range(16):
                for r in range(4): rnd(4 + r)
                a(f"ds_write_b128 v3, v[4:7]")
                a(f"v_add_u32 v3, 8192, v3")
            a("s_waitcnt lgkmcnt(0)")
        a("s_barrier")
        stamp(a, cfg, 4)
    else:
        phase1(a, cfg)
    if cfg.stop_after != "p1" and not cfg.v3:
        attention(a, cfg)
        if cfg.stop_after == "attn":
            attn_out(a, cfg, "sc1")
            stamp(a, cfg, 9)
        else:
            import tail
            tail.tail(a, cfg)
    finish(a, cfg)
    errs = check_hazards(a.lines) + check_waits(a.lines)
    if cfg.v3:
        errs += check_waits(a.lines, take=('L3_hw_start',)) + check_waits(a.lines, take=('L3_hw_start', 'L3_o_np', 'L3_o_w1b', 'L3_o_w1d', 'L3_h_cs', 'L3_g_np', 'L3_nf_o', 'L3_f_k1', 'L_p1_nonowner', 'L_p1_st_n'))
        errs = sorted(set(errs))
    errs = [e for e in errs if e.count("buffer_load_dwordx4 v[6:9]") < 2 and e.count("buffer_load_dwordx4 v[40:43]") < 2 and e.count("buffer_load_dwordx4 v[8:11]") < 2]
    for e in errs[:8]: print("!!", e, file=sys.stderr)
    hdr = open("cdna_kernels/" + NAME + ".s.ref").read().split("; Override")[0]
    out = hdr
    out += f"; @launch kernel={KNAME} grid=(256,1,1) block=(512,1,1) lds={LDS_SIZE}\n"
    out += '.amdgcn_target "amdgcn-amd-amdhsa--gfx950"\n.text\n'
    out += f".globl {KNAME}\n.p2align 8\n.type {KNAME},@function\n{KNAME}:\n"
    out += a.text()
    out += f""".section .rodata,"a"
.p2align 6
.amdhsa_kernel {KNAME}
  .amdhsa_next_free_vgpr 256
  .amdhsa_next_free_sgpr 102
  .amdhsa_accum_offset 256
  .amdhsa_group_segment_fixed_size 0
  .amdhsa_kernarg_size 88
  .amdhsa_user_sgpr_count 2
  .amdhsa_user_sgpr_kernarg_segment_ptr 1
  .amdhsa_system_sgpr_workgroup_id_x 1
.end_amdhsa_kernel
"""
    return out, errs

if __name__ == "__main__":
    cfg = Cfg()
    outp = "cdna_kernels/" + NAME + ".s"
    for arg in sys.argv[1:]:
        if arg == "stamps": cfg.stamps = True
        elif arg.startswith("stop="): cfg.stop_after = arg[5:]
        elif arg.startswith("out="): outp = arg[4:]
        elif arg == "pf": cfg.p1_prefetch = True
        elif arg == "p1d": cfg.p1_detail = True
        elif arg == "slow": cfg.force_slow = True
        elif arg == "f2d": cfg.f2_detail = True
        elif arg == "atd": cfg.at_detail = True
        elif arg == "dbgt": cfg.dbgt = True
        elif arg == "rt": cfg.rt = True
        elif arg == "v3": cfg.v3 = True
        elif arg == "ust": cfg.ustamps = True
        elif arg.startswith("exp="): cfg.exp = cfg.exp + "_" + arg[4:]
        elif arg.startswith("EXP="): cfg.exp = arg[4:]
        elif arg == "skip_p1": cfg.skip_p1 = True
        elif arg.startswith("av="): cfg.attn_variant = int(arg[3:])
        elif arg.startswith("prio="): cfg.prio = int(arg[5:])
    txt, errs = build(cfg)
    open(outp, "w").write(txt)
    print("wrote", outp, len(txt), "bytes;", len(errs), "checker findings")
```

```python
import sys
from asmlib import *

NAME = "sequential_preLN__mha_block__dense_activation_squared_relu__prompt"
KNAME = NAME + "_kernel"

WS_EPOCH = 0x0
WS_KVFLAG = 0x1000
WS_LFLAG = 0x12000
WS_TFLAG = 0x10000
WS_KV = 0x100000
WS_OF = 0x500000
WS_HF = 0x700000
WS_GF = 0x900000
WS_QF = 0x1000000
WS_KVL = 0x1200000
WS_W2F = 0x1600000
WS_W2FLAG = 0x14000
WS_HST = 0xE80000
WS_STAMP = 0xF00000
WS_SIZE = 0x1800000

S_X, S_WQKV, S_WS, S_WO, S_W1, S_W2, S_OUT, S_B1, S_B2 = 4, 8, 12, 16, 20, 24, 28, 32, 36
S_DBG = 40
S_J, S_H, S_W, S_TAG, S_FAST = 42, 43, 44, 45, 46
S_RERUN = 47
S_VMASK = 48
S_T0 = 50
S_KA = 52
S_BLK = 74
S_XCC = 75
S_MODE = 99
S_A = 76
S_STAMP = 96
S_STB = 98

LDS_SIZE = 163840

class Cfg:
    stamps = False
    stop_after = None
    p1_prefetch = False
    p1_detail = False
    force_slow = False
    f2_detail = False
    at_detail = False
    dbgt = False
    rt = False
    v3 = True
    ustamps = False
    exp = 'rotj_nowl2_late23_S3_zrows_sch2_early'
    skip_p1 = False
    attn_variant = 1
    prio = 0

DBG_MAP = {40: 11, 41: 12, 0: 13, 4: 14, 18: 15, 1: 1, 2: 2, 14: 3, 12: 4, 8: 5, 16: 6, 19: 7, 21: 8, 22: 9, 24: 10}
def stamp(a, cfg, idx):
    if cfg.dbgt and idx in DBG_MAP:
        lab = f"L_dbg{idx}_{len(a.lines)}"
        a(f"s_lshl_b32 s{S_STAMP}, s{S_W}, 8")
        a(f"s_or_b32 s{S_STAMP}, s{S_STAMP}, s2")
        a(f"s_cmp_lg_u32 s{S_STAMP}, 41")
        a(f"s_cbranch_scc1 {lab}")
        a(f"s_memrealtime s[{S_STAMP}:{S_STAMP+1}]")
        a("s_waitcnt lgkmcnt(0)")
        if idx == 29: a(f"s_not_b32 s{S_STAMP}, s{S_STAMP}")
        a(f"v_mov_b32 v254, s{S_STAMP}")
        a(f"v_mov_b32 v255, {DBG_MAP[idx]*4}")
        a("s_mov_b64 exec, 1")
        a(f"global_atomic_umax v255, v254, s[{S_KA+18}:{S_KA+19}]")
        a("s_mov_b64 exec, -1")
        a.label(lab)
        return
    if not cfg.stamps: return
    a(f"{'s_memrealtime' if cfg.rt else 's_memtime'} s[{S_STAMP}:{S_STAMP+1}]")
    a("s_waitcnt lgkmcnt(0)")
    a(f"v_writelane_b32 v255, s{S_STAMP}, {idx}")

def stamp_flush(a, cfg):
    if not cfg.stamps: return
    a(f"s_memrealtime s[{S_STAMP}:{S_STAMP+1}]")
    a("s_waitcnt lgkmcnt(0)")
    a(f"v_writelane_b32 v255, s{S_STAMP}, 31")
    a(f"s_lshl_b32 s{S_STB}, s2, 3")
    a(f"s_add_u32 s{S_STB}, s{S_STB}, s{S_W}")
    a(f"s_lshl_b32 s{S_STB}, s{S_STB}, 7")
    a(f"s_add_u32 s{S_STB}, s{S_STB}, {WS_STAMP}")
    a(f"v_lshlrev_b32 v254, 2, v{V_LANE}")
    a("s_mov_b64 exec, 0xffffffff")
    a(f"buffer_store_dword v255, v254, s[{S_WS}:{S_WS+3}], s{S_STB} offen")
    a("s_mov_b64 exec, -1")

V_Q = 240
V_XRES = 244
V_B2 = 248
V_L16 = 252
V_LANE = 253

def srd(a, s, lo, hi, size):
    a(f"s_mov_b32 s{s}, s{lo}")
    a(f"s_mov_b32 s{s+1}, s{hi}")
    a(f"s_mov_b32 s{s+2}, {size}")
    a(f"s_mov_b32 s{s+3}, 0x00020000")

def prologue(a, cfg):
    a("s_cmp_ge_u32 s2, 256")
    a("s_cbranch_scc1 L_end")
    a(f"s_load_dwordx16 s[{S_KA}:{S_KA+15}], s[0:1], 0")
    a(f"s_load_dwordx4 s[{S_KA+16}:{S_KA+19}], s[0:1], 64")
    a(f"s_load_dwordx2 s[{S_KA+20}:{S_KA+21}], s[0:1], 80")
    a(f"v_and_b32 v{V_LANE}, 63, v0")
    a("v_lshrrev_b32 v2, 6, v0")
    a(f"v_lshlrev_b32 v{V_L16}, 4, v{V_LANE}")
    a(f"v_readfirstlane_b32 s{S_W}, v2")
    a(f"s_and_b32 s{S_J}, s2, 7")
    a(f"s_lshr_b32 s{S_H}, s2, 3")
    a(f"s_mov_b32 s{S_VMASK}, 0x0000ffff")
    a(f"s_mov_b32 s{S_VMASK+1}, 0x0000ffff")
    a(f"s_getreg_b32 s{S_XCC}, hwreg(HW_REG_XCC_ID, 0, 4)")
    a(f"s_mov_b32 s{S_RERUN}, 0")
    if cfg.dbgt: a(f"s_memrealtime s[90:91]")
    if cfg.stamps:
        a(f"s_memrealtime s[{S_STAMP}:{S_STAMP+1}]")
        a("s_waitcnt lgkmcnt(0)")
        a(f"v_writelane_b32 v255, s{S_STAMP}, 30")
        stamp(a, cfg, 29)

P1_SLOT = 32768
P1_MISC = 131072
P1_CS = P1_MISC
P1_ST = P1_MISC + 4096
P1_PR = P1_MISC + 1024
P1_CSV = P1_MISC + 512
S_G, S_Q4, S_AH, S_TT = 100, 101, 3, 51

def phase1(a, cfg):
    L = V_LANE
    T = S_A
    TMP, TMP2, XO, WO_, M0B = T+9, T+10, T+4, T+1, T+2
    a(f"s_lshr_b32 s{S_G}, s{S_H}, 2")
    a(f"s_and_b32 s{S_Q4}, s{S_H}, 3")
    a(f"s_and_b32 s{S_AH}, s{S_W}, 3")
    a(f"s_lshr_b32 s{S_TT}, s{S_W}, 2")
    a(f"v_lshrrev_b32 v10, 3, v{L}")
    a(f"v_and_b32 v11, 7, v{L}")
    a(f"v_lshrrev_b32 v12, 4, v{L}")
    a(f"s_and_b32 s{TMP}, s{S_W}, 1")
    a(f"s_lshl_b32 s{TMP}, s{TMP}, 2")
    a(f"v_add_u32 v13, s{TMP}, v12")
    a(f"v_xor_b32 v13, v11, v13")
    a(f"v_lshlrev_b32 v13, 4, v13")
    a(f"v_lshl_add_u32 v2, v10, 10, v13")
    a(f"v_mul_u32_u24 v10, 3072, v10")
    a(f"v_and_b32 v12, 1, v12")
    a(f"v_lshrrev_b32 v13, 1, v11")
    a(f"v_and_b32 v14, 1, v11")
    a(f"v_lshl_add_u32 v10, v14, 4, v10")
    a(f"v_xor_b32 v14, v13, v12")
    a(f"v_lshl_add_u32 v3, v14, 5, v10")
    a(f"v_xor_b32 v14, 2, v14")
    a(f"v_lshl_add_u32 v4, v14, 5, v10")
    a(f"v_add_u32 v4, 1024, v4")
    a(f"v_lshlrev_b32 v12, 1, v12")
    a(f"v_xor_b32 v14, v13, v12")
    a(f"v_lshl_add_u32 v5, v14, 5, v10")
    a(f"v_add_u32 v5, 2048, v5")
    a(f"s_lshl_b32 s{XO}, s{S_J}, 8")
    a(f"s_lshl_b32 s{TMP}, s{S_Q4}, 6")
    a(f"s_add_u32 s{XO}, s{XO}, s{TMP}")
    a(f"s_lshl_b32 s{TMP}, s{S_W}, 3")
    a(f"s_add_u32 s{XO}, s{XO}, s{TMP}")
    a(f"s_lshl_b32 s{XO}, s{XO}, 10")
    a(f"s_mul_i32 s{WO_}, s{TMP}, 3072")
    a(f"s_lshl_b32 s{TMP}, s{S_G}, 7")
    a(f"s_add_u32 s{WO_}, s{WO_}, s{TMP}")
    a(f"s_lshl_b32 s{M0B}, s{S_W}, 10")
    a("s_waitcnt lgkmcnt(0)")
    k = S_KA
    srd(a, S_X, k, k+1, 2097152)
    srd(a, S_WQKV, k+2, k+3, 1572864)
    srd(a, S_WS, k+20, k+21, WS_SIZE)
    if cfg.dbgt:
        a(f"s_lshl_b32 s{S_STAMP}, s{S_W}, 8")
        a(f"s_or_b32 s{S_STAMP}, s{S_STAMP}, s2")
        a(f"s_cmp_lg_u32 s{S_STAMP}, 41")
        a("s_cbranch_scc1 L_dbgstart")
        a("s_not_b32 s90, s90")
        a("v_mov_b32 v254, s90")
        a("v_mov_b32 v255, 0")
        a("s_mov_b64 exec, 1")
        a(f"global_atomic_umax v255, v254, s[{S_KA+18}:{S_KA+19}]")
        a("s_mov_b64 exec, -1")
        a.label("L_dbgstart")
        stamp(a, cfg, 40)
    C0 = T+12
    if 'rotg' in cfg.exp: a(f"s_mov_b32 s{C0}, s{S_G}")
    elif 'rot0' in cfg.exp: a(f"s_mov_b32 s{C0}, 0")
    elif 'rotj' in cfg.exp: a(f"s_mov_b32 s{C0}, s{S_J}")
    elif 'rotk' in cfg.exp:
        a(f"s_add_u32 s{C0}, s{S_J}, s{S_G}")
    else:
        a(f"s_lshl_b32 s{C0}, s{S_Q4}, 1")
        a(f"s_add_u32 s{C0}, s{C0}, s{S_G}")
    NT = 'nt ' if 'nt1' in cfg.exp else ''
    def group(c):
        base = (c % 4) * P1_SLOT
        a(f"s_add_u32 s{TMP2}, s{C0}, {c}")
        a(f"s_and_b32 s{TMP2}, s{TMP2}, 7")
        a(f"s_lshl_b32 s{TMP}, s{TMP2}, 7")
        a(f"s_add_u32 s{TMP}, s{TMP}, s{XO}")
        a(f"s_add_u32 m0, s{M0B}, {base}")
        a(f"s_mul_i32 s{TMP2}, s{TMP2}, {64*3072}")
        a(f"buffer_load_dwordx4 v2, s[{S_X}:{S_X+3}], s{TMP} offen {NT}lds")
        a(f"s_add_u32 m0, s{M0B}, {base+8192}")
        a(f"s_add_u32 s{TMP}, s{WO_}, s{TMP2}")
        a(f"buffer_load_dwordx4 v3, s[{S_WQKV}:{S_WQKV+3}], s{TMP} offen {NT}lds")
        a(f"s_add_u32 m0, s{M0B}, {base+16384}")
        a("s_nop 0")
        a(f"buffer_load_dwordx4 v4, s[{S_WQKV}:{S_WQKV+3}], s{TMP} offen {NT}lds")
        a(f"s_add_u32 m0, s{M0B}, {base+24576}")
        a("s_nop 0")
        a(f"buffer_load_dwordx4 v5, s[{S_WQKV}:{S_WQKV+3}], s{TMP} offen {NT}lds")
    SPN = [0]
    def sib_prefetch_l(c):
        SPN[0] += 1
        sib_prefetch(f"{c}", c, SPN[0])
    def sib_prefetch(_, c, u):
        a(f"s_add_u32 s{TMP2}, s{C0}, {c}")
        a(f"s_and_b32 s{TMP2}, s{TMP2}, 7")
        a(f"s_cmp_ge_u32 s{S_W}, 6")
        a(f"s_cbranch_scc1 L_sp{u}_x")
        a(f"s_mul_i32 s{TMP}, s{S_Q4}, 6")
        a(f"s_add_u32 s{TMP}, s{TMP}, s{S_W}")
        a(f"s_mul_i32 s{TMP2}, s{TMP2}, {64*3072}")
        a(f"s_and_b32 s{T+13}, s{TMP}, 7")
        a(f"s_mul_i32 s{T+13}, s{T+13}, {8*3072}")
        a(f"s_add_u32 s{TMP2}, s{TMP2}, s{T+13}")
        a(f"s_lshr_b32 s{TMP}, s{TMP}, 3")
        a(f"s_lshl_b32 s{TMP}, s{TMP}, 10")
        a(f"s_add_u32 s{TMP2}, s{TMP2}, s{TMP}")
        a(f"s_lshl_b32 s{TMP}, s{S_G}, 7")
        a(f"s_add_u32 s{TMP2}, s{TMP2}, s{TMP}")
        a(f"buffer_load_dwordx4 v[40:43], v47, s[{S_WQKV}:{S_WQKV+3}], s{TMP2} offen")
        a(f"s_branch L_sp{u}_d")
        a.label(f"L_sp{u}_x")
        a(f"s_lshl_b32 s{TMP2}, s{TMP2}, 7")
        a(f"s_lshl_b32 s{TMP}, s{S_J}, 8")
        a(f"s_lshl_b32 s{T+13}, s{S_Q4}, 6")
        a(f"s_add_u32 s{TMP}, s{TMP}, s{T+13}")
        a(f"s_lshl_b32 s{T+13}, s{S_G}, 3")
        a(f"s_add_u32 s{TMP}, s{TMP}, s{T+13}")
        a(f"s_lshl_b32 s{TMP}, s{TMP}, 10")
        a(f"s_add_u32 s{TMP2}, s{TMP2}, s{TMP}")
        a(f"buffer_load_dwordx4 v[40:43], v46, s[{S_X}:{S_X+3}], s{TMP2} offen")
        a.label(f"L_sp{u}_d")
    if 'roll' in cfg.exp:
        a(f"v_lshrrev_b32 v47, 3, v{L}")
        a(f"v_and_b32 v46, 7, v{L}")
        a(f"v_lshlrev_b32 v46, 4, v46")
        a(f"v_lshl_add_u32 v45, v47, 10, v46")
        a(f"v_mul_u32_u24 v47, 3072, v47")
        a(f"v_add_u32 v47, v47, v46")
        a(f"v_mov_b32 v46, v45")
    a("v_mov_b32 v30, 0")
    a(f"buffer_load_dword v31, v30, s[{S_WS}:{S_WS+3}], 0 offen")
    group(0)
    if 'g0only' in cfg.exp:
        stamp(a, cfg, 0)
        a("s_waitcnt vmcnt(3)"); stamp(a, cfg, 2)
        a("s_waitcnt vmcnt(2)"); stamp(a, cfg, 3)
        a("s_waitcnt vmcnt(0)"); stamp(a, cfg, 4)
        a("s_barrier"); stamp(a, cfg, 1)
        return
    if cfg.p1_prefetch:
        a(f"s_cmp_ge_u32 s{S_W}, 6")
        a("s_cbranch_scc1 L_p1_pfx")
        a(f"s_and_b32 s{TMP}, s{S_W}, 1")
        a(f"s_lshl_b32 s{TMP}, s{TMP}, 6")
        a(f"s_lshl_b32 s{TMP2}, s{S_Q4}, 7")
        a(f"s_add_u32 s{TMP}, s{TMP}, s{TMP2}")
        a(f"s_mul_i32 s{TMP}, s{TMP}, 3072")
        a(f"s_lshr_b32 s{TMP2}, s{S_W}, 1")
        a(f"s_lshl_b32 s{TMP2}, s{TMP2}, 10")
        a(f"s_add_u32 s{TMP}, s{TMP}, s{TMP2}")
        a(f"s_lshl_b32 s{TMP2}, s{S_G}, 7")
        a(f"s_add_u32 s{TMP}, s{TMP}, s{TMP2}")
        a(f"v_mul_u32_u24 v40, 3072, v{L}")
        a(f"buffer_load_dword v41, v40, s[{S_WQKV}:{S_WQKV+3}], s{TMP} offen")
        a(f"buffer_load_dword v42, v40, s[{S_WQKV}:{S_WQKV+3}], s{TMP} offen offset:64")
        a("s_branch L_p1_pfd")
        a.label("L_p1_pfx")
        a(f"s_lshl_b32 s{TMP}, s{S_J}, 8")
        a(f"s_lshl_b32 s{TMP2}, s{S_Q4}, 6")
        a(f"s_add_u32 s{TMP}, s{TMP}, s{TMP2}")
        a(f"s_lshl_b32 s{TMP2}, s{S_G}, 3")
        a(f"s_add_u32 s{TMP}, s{TMP}, s{TMP2}")
        a(f"s_lshl_b32 s{TMP}, s{TMP}, 10")
        a(f"v_lshlrev_b32 v40, 7, v{L}")
        a(f"buffer_load_dword v41, v40, s[{S_X}:{S_X+3}], s{TMP} offen")
        a(f"buffer_load_dword v42, v40, s[{S_X}:{S_X+3}], s{TMP} offen offset:64")
        a.label("L_p1_pfd")
    if 'nowl2' not in cfg.exp:
        a(f"s_lshl_b32 s{TMP}, s{S_H}, 3")
        a(f"s_add_u32 s{TMP}, s{TMP}, s{S_W}")
        a(f"s_mul_i32 s{TMP}, s{TMP}, 6144")
        for i in range(4):
            a(f"buffer_load_dwordx4 v[40:43], v{V_L16}, s[{S_WQKV}:{S_WQKV+3}], s{TMP} offen offset:{i*1024}")
        a(f"s_add_u32 s{TMP}, s{TMP}, 4096")
        for i in range(2):
            a(f"buffer_load_dwordx4 v[40:43], v{V_L16}, s[{S_WQKV}:{S_WQKV+3}], s{TMP} offen offset:{i*1024}")
        a(f"s_lshl_b32 s{TMP}, s{S_J}, 8")
        a(f"s_lshl_b32 s{TMP2}, s{S_Q4}, 6")
        a(f"s_add_u32 s{TMP}, s{TMP}, s{TMP2}")
        a(f"s_lshl_b32 s{TMP2}, s{S_G}, 3")
        a(f"s_add_u32 s{TMP}, s{TMP}, s{TMP2}")
        a(f"s_add_u32 s{TMP}, s{TMP}, s{S_W}")
        a(f"s_lshl_b32 s{TMP}, s{TMP}, 10")
        a(f"buffer_load_dwordx4 v[40:43], v{V_L16}, s[{S_X}:{S_X+3}], s{TMP} offen")
    a("s_barrier")
    if cfg.dbgt: stamp(a, cfg, 41)
    if 'nowl2' in cfg.exp: group(1)
    if 'roll' in cfg.exp:
        sib_prefetch_l(4); sib_prefetch_l(5)
    if 'cpf' in cfg.exp:
        a(f"s_cmp_ge_u32 s{S_H}, 2")
        a("s_cbranch_scc1 L_nocpf")
        a(f"s_cmp_lt_u32 s{S_W}, 4")
        a("s_cbranch_scc1 L_nocpf")
        a("s_getpc_b64 s[90:91]")
        a.label("L_cpf_pc")
        a(f"s_sub_u32 s{TMP}, s{S_W}, 4")
        a(f"s_lshl_b32 s{TMP}, s{TMP}, 13")
        a(f"s_lshl_b32 s{TMP2}, s{S_H}, 15")
        a(f"s_add_u32 s{TMP}, s{TMP}, s{TMP2}")
        a(f"v_lshlrev_b32 v40, 7, v{L}")
        a(f"v_add_u32 v40, s{TMP}, v40")
        a(f"v_cmp_gt_u32 vcc, CODE_BYTES, v40")
        a(f"s_and_saveexec_b64 s[98:99], vcc")
        a("s_cbranch_execz L_cpf_x")
        a("global_load_dword v41, v40, s[90:91]")
        a.label("L_cpf_x")
        a("s_mov_b64 exec, s[98:99]")
        a.label("L_nocpf")
    if 'sibpf' in cfg.exp:
        a(f"s_add_u32 s{TMP2}, s{C0}, s{S_Q4}")
        a(f"s_add_u32 s{TMP2}, s{TMP2}, 4")
        a(f"s_and_b32 s{TMP2}, s{TMP2}, 7")
        a(f"s_mul_i32 s{TMP2}, s{TMP2}, {64*3072}")
        a(f"s_add_u32 s{TMP}, s{WO_}, s{TMP2}")
        for vv in (3, 4, 5):
            a(f"buffer_load_dwordx4 v[40:43], v{vv}, s[{S_WQKV}:{S_WQKV+3}], s{TMP} offen")
        a(f"s_add_u32 s{TMP2}, s{C0}, s{S_G}")
        a(f"s_and_b32 s{TMP2}, s{TMP2}, 7")
        a(f"s_lshl_b32 s{TMP}, s{TMP2}, 7")
        a(f"s_add_u32 s{TMP}, s{TMP}, s{XO}")
        a(f"buffer_load_dwordx4 v[40:43], v2, s[{S_X}:{S_X+3}], s{TMP} offen")
    a(f"v_and_b32 v20, 31, v{L}")
    a(f"v_lshrrev_b32 v21, 5, v{L}")
    a(f"v_bfe_u32 v22, v{L}, 1, 3")
    a(f"v_xor_b32 v22, v21, v22")
    a(f"v_lshlrev_b32 v22, 4, v22")
    a(f"v_lshl_add_u32 v22, v20, 7, v22")
    a(f"s_lshl_b32 s{TMP}, s{S_TT}, 12")
    a(f"v_add_u32 v8, s{TMP}, v22")
    a(f"v_xor_b32 v9, 32, v8")
    a(f"v_xor_b32 v10, 64, v8")
    a(f"v_xor_b32 v11, 96, v8")
    a(f"s_lshl_b32 s{TMP}, s{S_AH}, 5")
    a(f"v_xor_b32 v7, s{TMP}, v8")
    a(f"v_bfe_u32 v20, v{L}, 2, 2")
    a(f"v_lshl_add_u32 v23, v21, 3, v20")
    a(f"v_lshlrev_b32 v23, 7, v23")
    a(f"v_and_b32 v22, 3, v{L}")
    a(f"v_lshl_add_u32 v23, v22, 3, v23")
    a(f"v_bfe_u32 v24, v{L}, 3, 1")
    a(f"v_bfe_u32 v25, v{L}, 4, 1")
    a(f"v_lshlrev_b32 v26, 1, v25")
    a(f"v_xor_b32 v26, v26, v24")
    a(f"v_xor_b32 v26, s{S_AH}, v26")
    a(f"v_lshl_add_u32 v12, v26, 5, v23")
    a(f"v_lshl_add_u32 v12, v25, 13, v12")
    a(f"v_add_u32 v12, 8192, v12")
    a(f"s_and_b32 s{TMP}, s{S_AH}, 2")
    a(f"v_lshlrev_b32 v26, 1, v24")
    a(f"v_or_b32 v25, s{TMP}, v25")
    a(f"v_xor_b32 v26, v26, v25")
    a(f"v_lshl_add_u32 v13, v26, 5, v23")
    a(f"v_add_u32 v13, 24576, v13")
    a("v_mov_b32 v18, 0x3f803f80")
    for r in (14, 15, 16, 17, 22, 23): a(f"v_mov_b32 v{r}, 0")
    for r in range(48, 80): a(f"v_mov_b32 v{r}, 0")
    if 'nowl2' in cfg.exp and 'late23' not in cfg.exp:
        a("s_barrier")
        group(2); group(3)
    if 'tlb' in cfg.exp:
        a(f"s_cmp_lg_u32 s{S_W}, 7")
        a("s_cbranch_scc1 L_p1_notlb")
        a(f"v_lshlrev_b32 v40, 14, v{L}")
        a(f"s_lshl_b32 s{TMP}, s{S_H}, 20")
        a(f"buffer_load_dword v42, v40, s[{S_WS}:{S_WS+3}], s{TMP} offen")
        a(f"v_lshlrev_b32 v40, 10, v{L}")
        a(f"s_lshl_b32 s{TMP}, s{S_H}, 16")
        a(f"buffer_load_dword v43, v40, s[{S_KA+16}:{S_KA+19}], s{TMP} offen") if False else None
        a.label("L_p1_notlb")
    NPT = 5 if 'ptkv' in cfg.exp else 3
    a(f"s_cmp_ge_u32 s{S_W}, {NPT}")
    a("s_cbranch_scc1 L_p1_nopt")
    a(f"s_lshl_b32 s{TMP}, s{S_H}, 3")
    a(f"s_add_u32 s{TMP}, s{TMP}, s{S_J}")
    a(f"s_lshl_b32 s{TMP2}, s{TMP}, 14")
    a(f"s_lshl_b32 s{TMP}, s{TMP}, 13")
    a(f"s_add_u32 s{TMP}, s{TMP}, {WS_QF}")
    a(f"s_cmp_eq_u32 s{S_W}, 0")
    a("s_cbranch_scc1 L_p1_ptgo")
    a(f"s_sub_u32 s{TMP}, s{S_W}, 1")
    a(f"s_and_b32 s{T+13}, s{TMP}, 1")
    a(f"s_lshl_b32 s{T+13}, s{T+13}, 13")
    a(f"s_add_u32 s{TMP2}, s{TMP2}, s{T+13}")
    a(f"s_cmp_lt_u32 s{TMP}, 2")
    a(f"s_mov_b32 s{TMP}, {WS_KV}")
    a(f"s_cselect_b32 s{TMP}, {WS_KVL}, s{TMP}")
    a(f"s_add_u32 s{TMP}, s{TMP}, s{TMP2}")
    a.label("L_p1_ptgo")
    a(f"v_lshlrev_b32 v44, 7, v{L}")
    a(f"buffer_load_dword v45, v44, s[{S_WS}:{S_WS+3}], s{TMP} offen")
    a.label("L_p1_nopt")
    a(f"s_lshl_b32 s92, s{S_G}, 2")
    a(f"s_add_u32 s92, s92, s{S_AH}")
    a(f"s_lshl_b32 s92, s92, 3")
    a(f"s_add_u32 s92, s92, s{S_J}")
    a(f"s_lshl_b32 s93, s{S_Q4}, 1")
    a(f"s_add_u32 s93, s93, s{S_TT}")
    a(f"s_lshl_b32 s93, s93, 10")
    a(f"s_lshl_b32 s94, s92, 14")
    a(f"s_add_u32 s94, s94, s93")
    a(f"s_lshl_b32 s92, s92, 13")
    a(f"s_add_u32 s92, s92, s93")
    a(f"s_add_u32 s92, s92, {WS_QF}")
    a(f"s_add_u32 s93, s94, {WS_KVL}")
    a(f"s_add_u32 s94, s94, {WS_KV}")
    a(f"v_bfe_u32 v144, v{L}, 4, 1")
    a(f"s_and_b32 s{TMP2}, s{S_AH}, 1")
    a(f"v_subrev_u32 v144, s{TMP2}, v144")
    a(f"v_lshlrev_b32 v144, 17, v144")
    a(f"v_and_b32 v145, 15, v{L}")
    a(f"v_lshlrev_b32 v145, 4, v145")
    a(f"v_lshrrev_b32 v146, 5, v{L}")
    a(f"v_lshl_add_u32 v145, v146, 8, v145")
    a(f"v_add_u32 v144, v144, v145")
    a(f"v_add_u32 v144, {8192 + 0x20000}, v144")
    srd(a, S_WO, k+4, k+5, 524288)
    srd(a, S_W1, k+8, k+9, 1409024)
    srd(a, S_B1, k+10, k+11, 2752)
    srd(a, S_W2, k+12, k+13, 1409024)
    srd(a, S_B2, k+14, k+15, 1024)
    srd(a, S_OUT, k+16, k+17, 2097152)
    a(f"s_mov_b32 s{S_DBG}, s{k+18}")
    a(f"s_mov_b32 s{S_DBG+1}, s{k+19}")
    if 'tlb' in cfg.exp:
        a(f"s_cmp_lg_u32 s{S_W}, 6")
        a("s_cbranch_scc1 L_p1_notlb2")
        a(f"v_lshlrev_b32 v40, 10, v{L}")
        a(f"s_lshl_b32 s{TMP}, s{S_H}, 16")
        for srd_, dst in ((S_OUT, 42), (S_W1, 43), (S_W2, 44), (S_WO, 45)):
            a(f"buffer_load_dword v{dst}, v40, s[{srd_}:{srd_+3}], s{TMP} offen")
        a.label("L_p1_notlb2")
    stamp(a, cfg, 0)
    a(f"s_waitcnt vmcnt({((4 if 'late23' in cfg.exp else 12) + (4 if 'sibpf' in cfg.exp else 0) + (2 if 'roll' in cfg.exp else 0)) if 'nowl2' in cfg.exp else 7})")
    a(f"v_readfirstlane_b32 s{S_TAG}, v31")
    a("s_waitcnt lgkmcnt(0)")
    a(f"s_mul_i32 s{S_TAG}, s{S_TAG}, 1664525")
    a(f"s_add_u32 s{S_TAG}, s{S_TAG}, 1013904223")
    a("s_barrier")
    stamp(a, cfg, 1)
    XB = [80 + 4*i for i in range(4)]
    XS = 96
    WQ = [112 + 8*i for i in range(4)]; WVr = [116 + 8*i for i in range(4)]
    def reads_l(c, ks, owner):
        o = (c % 4) * P1_SLOT
        L_ = []
        L_.append(f"ds_read_b128 v[{XB[ks]}:{XB[ks]+3}], v{8+ks} offset:{o % 65536}" if o < 65536 else f"ds_read_b128 v[{XB[ks]}:{XB[ks]+3}], v{148+ks} offset:{o-65536}")
        qa = 12 if o < 65536 else 152
        oo = (o % 65536) + ks*2048
        L_.append(f"ds_read_b64_tr_b16 v[{WQ[ks]}:{WQ[ks]+1}], v{qa} offset:{oo}")
        L_.append(f"ds_read_b64_tr_b16 v[{WQ[ks]+2}:{WQ[ks]+3}], v{qa} offset:{oo+512}")
        if owner:
            va = 13 if o < 65536 else 153
            L_.append(f"ds_read_b64_tr_b16 v[{WVr[ks]}:{WVr[ks]+1}], v{va} offset:{oo}")
            L_.append(f"ds_read_b64_tr_b16 v[{WVr[ks]+2}:{WVr[ks]+3}], v{va} offset:{oo+512}")
        return L_
    def reads(c, ks, owner):
        for i_ in reads_l(c, ks, owner): a(i_)
    ONES = 156; CSV = 160
    def sread_l(c, owner):
        o = (c % 4) * P1_SLOT
        xs = XS + 4 * (c % 2)
        L_ = [f"ds_read_b128 v[{xs}:{xs+3}], v{7 if o < 65536 else 154} offset:{o % 65536}"]
        if not owner:
            va = 6 if o < 65536 else 155
            for q in range(2):
                b = 176 + 8 * (c % 2) + 4 * q
                L_.append(f"ds_read_b64_tr_b16 v[{b}:{b+1}], v{va} offset:{(o % 65536) + q*2048}")
                L_.append(f"ds_read_b64_tr_b16 v[{b+2}:{b+3}], v{va} offset:{(o % 65536) + q*2048 + 512}")
        return L_
    def sread(c, owner):
        for i_ in sread_l(c, owner): a(i_)
    def stats_l(c, r):
        t = 36 + 2 * (r & 1)
        xs = XS + 4 * (c % 2)
        return [f"v_lshlrev_b32 v{t}, 16, v{xs+r}", f"v_and_b32 v{t+1}, 0xffff0000, v{xs+r}", f"v_fmac_f32 v14, v{t}, v{t}",
                f"v_add_f32 v22, v22, v{t}", f"v_fmac_f32 v15, v{t+1}, v{t+1}", f"v_add_f32 v23, v23, v{t+1}"]
    def compute(c, ks, owner, fill):
        x = XB[ks]
        M = [f"v_mfma_f32_32x32x16_bf16 v[48:63], v[{WQ[ks]}:{WQ[ks]+3}], v[{x}:{x+3}], v[48:63]"]
        if owner:
            M.append(f"v_mfma_f32_32x32x16_bf16 v[64:79], v[{x}:{x+3}], v[{WVr[ks]}:{WVr[ks]+3}], v[64:79]")
        else:
            M.append(f"v_mfma_f32_32x32x16_bf16 v[64:79], v[{WQ[ks]}:{WQ[ks]+3}], v[{ONES}:{ONES+3}], v[64:79]")
            if ks < 2:
                b = 176 + 8 * (c % 2) + 4 * ks
                M.append(f"v_mfma_f32_32x32x16_bf16 v[{CSV}:{CSV+15}], v[{ONES}:{ONES+3}], v[{b}:{b+3}], v[{CSV}:{CSV+15}]")
        F = list(fill) + stats_l(c, ks)
        k_ = len(M)
        per = (len(F) + k_ - 1) // k_
        for i_, m_ in enumerate(M):
            a(m_)
            for f_ in F[i_*per:(i_+1)*per]:
                if callable(f_): f_()
                else: a(f_)
    a(f"s_and_b32 s{TMP}, s{S_AH}, 1")
    a(f"s_lshl_b32 s{TMP}, s{TMP}, 12")
    a(f"v_add_u32 v6, s{TMP}, v13")
    for i in range(4): a(f"v_add_u32 v{148+i}, 0x10000, v{8+i}")
    a("v_add_u32 v152, 0x10000, v12")
    a("v_add_u32 v153, 0x10000, v13")
    a("v_add_u32 v154, 0x10000, v7")
    a("v_add_u32 v155, 0x10000, v6")
    for r in range(4): a(f"v_mov_b32 v{ONES+r}, 0x3f803f80")
    for r in range(16): a(f"v_mov_b32 v{CSV+r}, 0")
    a(f"s_cmp_lg_u32 s{S_W}, 0")
    a("s_cbranch_scc1 L_p1_nohello")
    a(f"s_lshl_b32 s{TMP}, s{S_J}, 7")
    a(f"s_lshl_b32 s{TMP2}, s{S_H}, 2")
    a(f"s_add_u32 s{TMP}, s{TMP}, s{TMP2}")
    a(f"s_add_u32 s{TMP}, s{TMP}, {WS_TFLAG}")
    a(f"s_add_u32 s{TMP2}, s{S_TAG}, s{S_XCC}")
    a(f"s_add_u32 s{TMP2}, s{TMP2}, 1")
    a(f"v_mov_b32 v28, s{TMP2}")
    a("v_mov_b32 v29, 0")
    a("s_mov_b64 exec, 1")
    a(f"buffer_store_dword v28, v29, s[{S_WS}:{S_WS+3}], s{TMP} offen sc1")
    a("s_mov_b64 exec, -1")
    a.label("L_p1_nohello")
    a(f"s_and_b32 s{TMP}, s{S_AH}, 1")
    a(f"s_cmp_eq_u32 s{TMP}, s{S_TT}")
    a("s_cbranch_scc0 L_p1_nonowner")
    for owner in (True, False):
        n = 5 if owner else 3
        m = 1 if owner else 5
        if not owner: a.label("L_p1_nonowner")
        sread(0, owner); reads(0, 0, owner); reads(0, 1, owner)
        roll = 'roll' in cfg.exp
        RL = 5 if 'roll5' in cfg.exp else 6
        vm = ['g0']*4 + ['g1']*4
        if roll: vm += ['sp'] * 2
        def yng(name): return len(vm) - 1 - max(i for i, x in enumerate(vm) if x == name)
        for c in range(8):
            last = c == 7
            a(f"s_waitcnt lgkmcnt({n})")
            l23 = c == 0 and 'late23' in cfg.exp
            f0 = []
            if l23: f0.append(lambda: group(2)); vm += ['g2']*4
            compute(c, 0, owner, f0 + reads_l(c, 2, owner))
            a(f"s_waitcnt lgkmcnt({n})")
            f1 = []
            if l23: f1.append(lambda: group(3)); vm += ['g3']*4
            if roll and c + RL <= 7:
                f1.append((lambda cc: (lambda: sib_prefetch_l(cc)))(c + RL)); vm += ['sp']
            compute(c, 1, owner, f1 + reads_l(c, 3, owner))
            if not last:
                a(f"s_waitcnt vmcnt({yng(f'g{c+1}')}) lgkmcnt({n})")
                if 'nobar' not in cfg.exp: a("s_barrier")
                compute(c, 2, owner, sread_l(c + 1, owner) + reads_l(c + 1, 0, owner))
                a(f"s_waitcnt lgkmcnt({m+n})")
                fill = reads_l(c + 1, 1, owner)
                if c >= 1 and c + 3 <= 7 and 'nodma' not in cfg.exp:
                    fill = fill + [(lambda cc: (lambda: group(cc)))(c + 3)]
                    vm += [f'g{c+3}']*4
                if c == 4:
                    def hello_load():
                        a(f"s_lshl_b32 s{TMP}, s{S_J}, 7")
                        a(f"s_add_u32 s{TMP}, s{TMP}, {WS_TFLAG}")
                        a(f"v_and_b32 v28, 31, v{L}")
                        a("v_lshlrev_b32 v28, 2, v28")
                        a(f"buffer_load_dword v29, v28, s[{S_WS}:{S_WS+3}], s{TMP} offen sc1")
                    fill = fill + [hello_load]; vm += ['hl']
                compute(c, 3, owner, fill)
            else:
                a(f"s_waitcnt lgkmcnt({n})")
                compute(c, 2, owner, [])
                a("s_waitcnt lgkmcnt(0)")
                compute(c, 3, owner, [])
        if owner: a("s_branch L_p1_joined")
    a.label("L_p1_joined")
    stamp(a, cfg, 2)
    p1_epilogue(a, cfg)

def p1_epilogue(a, cfg):
    L = V_LANE
    T = S_A
    TMP, TMP2 = T+9, T+10
    a(f"v_lshrrev_b32 v21, 5, v{L}")
    a("v_add_f32 v22, v22, v23")
    a("v_add_f32 v16, v14, v15")
    a(f"v_and_b32 v25, 31, v{L}")
    a("v_mov_b32 v23, v22")
    a("v_mov_b32 v17, v16")
    a(f"v_lshlrev_b32 v25, 2, v25")
    a(f"s_lshl_b32 s{TMP}, s{S_TT}, 10")
    a("v_permlane32_swap_b32 v22, v23")
    a("v_permlane32_swap_b32 v16, v17")
    a(f"s_add_u32 s{TMP}, s{TMP}, {P1_ST}")
    a(f"v_lshl_add_u32 v26, v25, 1, s{TMP}")
    a(f"s_lshl_b32 s{TMP2}, s{S_AH}, 8")
    a(f"v_add_u32 v27, s{TMP2}, v26")
    a("v_add_f32 v22, v22, v23")
    a("v_add_f32 v23, v16, v17")
    a("s_mov_b64 exec, 0xffffffff")
    a("ds_write_b64 v27, v[22:23]")
    a(f"s_and_b32 s{TMP2}, s{S_AH}, 1")
    a(f"s_cmp_eq_u32 s{TMP2}, s{S_TT}")
    a("s_cbranch_scc1 L_p1_e1")
    a(f"s_lshl_b32 s{TMP}, s{S_AH}, 7")
    a(f"s_add_u32 s{TMP}, s{TMP}, {P1_CSV}")
    a(f"v_add_u32 v27, s{TMP}, v25")
    a("ds_write_b32 v27, v160")
    a(f"s_lshl_b32 s{TMP}, s{S_AH}, 7")
    a(f"s_add_u32 s{TMP}, s{TMP}, {P1_CS}")
    a("s_mov_b64 exec, -1")
    a(f"v_lshlrev_b32 v27, 4, v21")
    a(f"v_add_u32 v27, s{TMP}, v27")
    a("s_mov_b32 exec_lo, 1")
    a("s_mov_b32 exec_hi, 1")
    for jj in range(4):
        a(f"ds_write_b128 v27, v[{64+4*jj}:{67+4*jj}] offset:{jj*32}")
    a.label("L_p1_e1")
    a("s_mov_b64 exec, -1")
    a(f"s_lshl_b32 s{TMP}, s{S_J}, 7")
    a(f"s_add_u32 s{TMP}, s{TMP}, {WS_TFLAG}")
    a(f"s_add_u32 s{TMP2}, s{S_TAG}, 1")
    a(f"s_mov_b32 s{T+11}, 0")
    a("s_waitcnt vmcnt(0)")
    a.label("L_p1_hchk")
    a(f"v_subrev_u32 v29, s{TMP2}, v29")
    a("v_cmp_lt_u32 vcc, 15, v29")
    a("s_cbranch_vccz L_p1_hok")
    a(f"s_add_u32 s{T+11}, s{T+11}, 1")
    a(f"s_cmp_gt_u32 s{T+11}, 0x100000")
    a("s_cbranch_scc1 L_p1_hok")
    a(f"buffer_load_dword v29, v28, s[{S_WS}:{S_WS+3}], s{TMP} offen sc1")
    a("s_waitcnt vmcnt(0)")
    a("s_branch L_p1_hchk")
    a.label("L_p1_hok")
    a(f"v_cmp_ne_u32 vcc, s{S_XCC}, v29")
    a(f"s_cmp_eq_u64 vcc, 0")
    a(f"s_cselect_b32 s{S_FAST}, 1, 0")
    if cfg.force_slow: a(f"s_mov_b32 s{S_FAST}, 0")
    a("s_waitcnt lgkmcnt(0)")
    a("s_barrier")
    stamp(a, cfg, 3)
    for q in range(4):
        a(f"ds_read_b64 v[{36+2*q}:{37+2*q}], v26 offset:{q*256}")
    a(f"s_lshl_b32 s{TMP}, s{S_AH}, 7")
    a(f"s_add_u32 s{TMP}, s{TMP}, {P1_CS}")
    a(f"v_lshlrev_b32 v20, 4, v21")
    a(f"v_add_u32 v20, s{TMP}, v20")
    for jj in range(4):
        a(f"ds_read_b128 v[{80+4*jj}:{83+4*jj}], v20 offset:{jj*32}")
    a(f"s_and_b32 s{TMP}, s{S_AH}, 2")
    a(f"s_lshl_b32 s{TMP}, s{TMP}, 7")
    a(f"s_add_u32 s{TMP}, s{TMP}, {P1_CSV}")
    a(f"v_add_u32 v27, s{TMP}, v25")
    a("ds_read_b32 v19, v27")
    a("ds_read_b32 v18, v27 offset:128")
    QO, KL, KR = 92, 93, 94
    a("s_waitcnt lgkmcnt(6)")
    a("v_pk_add_f32 v[36:37], v[36:37], v[38:39]")
    a("v_pk_add_f32 v[40:41], v[40:41], v[42:43]")
    a("v_pk_add_f32 v[36:37], v[36:37], v[40:41]")
    a("v_mul_f32 v14, 0x3b000000, v36")
    a("v_mul_f32 v16, 0x3b000000, v37")
    a("v_fma_f32 v16, -v14, v14, v16")
    a("v_add_f32 v16, 0x3727c5ac, v16")
    a("v_rsq_f32 v16, v16")
    a(f"s_lshl_b32 s{TMP}, s{S_W}, 8")
    a(f"s_add_u32 s{TMP}, s{TMP}, {P1_PR}")
    a(f"v_add_u32 v25, s{TMP}, v25")
    a("v_mul_f32 v17, v14, v16")
    a("v_mul_f32 v15, 0x3eb8aa3b, v16")
    a(f"v_lshlrev_b32 v23, 4, v21")
    a(f"v_add_u32 v23, s{TMP}, v23")
    if cfg.p1_detail: stamp(a, cfg, 25)
    a("ds_write_b32 v25, v16")
    a("ds_write_b32 v25, v17 offset:128")
    a("s_waitcnt lgkmcnt(2)")
    a("v_add_f32 v19, v19, v18")
    for i in range(8, 16, 2):
        a(f"v_pk_fma_f32 v[{48+i}:{49+i}], v[{80+i}:{81+i}], v[14:15], v[{48+i}:{49+i}] op_sel_hi:[1,0,1] neg_lo:[0,1,0] neg_hi:[0,1,0]")
    for i in range(8, 16, 2):
        a(f"v_pk_mul_f32 v[{48+i}:{49+i}], v[{48+i}:{49+i}], v[16:17] op_sel_hi:[1,0]")
    for n in range(4):
        a(f"v_cvt_pk_bf16_f32 v{28+n}, v{56+2*n}, v{57+2*n}")
    W = f"s[{S_WS}:{S_WS+3}]"
    def mstore(ins, uniq):
        a(f"s_cmp_eq_u32 s{S_FAST}, 0")
        a(f"s_cbranch_scc1 L_p1s_{uniq}_s")
        for i_ in ins: a(i_.format(sc=""))
        a(f"s_branch L_p1s_{uniq}_d")
        a.label(f"L_p1s_{uniq}_s")
        for i_ in ins: a(i_.format(sc="sc1"))
        a.label(f"L_p1s_{uniq}_d")
    mstore([f"buffer_store_dwordx4 v[28:31], v{V_L16}, {W}, s{KL} offen {{sc}}"], "k")
    if cfg.p1_detail: stamp(a, cfg, 26)
    a("s_waitcnt lgkmcnt(0)")
    for jj in range(4):
        a(f"ds_read_b128 v[{96+4*jj}:{99+4*jj}], v23 offset:{jj*32}")
        a(f"ds_read_b128 v[{112+4*jj}:{115+4*jj}], v23 offset:{128+jj*32}")
    for i in range(0, 8, 2):
        a(f"v_pk_fma_f32 v[{48+i}:{49+i}], v[{80+i}:{81+i}], v[14:15], v[{48+i}:{49+i}] op_sel_hi:[1,0,1] neg_lo:[0,1,0] neg_hi:[0,1,0]")
    for i in range(0, 8, 2):
        a(f"v_pk_mul_f32 v[{48+i}:{49+i}], v[{48+i}:{49+i}], v[14:15] op_sel:[0,1] op_sel_hi:[1,1]")
    for n in range(4):
        a(f"v_cvt_pk_bf16_f32 v{32+n}, v{48+2*n}, v{49+2*n}")
    mstore([f"buffer_store_dwordx4 v[32:35], v{V_L16}, {W}, s{QO} offen {{sc}}"], "q")
    if cfg.p1_detail: stamp(a, cfg, 27)
    a(f"s_sub_u32 s{T+13}, s{KL}, 0x20000")
    a(f"s_sub_u32 s{T+14}, s{KR}, 0x20000")
    a(f"s_and_b32 s{TMP2}, s{S_AH}, 1")
    a(f"s_cmp_eq_u32 s{TMP2}, s{S_TT}")
    a("s_cbranch_scc0 L_p1_st_n")
    a("s_waitcnt lgkmcnt(0)")
    for hf in range(2):
        for i in range(8*hf, 8*hf+8, 2):
            a(f"v_pk_mul_f32 v[{112+i}:{113+i}], v[{112+i}:{113+i}], v[18:19] op_sel:[0,1] op_sel_hi:[1,1]")
        for i in range(8*hf, 8*hf+8, 2):
            a(f"v_pk_fma_f32 v[{64+i}:{65+i}], v[{64+i}:{65+i}], v[{96+i}:{97+i}], v[{112+i}:{113+i}] neg_lo:[0,0,1] neg_hi:[0,0,1]")
        for n in range(4*hf, 4*hf+4):
            a(f"v_cvt_pk_bf16_f32 v{40+n}, v{64+2*n}, v{65+2*n}")
        mstore([f"buffer_store_dwordx4 v[{40+4*hf}:{43+4*hf}], v144, {W}, s{T+13} offen offset:{512*hf} {{sc}}"], f"v{hf}")
    late = 'lateR' in cfg.exp
    def remote_stores(owner):
        a(f"buffer_store_dwordx4 v[28:31], v{V_L16}, {W}, s{KR} offen sc1")
        if owner:
            a(f"buffer_store_dwordx4 v[40:43], v144, {W}, s{T+14} offen sc1")
            a(f"buffer_store_dwordx4 v[44:47], v144, {W}, s{T+14} offen offset:512 sc1")
    def local_flag(uniq):
        a(f"s_lshl_b32 s{TMP}, s{S_J}, 10")
        a(f"s_add_u32 s{TMP}, s{TMP}, {WS_LFLAG}")
        a(f"s_lshl_b32 s{TMP2}, s{S_H}, 3")
        a(f"s_add_u32 s{TMP2}, s{TMP2}, s{S_W}")
        a(f"s_lshl_b32 s{TMP2}, s{TMP2}, 2")
        a(f"s_add_u32 s{TMP2}, s{TMP2}, s{TMP}")
        team_flag(a, cfg, TMP2, uniq)
    if 'barR' in cfg.exp: a("s_barrier")
    if not late: remote_stores(True)
    if cfg.p1_detail: stamp(a, cfg, 28)
    a(f"s_waitcnt vmcnt({0 if late else 3})")
    if late:
        local_flag("p1o"); remote_stores(True)
    a("s_branch L_p1_st_done")
    a.label("L_p1_st_n")
    if 'barR' in cfg.exp: a("s_barrier")
    if not late: remote_stores(False)
    if cfg.p1_detail: stamp(a, cfg, 28)
    a(f"s_waitcnt vmcnt({0 if late else 1}) lgkmcnt(0)")
    if late:
        local_flag("p1n"); remote_stores(False)
    a.label("L_p1_st_done")
    stamp(a, cfg, 4)
    if not late: local_flag("p1")
    if cfg.v3:
        import v3
        v3.build_v3(a, cfg)
        return
    attn_presetup(a)
    a(f"s_lshl_b32 s{T+13}, s{S_H}, 3")
    a(f"s_add_u32 s{T+13}, s{T+13}, s{S_J}")
    a(f"s_lshl_b32 s{T+14}, s{T+13}, 13")
    a(f"s_lshl_b32 s{T+13}, s{T+13}, 14")
    a(f"s_lshl_b32 s{T+11}, s{S_W}, 10")
    a(f"s_and_b32 s{T+12}, s{S_W}, 6")
    a(f"s_lshl_b32 s{T+12}, s{T+12}, 10")
    a(f"s_add_u32 s{T+14}, s{T+14}, s{T+12}")
    a(f"s_add_u32 s{T+14}, s{T+14}, {WS_QF}")
    a(f"s_add_u32 s{T+13}, s{T+13}, s{T+11}")
    a(f"s_add_u32 s{T+13}, s{T+13}, {WS_KVL}")
    a(f"s_lshl_b32 s{TMP2}, s{S_G}, 7")
    a(f"s_add_u32 s{TMP}, s{TMP}, s{TMP2}")
    a(f"v_and_b32 v2, 31, v{L}")
    a("v_lshlrev_b32 v2, 2, v2")
    poll(a, 2, 3, TMP, "p1l")
    stamp(a, cfg, 13)
    a(f"s_mov_b32 m0, s{T+11}")
    a(f"buffer_load_dwordx4 v[{V_Q}:{V_Q+3}], v{V_L16}, s[{S_WS}:{S_WS+3}], s{T+14} offen sc1")
    a(f"buffer_load_dwordx4 v[244:247], v{V_L16}, s[{S_WS}:{S_WS+3}], s{T+14} offen offset:1024 sc1")
    a(f"buffer_load_dwordx4 v{V_L16}, s[{S_WS}:{S_WS+3}], s{T+13} offen sc1 lds")
    a(f"s_add_u32 m0, m0, 8192")
    a(f"s_add_u32 s{T+13}, s{T+13}, 8192")
    a(f"buffer_load_dwordx4 v{V_L16}, s[{S_WS}:{S_WS+3}], s{T+13} offen sc1 lds")
    a(f"s_lshl_b32 s{TMP}, s{S_H}, 3")
    a(f"s_add_u32 s{TMP}, s{TMP}, s{S_W}")
    a(f"s_lshl_b32 s{TMP}, s{TMP}, 5")
    a(f"s_lshl_b32 s{TMP2}, s{S_J}, 2")
    a(f"s_add_u32 s{TMP}, s{TMP}, s{TMP2}")
    a(f"s_add_u32 s{TMP}, s{TMP}, {WS_KVFLAG}")
    flag_store(a, S_TAG, TMP, "sc1")
    a("s_waitcnt vmcnt(1)")
    a("s_barrier")
    stamp(a, cfg, 14)

def team_flag(a, cfg, off_s, uniq):
    a(f"v_mov_b32 v2, s{S_TAG}")
    a("v_mov_b32 v3, 0")
    a("s_mov_b64 exec, 1")
    a(f"s_cmp_eq_u32 s{S_FAST}, 0")
    a(f"s_cbranch_scc1 L_tf_{uniq}_s")
    a(f"buffer_store_dword v2, v3, s[{S_WS}:{S_WS+3}], s{off_s} offen")
    a(f"s_branch L_tf_{uniq}_d")
    a.label(f"L_tf_{uniq}_s")
    a(f"buffer_store_dword v2, v3, s[{S_WS}:{S_WS+3}], s{off_s} offen sc1")
    a.label(f"L_tf_{uniq}_d")
    a("s_mov_b64 exec, -1")

def poll(a, vaddr, vtmp, off_s, uniq):
    C = S_A + 19
    a(f"s_mov_b32 s{C}, 0")
    a.label(f"L_poll_{uniq}")
    a(f"buffer_load_dword v{vtmp}, v{vaddr}, s[{S_WS}:{S_WS+3}], s{off_s} offen sc1")
    a(f"s_add_u32 s{C}, s{C}, 1")
    a("s_waitcnt vmcnt(0)")
    a(f"v_cmp_ne_u32 vcc, s{S_TAG}, v{vtmp}")
    a(f"s_cmp_gt_u32 s{C}, 0x100000")
    a(f"s_cbranch_scc1 L_poll_{uniq}_x")
    a(f"s_cbranch_vccnz L_poll_{uniq}")
    a.label(f"L_poll_{uniq}_x")

A_S = [16, 32]; A_C = [48, 64]; A_O = [80, 96]; A_P = 112; A_KF = [120, 124]; A_VF = [128, 136]
A_VK = [144, 145]; A_VV = [146, 147]
V_QB = 244
V_W2V, V_W2T, V_DUM = 148, 149, 150
def mfma32(a, d, x, y, c):
    cs = c if isinstance(c, str) else f"v[{c}:{c+15}]"
    a(f"v_mfma_f32_32x32x16_bf16 v[{d}:{d+15}], v[{x}:{x+3}], v[{y}:{y+3}], {cs}")

def maxtree(a, src, dst):
    a(f"v_max3_f32 v{dst}, v{src}, v{src+1}, v{src+2}")
    for i in range(3, 15, 2):
        a(f"v_max3_f32 v{dst}, v{dst}, v{src+i}, v{src+i+1}")
    a(f"v_max_f32 v{dst}, v{dst}, v{src+15}")

def halfmax(a, r, t):
    a(f"v_mov_b32 v{t}, v{r}")
    a("s_nop 1")
    a(f"v_permlane32_swap_b32 v{r}, v{t}")
    a("s_nop 0")
    a(f"v_max_f32 v{r}, v{r}, v{t}")

def attn_presetup(a):
    L = V_LANE
    T = S_A
    a(f"s_and_b32 s{T+4}, s{S_W}, 1")
    a(f"s_lshl_b32 s{T+4}, s{T+4}, 12")
    a(f"v_add_u32 v{A_VK[0]}, s{T+4}, v{V_L16}")
    a(f"v_and_b32 v4, 15, v{L}")
    a(f"v_lshlrev_b32 v4, 4, v4")
    a(f"v_lshrrev_b32 v5, 5, v{L}")
    a(f"v_lshl_add_u32 v4, v5, 8, v4")
    a(f"v_add_u32 v4, 8192, v4")
    a(f"v_add_u32 v{A_VV[0]}, s{T+4}, v4")
    a(f"v_add_u32 v{A_VK[1]}, 0x10000, v{A_VK[0]}")
    a(f"v_add_u32 v{A_VV[1]}, 0x10000, v{A_VV[0]}")
    a(f"v_and_b32 v5, 31, v{L}")
    a(f"v_cmp_eq_u32 vcc, 16, v5")
    a(f"v_mov_b32 v4, 0x3f803f80")
    a("s_nop 0")
    a(f"v_cndmask_b32 v{A_VF[0]}, 0, v4, vcc")
    for r in range(1, 16):
        a(f"v_mov_b32 v{A_VF[0]+r}, v{A_VF[0]}")
    for x in range(2):
        for r in range(16): a(f"v_mov_b32 v{A_O[x]+r}, 0")
    for r in range(8): a(f"v_mov_b32 v{A_P+r}, 0")

USTAMPS = [0, 6, 7, 14, 15, 22, 23, 30, 38, 46, 54]
def attention(a, cfg):
    L = V_LANE
    T = S_A
    Q = [V_Q, V_QB]
    act = make_act(a, cfg)
    if cfg.skip_p1:
        keepu = set()
        if 'bar' in cfg.exp: keepu |= {6, 14, 22, 30}
        if 'w2h' in cfg.exp: keepu |= {24, 32, 38, 44, 50, 55, 60, 61}
        if 'wrm' in cfg.exp: keepu |= {33, 34, 35, 39, 40, 41, 45, 46, 47}
        if 'kvd' in cfg.exp: keepu |= {2, 4, 7, 10, 13, 16}
        act = {k: v for k, v in act.items() if k[0]*8 + k[1] in keepu}
    if cfg.skip_p1: attn_presetup(a)
    a(f"ds_read_b128 v[{A_KF[1]}:{A_KF[1]+3}], v{V_L16}")
    a(f"ds_read_b128 v[{A_KF[0]}:{A_KF[0]+3}], v{A_VK[0]}")
    a(f"s_mov_b64 exec, s[{S_VMASK}:{S_VMASK+1}]")
    a(f"ds_read_b128 v[{A_VF[0]}:{A_VF[0]+3}], v{A_VV[0]}")
    a(f"ds_read_b128 v[{A_VF[0]+4}:{A_VF[0]+7}], v{A_VV[0]} offset:512")
    a("s_mov_b64 exec, -1")
    a(f"s_lshl_b32 s{T}, s{S_H}, 17")
    a(f"s_add_u32 s{T}, s{T}, {WS_KV}")
    a(f"s_lshl_b32 s{T+1}, s{S_W}, 10")
    a(f"s_add_u32 s{T}, s{T}, s{T+1}")
    a(f"s_add_u32 s{T+2}, s{T+1}, 0")
    a("s_waitcnt lgkmcnt(3)")
    mfma32(a, A_S[0], A_KF[1], Q[0], "0")
    mfma32(a, A_S[1], A_KF[1], Q[1], "0")
    a("s_nop 7")
    a("s_nop 2")
    maxtree(a, A_S[0], 2)
    maxtree(a, A_S[1], 3)
    halfmax(a, 2, 4)
    halfmax(a, 3, 4)
    for x in range(2):
        a(f"v_sub_f32 v{A_C[x]}, 0, v{2+x}")
        for r in range(1, 16): a(f"v_mov_b32 v{A_C[x]+r}, v{A_C[x]}")
    a("s_waitcnt lgkmcnt(0)")
    mfma32(a, A_S[0], A_KF[0], Q[0], A_C[0])
    a("s_nop 7")
    a("s_nop 3")
    P = A_P
    def kv_off(n):
        s_, i = n >> 2, n & 3
        hi = 1 if s_ >= 4 else 0
        return hi, (s_ - 4*hi) * 16384 + i * 1024
    for u in range(64):
        n, x = u >> 1, u & 1
        cur = A_S[u % 2]; nxt = A_S[(u + 1) % 2]
        e = lambda i: a(f"v_exp_f32 v{cur+i}, v{cur+i}")
        c = lambda m: a(f"v_cvt_pk_bf16_f32 v{P+m}, v{cur+2*m}, v{cur+2*m+1}")
        if cfg.ustamps and u in USTAMPS:
            a(f"s_memtime s[{52+2*USTAMPS.index(u)}:{53+2*USTAMPS.index(u)}]")
        for fn in act.get((u >> 3, u & 7), []): fn()
        if cfg.stamps and cfg.at_detail and u % 8 == 0 and u: stamp(a, cfg, 15 + u // 8)
        e(0); e(1)
        if u > 0:
            pn, px = (u - 1) >> 1, (u - 1) & 1
            mfma32(a, A_O[px], A_VF[pn % 2] + 4, P + 4, A_O[px])
        e(2); c(0); e(3); e(4); c(1)
        if u < 63:
            n1, x1 = (u + 1) >> 1, (u + 1) & 1
            if x == 1: a("s_waitcnt lgkmcnt(0)")
            mfma32(a, nxt, A_KF[n1 % 2], Q[x1], A_C[x1])
        if x == 0 and n + 1 < 32:
            hi, off = kv_off(n + 1)
            kb, vb = A_KF[(n + 1) % 2], A_VF[(n + 1) % 2]
            a(f"ds_read_b128 v[{kb}:{kb+3}], v{A_VK[hi]} offset:{off}")
            a(f"s_mov_b64 exec, s[{S_VMASK}:{S_VMASK+1}]")
            a(f"ds_read_b128 v[{vb}:{vb+3}], v{A_VV[hi]} offset:{off}")
            a(f"ds_read_b128 v[{vb+4}:{vb+7}], v{A_VV[hi]} offset:{off+512}")
            a("s_mov_b64 exec, -1")
        e(5); e(6); c(2); e(7); e(8); c(3); e(9); e(10)
        mfma32(a, A_O[x], A_VF[n % 2], P, A_O[x])
        c(4); e(11); e(12); c(5); e(13); e(14); e(15); c(6); c(7)
    a("s_nop 1")
    mfma32(a, A_O[1], A_VF[1] + 4, P + 4, A_O[1])
    stamp(a, cfg, 8)
    if cfg.ustamps:
        a("s_waitcnt lgkmcnt(0)")
        for i_ in range(len(USTAMPS)): a(f"v_writelane_b32 v255, s{52+2*i_}, {16+i_}")
    a.label("L_at_chk")
    a("s_nop 7")
    a("s_nop 3")
    for x in range(2):
        a(f"v_mov_b32 v{2+x}, v{A_O[x]+8}")
        a(f"v_mov_b32 v{4+x}, v{A_O[x]+8}")
    a("s_nop 1")
    a("v_permlane32_swap_b32 v2, v4")
    a("v_permlane32_swap_b32 v3, v5")
    a("v_mov_b32 v4, 0x5d800000")
    a("v_max_f32 v5, v2, v3")
    a("v_cmp_nle_f32 vcc, v2, v4")
    a(f"s_mov_b64 s[{T+4}:{T+5}], vcc")
    a("v_cmp_nle_f32 vcc, v3, v4")
    a(f"s_or_b64 vcc, vcc, s[{T+4}:{T+5}]")
    a(f"s_cmp_lg_u32 s{S_RERUN}, 0")
    a("s_cbranch_scc1 L_at_ok")
    a("s_cbranch_vccz L_at_ok")
    a(f"s_mov_b32 s{S_RERUN}, 1")
    a("v_mov_b32 v2, 0xff800000")
    a("v_mov_b32 v3, 0xff800000")
    for ps in range(2):
        a(f"v_mov_b32 v6, v{A_VK[0]}")
        a(f"v_mov_b32 v7, v{A_VV[0]}")
        a(f"s_mov_b32 s{S_BLK}, 0")
        a.label(f"L_at_re{ps}")
        for i in range(4):
            a(f"ds_read_b128 v[{A_KF[0]}:{A_KF[0]+3}], v6 offset:{i*1024}")
            if ps == 1:
                a(f"s_mov_b64 exec, s[{S_VMASK}:{S_VMASK+1}]")
                a(f"ds_read_b128 v[{A_VF[0]}:{A_VF[0]+3}], v7 offset:{i*1024}")
                a(f"ds_read_b128 v[{A_VF[0]+4}:{A_VF[0]+7}], v7 offset:{i*1024+512}")
                a("s_mov_b64 exec, -1")
            a("s_waitcnt lgkmcnt(0)")
            for x in range(2):
                mfma32(a, A_S[x], A_KF[0], Q[x], "0" if ps == 0 else A_C[x])
            a("s_nop 7")
            a("s_nop 3")
            for x in range(2):
                if ps == 0:
                    for k in range(0, 16, 2):
                        a(f"v_max3_f32 v{2+x}, v{2+x}, v{A_S[x]+k}, v{A_S[x]+k+1}")
                else:
                    for k in range(16): a(f"v_exp_f32 v{A_S[x]+k}, v{A_S[x]+k}")
                    a("s_nop 0")
                    for m in range(8): a(f"v_cvt_pk_bf16_f32 v{P+m}, v{A_S[x]+2*m}, v{A_S[x]+2*m+1}")
                    a("s_nop 1")
                    mfma32(a, A_O[x], A_VF[0], P, A_O[x])
                    mfma32(a, A_O[x], A_VF[0] + 4, P + 4, A_O[x])
        a("v_add_u32 v6, 16384, v6")
        a("v_add_u32 v7, 16384, v7")
        a(f"s_add_u32 s{S_BLK}, s{S_BLK}, 1")
        a(f"s_cmp_lt_u32 s{S_BLK}, 8")
        a(f"s_cbranch_scc1 L_at_re{ps}")
        if ps == 0:
            halfmax(a, 2, 4)
            halfmax(a, 3, 4)
            for x in range(2):
                a(f"v_sub_f32 v{A_C[x]}, 0, v{2+x}")
                for r in range(1, 16): a(f"v_mov_b32 v{A_C[x]+r}, v{A_C[x]}")
                for r in range(16): a(f"v_mov_b32 v{A_O[x]+r}, 0")
    a("s_branch L_at_chk")
    a.label("L_at_ok")
    a("s_barrier")
    a(f"s_mul_i32 s{T+4}, s{S_W}, 3072")
    a(f"v_add_u32 v8, s{T+4}, v{V_L16}")
    a(f"s_xor_b32 s{T+5}, s{S_W}, 1")
    a(f"s_mul_i32 s{T+5}, s{T+5}, 3072")
    a(f"v_add_u32 v9, s{T+5}, v{V_L16}")
    a(f"s_bitcmp1_b32 s{S_W}, 0")
    a("s_cbranch_scc1 L_at_m1")
    for kh in range(2):
        if kh == 1: a.label("L_at_m1")
        keep, send = kh, 1 - kh
        a(f"v_mov_b32 v4, v{2+send}")
        a(f"v_mov_b32 v5, v{A_C[send]}")
        a(f"ds_write_b128 v8, v[{A_O[send]}:{A_O[send]+3}]")
        a(f"ds_write_b128 v8, v[{A_O[send]+4}:{A_O[send]+7}] offset:1024")
        a(f"ds_write_b64 v8, v[4:5] offset:2048")
        for r in range(8): a(f"v_mov_b32 v{16+r}, v{A_O[keep]+r}")
        a(f"v_mov_b32 v24, v{2+keep}")
        a(f"v_mov_b32 v25, v{A_C[keep]}")
        if kh == 0: a("s_branch L_at_m2")
    a.label("L_at_m2")
    a("s_waitcnt lgkmcnt(0)")
    a("s_barrier")
    a("ds_read_b128 v[32:35], v9")
    a("ds_read_b128 v[36:39], v9 offset:1024")
    a("ds_read_b64 v[40:41], v9 offset:2048")
    a("s_waitcnt lgkmcnt(0)")
    a("v_min_f32 v26, v25, v41")
    a("v_sub_f32 v27, v26, v25")
    a("v_sub_f32 v28, v26, v41")
    a("v_exp_f32 v27, v27")
    a("v_exp_f32 v28, v28")
    a("s_nop 0")
    a("v_mul_f32 v24, v24, v27")
    a("v_fmac_f32 v24, v40, v28")
    a("v_rcp_f32 v24, v24")
    a("s_nop 0")
    a("v_mul_f32 v27, v27, v24")
    a("v_mul_f32 v28, v28, v24")
    for r in range(8): a(f"v_mul_f32 v{16+r}, v{16+r}, v27")
    for r in range(8): a(f"v_fmac_f32 v{16+r}, v{32+r}, v28")
    for m in range(4):
        a(f"v_cvt_pk_bf16_f32 v{4+m}, v{16+2*m}, v{17+2*m}")

def flag_store(a, val_s, off_s, sc):
    a(f"v_mov_b32 v2, s{val_s}")
    a("v_mov_b32 v3, 0")
    a("s_mov_b64 exec, 1")
    a(f"buffer_store_dword v2, v3, s[{S_WS}:{S_WS+3}], s{off_s} offen {sc}")
    a("s_mov_b64 exec, -1")

def kv_dma(a, blk):
    T = S_A
    a(f"s_add_u32 s{T+4}, s{S_J}, {blk}")
    a(f"s_and_b32 s{T+4}, s{T+4}, 7")
    a(f"s_lshl_b32 s{T+4}, s{T+4}, 14")
    a(f"s_add_u32 s{T+4}, s{T+4}, s{T}")
    a(f"s_add_u32 m0, s{T+2}, {blk*16384}")
    a(f"s_add_u32 s{T+6}, s{T+4}, 8192")
    a(f"buffer_load_dwordx4 v{V_L16}, s[{S_WS}:{S_WS+3}], s{T+4} offen sc1 lds")
    a(f"s_add_u32 m0, m0, 8192")
    a("s_nop 0")
    a(f"buffer_load_dwordx4 v{V_L16}, s[{S_WS}:{S_WS+3}], s{T+6} offen sc1 lds")

V_W2 = 152
W2_STAGE = 131072
HOOKS = {}

def w2_setup(a):
    T = S_A; L = V_LANE
    a(f"s_and_b32 s{T+10}, s{S_W}, 3")
    a(f"s_mul_i32 s{T+10}, s{T+10}, {22*16*1024}")
    a(f"s_and_b32 s{T+11}, s{S_H}, 7")
    a(f"s_lshl_b32 s{T+11}, s{T+11}, 7")
    a(f"s_add_u32 s{T+10}, s{T+10}, s{T+11}")
    a(f"s_lshr_b32 s{T+11}, s{S_W}, 2")
    a(f"s_lshl_b32 s{T+11}, s{T+11}, 6")
    a(f"s_add_u32 s{T+10}, s{T+10}, s{T+11}")
    a(f"s_lshl_b32 s{T+11}, s{S_W}, 12")
    a(f"s_add_u32 s{T+11}, s{T+11}, {W2_STAGE}")
    a(f"v_lshrrev_b32 v149, 2, v{L}")
    a(f"v_lshlrev_b32 v148, 10, v149")
    a(f"v_and_b32 v149, 3, v{L}")
    a(f"v_lshl_add_u32 v148, v149, 4, v148")
    a(f"v_lshrrev_b32 v149, 5, v{L}")
    a(f"v_bfe_u32 v151, v{L}, 2, 2")
    a(f"v_lshl_add_u32 v149, v149, 2, v151")
    a(f"v_lshlrev_b32 v149, 6, v149")
    a(f"v_bfe_u32 v151, v{L}, 4, 1")
    a(f"v_lshl_add_u32 v149, v151, 5, v149")
    a(f"v_and_b32 v151, 3, v{L}")
    a(f"v_lshl_add_u32 v149, v151, 3, v149")
    a(f"v_add_u32 v149, s{T+11}, v149")


def w2f_produce_a(a):
    T = S_A; L = V_LANE
    a(f"s_lshl_b32 s{T+10}, s{S_W}, 8")
    a(f"s_add_u32 s{T+10}, s{T+10}, s2")
    a(f"s_lshr_b32 s{T+4}, s{T+10}, 4")
    a(f"s_lshl_b32 s{T+4}, s{T+4}, 14")
    a(f"s_and_b32 s{T+5}, s{T+10}, 15")
    a(f"s_lshl_b32 s{T+5}, s{T+5}, 6")
    a(f"s_add_u32 s{T+4}, s{T+4}, s{T+5}")
    a(f"s_lshl_b32 s{T+11}, s{S_W}, 12")
    a(f"s_add_u32 s{T+11}, s{T+11}, {W2_STAGE}")
    a(f"v_lshrrev_b32 v149, 2, v{L}")
    a(f"v_lshlrev_b32 v148, 10, v149")
    a(f"v_and_b32 v149, 3, v{L}")
    a(f"v_lshl_add_u32 v148, v149, 4, v148")
    a(f"s_mov_b32 m0, s{T+11}")
    a(f"v_lshrrev_b32 v149, 5, v{L}")
    a(f"buffer_load_dwordx4 v148, s[{S_W2}:{S_W2+3}], s{T+4} offen lds")
    a(f"v_bfe_u32 v151, v{L}, 2, 2")
    a(f"v_lshl_add_u32 v149, v149, 2, v151")
    a(f"v_lshlrev_b32 v149, 6, v149")
    a(f"v_bfe_u32 v151, v{L}, 4, 1")
    a(f"v_lshl_add_u32 v149, v151, 5, v149")
    a(f"v_and_b32 v151, 3, v{L}")
    a(f"v_lshl_add_u32 v149, v151, 3, v149")
    a(f"v_add_u32 v149, s{T+11}, v149")

def w2f_produce_b(a, younger):
    a(f"s_waitcnt vmcnt({younger})")
    a(f"ds_read_b64_tr_b16 v[{V_W2}:{V_W2+1}], v149")
    a(f"ds_read_b64_tr_b16 v[{V_W2+2}:{V_W2+3}], v149 offset:512")

def w2f_produce_c(a):
    T = S_A
    a(f"s_lshl_b32 s{T+4}, s{T+10}, 10")
    a(f"s_add_u32 s{T+4}, s{T+4}, {WS_W2F}")
    a(f"buffer_store_dwordx4 v[{V_W2}:{V_W2+3}], v{V_L16}, s[{S_WS}:{S_WS+3}], s{T+4} offen sc1")

def w2f_produce_d(a, younger):
    T = S_A
    a(f"s_waitcnt vmcnt({younger})")
    a(f"s_lshl_b32 s{T+4}, s{T+10}, 2")
    a(f"s_add_u32 s{T+4}, s{T+4}, {WS_W2FLAG}")
    flag_store(a, S_TAG, T+4, "sc1")

def w2f_poll(a):
    T = S_A; L = V_LANE
    a(f"s_and_b32 s{T+4}, s{S_W}, 3")
    a(f"s_mul_i32 s{T+4}, s{T+4}, {22*16}")
    a(f"s_and_b32 s{T+5}, s{S_H}, 7")
    a(f"s_lshl_b32 s{T+5}, s{T+5}, 1")
    a(f"s_add_u32 s{T+4}, s{T+4}, s{T+5}")
    a(f"s_lshr_b32 s{T+5}, s{S_W}, 2")
    a(f"s_add_u32 s{T+4}, s{T+4}, s{T+5}")
    a(f"s_lshl_b32 s{T+10}, s{T+4}, 10")
    a(f"s_add_u32 s{T+10}, s{T+10}, {WS_W2F}")
    a(f"s_lshl_b32 s{T+4}, s{T+4}, 2")
    a(f"s_add_u32 s{T+4}, s{T+4}, {WS_W2FLAG}")
    a(f"s_and_b32 s{T+5}, s{S_W}, 3")
    a(f"s_cmp_eq_u32 s{T+5}, 3")
    a(f"s_cselect_b32 s{T+5}, 19, 21")
    a(f"v_min_u32 v2, s{T+5}, v{L}")
    a("v_lshlrev_b32 v2, 6, v2")
    poll(a, 2, 3, T+4, "w2f")
    a(f"s_and_b32 s{T+5}, s{S_W}, 3")
    a(f"s_cmp_eq_u32 s{T+5}, 3")
    a(f"s_cselect_b32 s{T+11}, 0x40000000, 0")

def w2f_load(a, i0, n):
    T = S_A
    for i in range(i0, i0 + n):
        a(f"s_add_u32 s{T+4}, s{T+10}, {i*16384}")
        if i >= 20: a(f"s_add_u32 s{T+4}, s{T+4}, s{T+11}")
        a(f"buffer_load_dwordx4 v[{V_W2+4*i}:{V_W2+4*i+3}], v{V_L16}, s[{S_WS}:{S_WS+3}], s{T+4} offen sc1")

NOW2 = False
def w2_issue(a, r):
    T = S_A
    n = 4 if r < 5 else 2
    if NOW2: return
    for i in range(n):
        a(f"s_add_u32 m0, s{T+11}, {i*1024}")
        a(f"s_add_u32 s{T+4}, s{T+10}, {(r*4+i)*16*1024}")
        a(f"buffer_load_dwordx4 v148, s[{S_W2}:{S_W2+3}], s{T+4} offen lds")

def w2_read(a, r, younger=0):
    n = 4 if r < 5 else 2
    if NOW2: return
    a(f"s_waitcnt vmcnt({younger})")
    for i in range(n):
        d = V_W2 + 4*(r*4+i)
        a(f"ds_read_b64_tr_b16 v[{d}:{d+1}], v149 offset:{i*1024}")
        a(f"ds_read_b64_tr_b16 v[{d+2}:{d+3}], v149 offset:{i*1024+512}")
    a("s_waitcnt lgkmcnt(0)")

def warm(a, srd, piece_bytes, nlanes, vdst):
    T = S_A
    a(f"v_lshlrev_b32 v2, 7, v{V_LANE}")
    a(f"s_lshl_b32 s{T+4}, s{S_H}, 3")
    a(f"s_add_u32 s{T+4}, s{T+4}, s{S_W}")
    a(f"s_mul_i32 s{T+5}, s{T+4}, {piece_bytes}")
    a(f"s_and_b32 s{T+5}, s{T+5}, 0xffffff80")
    if nlanes > 32: a(f"s_mov_b32 exec_hi, {hex((1 << (nlanes-32)) - 1)}")
    else: a(f"s_mov_b64 exec, {hex((1 << nlanes) - 1)}")
    a(f"buffer_load_dword v{vdst}, v2, s[{srd}:{srd+3}], s{T+5} offen")
    a("s_mov_b64 exec, -1")

V_XR = 12
V_B1R = 11
def small_loads(a):
    T = S_A; L = V_LANE
    a(f"s_and_b32 s{T+4}, s{S_H}, 7")
    a(f"s_lshl_b32 s{T+4}, s{T+4}, 6")
    a(f"s_lshr_b32 s{T+5}, s{S_W}, 2")
    a(f"s_lshl_b32 s{T+5}, s{T+5}, 5")
    a(f"s_add_u32 s{T+4}, s{T+4}, s{T+5}")
    a(f"s_and_b32 s{T+5}, s{S_W}, 1")
    a(f"s_lshl_b32 s{T+5}, s{T+5}, 4")
    a(f"s_add_u32 s{T+4}, s{T+4}, s{T+5}")
    a(f"s_lshl_b32 s{T+5}, s{S_J}, 8")
    a(f"s_lshr_b32 s{T+6}, s{S_H}, 3")
    a(f"s_lshl_b32 s{T+6}, s{T+6}, 6")
    a(f"s_add_u32 s{T+5}, s{T+5}, s{T+6}")
    a(f"s_bfe_u32 s{T+6}, s{S_W}, 0x10001")
    a(f"s_lshl_b32 s{T+6}, s{T+6}, 5")
    a(f"s_add_u32 s{T+5}, s{T+5}, s{T+6}")
    a(f"s_lshl_b32 s{T+5}, s{T+5}, 10")
    a(f"s_lshl_b32 s{T+4}, s{T+4}, 1")
    a(f"s_add_u32 s{T+5}, s{T+5}, s{T+4}")
    a(f"v_and_b32 v2, 31, v{L}")
    a(f"v_lshlrev_b32 v2, 10, v2")
    a(f"v_lshrrev_b32 v3, 5, v{L}")
    a(f"v_lshlrev_b32 v3, 3, v3")
    a(f"v_add_u32 v2, v2, v3")
    a(f"buffer_load_dwordx2 v[{V_XR}:{V_XR+1}], v2, s[{S_X}:{S_X+3}], s{T+5} offen")
    a(f"buffer_load_dwordx2 v[{V_XR+2}:{V_XR+3}], v2, s[{S_X}:{S_X+3}], s{T+5} offen offset:16")
    a(f"buffer_load_dwordx2 v[{V_B2}:{V_B2+1}], v3, s[{S_B2}:{S_B2+3}], s{T+4} offen")
    a(f"buffer_load_dwordx2 v[{V_B2+2}:{V_B2+3}], v3, s[{S_B2}:{S_B2+3}], s{T+4} offen offset:16")
    a(f"s_and_b32 s{T+4}, s{S_H}, 15")
    a(f"s_mul_i32 s{T+4}, s{T+4}, {8*21846}")
    a(f"s_lshr_b32 s{T+4}, s{T+4}, 16")
    a(f"s_lshl_b32 s{T+4}, s{T+4}, 6")
    a(f"v_lshlrev_b32 v2, 2, v{L}")
    a(f"buffer_load_dword v{V_B1R}, v2, s[{S_B1}:{S_B1+3}], s{T+4} offen")

NOPT = False
def pretouch_tail(a):
    if NOPT:
        a(f"s_mov_b32 s{S_A+5}, 0x40000000"); a(f"buffer_load_dword v150, v{V_L16}, s[{S_W1}:{S_W1+3}], s{S_A+5} offen"); return
    _pretouch_tail(a)
def _pretouch_tail(a):
    T = S_A; L = V_LANE
    a(f"s_lshl_b32 s{T+4}, s{S_H}, 3")
    a(f"s_add_u32 s{T+4}, s{T+4}, s{S_W}")
    a(f"s_lshl_b32 s{T+5}, s{S_J}, 18")
    a(f"s_lshl_b32 s{T+6}, s{T+4}, 10")
    a(f"s_add_u32 s{T+5}, s{T+5}, s{T+6}")
    a(f"v_and_b32 v2, 7, v{L}")
    a(f"v_lshlrev_b32 v2, 7, v2")
    a(f"v_add_u32 v2, s{T+5}, v2")
    a(f"v_add_u32 v3, {WS_HF}, v2")
    a(f"v_add_u32 v2, {WS_OF}, v2")
    a(f"v_cmp_gt_u32 vcc, 8, v{L}")
    a("s_nop 1")
    a(f"v_cndmask_b32 v2, v3, v2, vcc")
    a(f"s_lshl_b32 s{T+5}, s{S_J}, 16")
    a(f"s_lshl_b32 s{T+6}, s{T+4}, 8")
    a(f"s_add_u32 s{T+5}, s{T+5}, s{T+6}")
    a(f"s_add_u32 s{T+5}, s{T+5}, {WS_HST - 16*128}")
    a(f"v_lshlrev_b32 v3, 7, v{L}")
    a(f"v_add_u32 v4, s{T+5}, v3")
    a(f"v_cmp_gt_u32 vcc, 16, v{L}")
    a(f"s_mul_i32 s{T+5}, s{S_J}, {8*86*1024}")
    a("s_nop 0")
    a(f"v_cndmask_b32 v2, v4, v2, vcc")
    a(f"s_mul_i32 s{T+6}, s{T+4}, 2752")
    a(f"s_and_b32 s{T+6}, s{T+6}, 0xffffff80")
    a(f"s_add_u32 s{T+5}, s{T+5}, s{T+6}")
    a(f"s_add_u32 s{T+5}, s{T+5}, {WS_GF - 18*128}")
    a(f"v_add_u32 v4, s{T+5}, v3")
    a(f"v_cmp_gt_u32 vcc, 18, v{L}")
    a("s_nop 1")
    a(f"v_cndmask_b32 v2, v4, v2, vcc")
    a("v_mov_b32 v3, 0") if False else None
    a("s_mov_b32 exec_hi, 0x1ff")
    a(f"buffer_load_dword v150, v2, s[{S_WS}:{S_WS+3}], 0 offen")
    a("s_mov_b64 exec, -1")

NOWARM = False
def warm_dma(a, mat, n):
    if NOWARM:
        a(f"s_mov_b32 s{S_A+5}, 0x40000000"); a(f"buffer_load_dword v150, v{V_L16}, s[{S_W1}:{S_W1+3}], s{S_A+5} offen"); return
    _warm_dma(a, mat, n)
def _warm_dma(a, mat, n):
    T = S_A
    a(f"s_lshl_b32 s{T+4}, s{S_H}, 3")
    a(f"s_add_u32 s{T+4}, s{T+4}, s{S_W}")
    if mat in ("w1", "w2"):
        srd_ = S_W1 if mat == "w1" else S_W2
        a(f"s_mul_i32 s{T+5}, s{T+4}, 5504")
        a(f"s_and_b32 s{T+5}, s{T+5}, 0xffffff80")
        a(f"s_add_u32 s{T+5}, s{T+5}, {n*1024}")
    else:
        srd_ = S_WO
        a(f"s_lshl_b32 s{T+5}, s{T+4}, 11")
        a(f"s_add_u32 s{T+5}, s{T+5}, {n*1024}")
    a(f"buffer_load_dwordx4 v[6:9], v{V_L16}, s[{srd_}:{srd_+3}], s{T+5} offen")

def make_act(a, cfg):
    T = S_A
    act = {}
    def add(b, t, fn): act.setdefault((b, t), []).append(fn)
    def poll_kv():
        stamp(a, cfg, 5)
        a(f"s_and_b32 s{T+4}, s{S_H}, 28")
        a(f"s_lshr_b32 s{T+5}, s{S_W}, 1")
        a(f"s_add_u32 s{T+4}, s{T+4}, s{T+5}")
        a(f"s_lshl_b32 s{T+4}, s{T+4}, 8")
        a(f"s_add_u32 s{T+3}, s{T+4}, {WS_KVFLAG}")
        a(f"s_and_b32 s{T+4}, s{S_W}, 1")
        a(f"s_lshl_b32 s{T+5}, s{T+4}, 2")
        a(f"s_and_b32 s{T+6}, s{S_H}, 3")
        a(f"s_add_u32 s{T+6}, s{T+6}, s{T+5}")
        a(f"s_and_b32 s{T+7}, s{S_H}, 2")
        a(f"s_add_u32 s{T+7}, s{T+7}, s{T+5}")
        a(f"s_add_u32 s{T+7}, s{T+7}, s{T+4}")
        a(f"s_lshl_b32 s{T+6}, s{T+6}, 5")
        a(f"s_lshl_b32 s{T+7}, s{T+7}, 5")
        a(f"v_and_b32 v2, 7, v{V_LANE}")
        a("v_lshlrev_b32 v2, 2, v2")
        a(f"v_mov_b32 v3, s{T+7}")
        a(f"v_mov_b32 v4, s{T+6}")
        a(f"v_cmp_gt_u32 vcc, 8, v{V_LANE}")
        a("s_nop 1")
        a("v_cndmask_b32 v3, v3, v4, vcc")
        a("v_add_u32 v2, v2, v3")
        poll(a, 2, 3, T+3, "kv")
        stamp(a, cfg, 6)
    def sync(n, st):
        def f():
            a(f"s_waitcnt vmcnt({n})"); a("s_barrier"); stamp(a, cfg, st)
        return f
    sched = []
    def I(u, name, nvm, fn): sched.append((u, 'i', name, nvm, fn))
    def Wt(u, target, fn): sched.append((u, 'w', target, 0, fn))
    def syncw(st):
        def f(n):
            a(f"s_waitcnt vmcnt({n})"); a("s_barrier"); stamp(a, cfg, st)
        return f
    def rd(r):
        def f(younger):
            n = 4 if r < 5 else 2
            a(f"s_waitcnt vmcnt({younger})")
            for i in range(n):
                d = V_W2 + 4*(r*4+i)
                a(f"ds_read_b64_tr_b16 v[{d}:{d+1}], v149 offset:{i*1024}")
                a(f"ds_read_b64_tr_b16 v[{d+2}:{d+3}], v149 offset:{i*1024+512}")
        return f
    wseq = [("w1", i) for i in range(6)] + [("wo", i) for i in range(2)]
    I(1, 'poll', 0, poll_kv)
    kvu = {1: 1, 2: 2, 3: 4, 4: 7, 5: 10, 6: 13, 7: 16}
    for b_, u_ in kvu.items(): I(u_, f'kv{b_}', 2, (lambda bb: (lambda: kv_dma(a, bb)))(b_))
    Wt(6, 'kv1', syncw(10)); Wt(14, 'kv2', syncw(11)); Wt(22, 'kv3', syncw(9)); Wt(30, 'kv7', syncw(12))
    I(17, 'small', 5, lambda: small_loads(a))
    if 'W2F' in cfg.exp:
        I(20, 'p_a', 1, lambda: w2f_produce_a(a))
        Wt(28, 'p_a', lambda y: w2f_produce_b(a, y))
        I(31, 'p_c', 1, lambda: w2f_produce_c(a))
        Wt(39, 'p_c', lambda y: w2f_produce_d(a, y))
        sched.append((39, 'i', 'p_flag', 1, lambda: None))
        for i_, u_ in enumerate([32, 33, 34, 35, 36, 37, 40, 41]): I(u_, f'wm{i_}', 1, (lambda ii: (lambda: warm_dma(a, *wseq[ii])))(i_))
        I(42, 'pt', 1, lambda: pretouch_tail(a))
        I(50, 'w2poll', 0, lambda: w2f_poll(a))
        for k_, u_ in enumerate([51, 52, 53, 54, 55, 56, 57, 58, 59, 60, 61]): I(u_, f'w2l{k_}', 2, (lambda kk: (lambda: w2f_load(a, 2*kk, 2)))(k_))
    else:
        if 'S3' in cfg.exp:
            iss = [24, 32, 40, 48, 54, 60]; rdu = [30, 38, 46, 52, 58, 63]
            wmu = [33, 34, 35, 41, 42, 43, 49, 50]; ptu = 51
        else:
            iss = [24, 34, 42, 48, 54, 60]; rdu = [32, 40, 46, 52, 58, 63]
            wmu = [35, 36, 37, 43, 44, 45, 49, 50]; ptu = 51
        I(iss[0], 'setup', 0, lambda: w2_setup(a))
        for r in range(6):
            I(iss[r], f'R{r}', 4 if r < 5 else 2, (lambda rr: (lambda: w2_issue(a, rr)))(r))
            Wt(rdu[r], f'R{r}', rd(r))
        for i_, u_ in enumerate(wmu): I(u_, f'wm{i_}', 1, (lambda ii: (lambda: warm_dma(a, *wseq[ii])))(i_))
        I(ptu, 'pt', 1, lambda: pretouch_tail(a))
    sched.sort(key=lambda e: (e[0], 0 if e[1] == 'w' else 1))
    issued = []
    for e in sched:
        u_, kind, name, nvm, fn = e
        if kind == 'i':
            issued += [name] * nvm
            add(u_ >> 3, u_ & 7, fn)
        else:
            last = max(i for i, nm in enumerate(issued) if nm == name)
            add(u_ >> 3, u_ & 7, (lambda ff, yy: (lambda: ff(yy)))(fn, len(issued) - 1 - last))
    def wo0():
        a(f"s_lshl_b32 s{T+5}, s{S_W}, 16")
        a(f"s_and_b32 s{T+6}, s{S_H}, 7")
        a(f"s_lshl_b32 s{T+6}, s{T+6}, 7")
        a(f"s_add_u32 s{T+5}, s{T+5}, s{T+6}")
        a(f"s_lshl_b32 s{T+6}, s{S_W}, 12")
        for i in range(4):
            a(f"s_add_u32 m0, s{T+6}, {131072 + i*1024}")
            a(f"s_add_u32 s{T+7}, s{T+5}, {i*16*1024}")
            a(f"buffer_load_dwordx4 v148, s[{S_WO}:{S_WO+3}], s{T+7} offen lds")
    return act

def attn_out(a, cfg, sc):
    T = S_A
    a(f"s_lshl_b32 s{T+4}, s{S_J}, 3")
    a(f"s_add_u32 s{T+4}, s{T+4}, s{S_W}")
    a(f"s_lshl_b32 s{T+4}, s{T+4}, 5")
    a(f"s_add_u32 s{T+4}, s{T+4}, s{S_H}")
    a(f"s_lshl_b32 s{T+4}, s{T+4}, 10")
    a(f"s_add_u32 s{T+4}, s{T+4}, {WS_OF}")
    a(f"buffer_store_dwordx4 v[4:7], v{V_L16}, s[{S_WS}:{S_WS+3}], s{T+4} offen {sc}")

def finish(a, cfg):
    T = S_A
    a(f"s_or_b32 s{T+4}, s2, s{S_W}")
    a(f"s_cmp_lg_u32 s{T+4}, 0")
    a("s_cbranch_scc1 L_fin")
    a(f"s_mov_b32 s{T+4}, {WS_EPOCH}")
    flag_store(a, S_TAG, T+4, "sc1")
    a.label("L_fin")
    stamp_flush(a, cfg)
    a("s_waitcnt vmcnt(0)")
    a.label("L_end")
    a("s_endpgm")

def build(cfg):
    global NOW2
    NOW2 = 'now2' in cfg.exp
    global NOWARM, NOPT
    NOWARM = 'nowarm' in cfg.exp
    NOPT = 'nopt' in cfg.exp
    a = Asm()
    prologue(a, cfg)
    if cfg.skip_p1:
        a("s_waitcnt lgkmcnt(0)")
        srd(a, S_WS, S_KA+20, S_KA+21, WS_SIZE)
        k = S_KA
        srd(a, S_X, k, k+1, 2097152); srd(a, S_WO, k+4, k+5, 524288); srd(a, S_W1, k+8, k+9, 1409024); srd(a, S_B1, k+10, k+11, 2752); srd(a, S_W2, k+12, k+13, 1409024); srd(a, S_B2, k+14, k+15, 1024)
        a(f"s_mov_b32 s{S_RERUN}, 1")
        for r in range(8): a(f"v_mov_b32 v{V_Q+r}, 0x3c003c00")
        if 'rnd' in cfg.exp:
            a(f"s_mov_b32 s{S_A+4}, 0x9e3779b1")
            a(f"v_mul_lo_u32 v2, v0, s{S_A+4}")
            def rnd(dst):
                a(f"v_mul_lo_u32 v2, v2, s{S_A+4}")
                a("v_add_u32 v2, 0x7f4a7c15, v2")
                a(f"v_and_b32 v{dst}, 0xbf7fbf7f, v2")
                a(f"v_or_b32 v{dst}, 0x3e003e00, v{dst}")
            for r in range(8): rnd(V_Q + r)
            a(f"v_lshlrev_b32 v3, 4, v0")
            for i in range(16):
                for r in range(4): rnd(4 + r)
                a(f"ds_write_b128 v3, v[4:7]")
                a(f"v_add_u32 v3, 8192, v3")
            a("s_waitcnt lgkmcnt(0)")
        a("s_barrier")
        stamp(a, cfg, 4)
    else:
        phase1(a, cfg)
    if cfg.stop_after != "p1" and not cfg.v3:
        attention(a, cfg)
        if cfg.stop_after == "attn":
            attn_out(a, cfg, "sc1")
            stamp(a, cfg, 9)
        else:
            import tail
            tail.tail(a, cfg)
    finish(a, cfg)
    errs = check_hazards(a.lines) + check_waits(a.lines)
    if cfg.v3:
        errs += check_waits(a.lines, take=('L3_hw_start',)) + check_waits(a.lines, take=('L3_hw_start', 'L3_o_np', 'L3_o_w1b', 'L3_o_w1d', 'L3_h_cs', 'L3_g_np', 'L3_nf_o', 'L3_f_k1', 'L_p1_nonowner', 'L_p1_st_n'))
        errs = sorted(set(errs))
    errs = [e for e in errs if e.count("buffer_load_dwordx4 v[6:9]") < 2 and e.count("buffer_load_dwordx4 v[40:43]") < 2 and e.count("buffer_load_dwordx4 v[8:11]") < 2]
    for e in errs[:8]: print("!!", e, file=sys.stderr)
    hdr = open("cdna_kernels/" + NAME + ".s.ref").read().split("; Override")[0]
    out = hdr
    out += f"; @launch kernel={KNAME} grid=(256,1,1) block=(512,1,1) lds={LDS_SIZE}\n"
    out += '.amdgcn_target "amdgcn-amd-amdhsa--gfx950"\n.text\n'
    out += f".globl {KNAME}\n.p2align 8\n.type {KNAME},@function\n{KNAME}:\n"
    body = a.text()
    if 'cpf' in cfg.exp:
        body = body.replace("L_end:", "L_end:").replace("CODE_BYTES", "(L_end - L_cpf_pc)")
    out += body
    out += f""".section .rodata,"a"
.p2align 6
.amdhsa_kernel {KNAME}
  .amdhsa_next_free_vgpr 256
  .amdhsa_next_free_sgpr 102
  .amdhsa_accum_offset 256
  .amdhsa_group_segment_fixed_size 0
  .amdhsa_kernarg_size 88
  .amdhsa_user_sgpr_count 2
  .amdhsa_user_sgpr_kernarg_segment_ptr 1
  .amdhsa_system_sgpr_workgroup_id_x 1
.end_amdhsa_kernel
"""
    return out, errs

if __name__ == "__main__":
    cfg = Cfg()
    outp = "cdna_kernels/" + NAME + ".s"
    for arg in sys.argv[1:]:
        if arg == "stamps": cfg.stamps = True
        elif arg.startswith("stop="): cfg.stop_after = arg[5:]
        elif arg.startswith("out="): outp = arg[4:]
        elif arg == "pf": cfg.p1_prefetch = True
        elif arg == "p1d": cfg.p1_detail = True
        elif arg == "slow": cfg.force_slow = True
        elif arg == "f2d": cfg.f2_detail = True
        elif arg == "atd": cfg.at_detail = True
        elif arg == "dbgt": cfg.dbgt = True
        elif arg == "rt": cfg.rt = True
        elif arg == "v3": cfg.v3 = True
        elif arg == "ust": cfg.ustamps = True
        elif arg.startswith("exp="): cfg.exp = cfg.exp + "_" + arg[4:]
        elif arg.startswith("EXP="): cfg.exp = arg[4:]
        elif arg == "skip_p1": cfg.skip_p1 = True
        elif arg.startswith("av="): cfg.attn_variant = int(arg[3:])
        elif arg.startswith("prio="): cfg.prio = int(arg[5:])
    txt, errs = build(cfg)
    open(outp, "w").write(txt)
    print("wrote", outp, len(txt), "bytes;", len(errs), "checker findings")
```
